```python
import torch

def _softmax(x, axis=-1):
    return torch.softmax(x, dim=axis)

def _gelu(x):
    return torch.nn.functional.gelu(x, approximate='tanh')

def _silu(x):
    return torch.nn.functional.silu(x)

def _sigmoid(x):
    return torch.sigmoid(x)

def _layernorm(x, axis=-1, eps=1e-05):
    m = x.mean(dim=axis, keepdim=True)
    v = x.var(dim=axis, keepdim=True, unbiased=False)
    return (x - m) / torch.sqrt(v + eps)

def _scatter_add(tgt, idx, src, axis=0):
    return tgt.clone().index_add_(axis, idx, src)

def _segment_sum(src, seg, n):
    out = torch.zeros((n,) + src.shape[1:], dtype=src.dtype)
    return out.index_add_(0, seg, src)

def _pad(x, pw):
    flat = tuple((v for pair in reversed(pw) for v in pair))
    return torch.nn.functional.pad(x, flat)
kernel_name = 'standalone__conformer_family_branchformer__speech'

def setup_inputs():

    _w = lambda a: (lambda t: t.to(torch.bfloat16) if t.is_floating_point() else t)(torch.as_tensor(a))
    B, T, D, K = (2, 4000, 512, 31)
    s = float(D) ** (-0.5)
    return {'x': _w((lambda *s: torch.randn(*s, dtype=torch.bfloat16) * 0.05)(B, T, D)), 'w_q': _w((lambda *s: torch.randn(*s, dtype=torch.bfloat16) * 1.6)(D, D) * s), 'w_k': _w((lambda *s: torch.randn(*s, dtype=torch.bfloat16) * 1.6)(D, D) * s), 'w_v': _w((lambda *s: torch.randn(*s, dtype=torch.bfloat16) * 0.8)(D, D) * s), 'w_ao': _w((lambda *s: torch.randn(*s, dtype=torch.bfloat16) * 0.8)(D, D) * s), 'w_up': _w((lambda *s: torch.randn(*s, dtype=torch.bfloat16) * 1.6)(D, 2 * D) * s), 'dw': _w((lambda *s: torch.randn(*s, dtype=torch.bfloat16) * 1.6)(K, D) * (1.0 / K)), 'w_dn': _w((lambda *s: torch.randn(*s, dtype=torch.bfloat16) * 0.8)(D, D) * s), 'w_merge': _w((lambda *s: torch.randn(*s, dtype=torch.bfloat16) * 0.8)(2 * D, D) * s)}

def reference(x, w_q, w_k, w_v, w_ao, w_up, dw, w_dn, w_merge):
    B, T, D = x.shape
    K = dw.shape[0]
    xa = _layernorm(x, axis=-1)
    q = torch.einsum('btd,de->bte', xa, w_q)
    k = torch.einsum('btd,de->bte', xa, w_k)
    v = torch.einsum('btd,de->bte', xa, w_v)
    logits = torch.einsum('btd,bsd->bts', q, k) * float(D) ** (-0.5)
    attn = _softmax(logits, axis=-1)
    ya = torch.einsum('bts,bsd->btd', attn, v)
    ya = torch.einsum('btd,de->bte', ya, w_ao)
    xc = _layernorm(x, axis=-1)
    h = _gelu(torch.einsum('btd,de->bte', xc, w_up))
    u = h[..., :D].clone()
    g = _layernorm(h[..., D:], axis=-1)
    pad = K // 2
    gp = _pad(g, ((0, 0), (pad, pad), (0, 0)))
    conv = torch.zeros_like(g)
    for i in range(K):
        conv = conv + gp[:, i:i + T, :] * dw[i][None, None, :]
    yc = torch.einsum('btd,de->bte', u * conv, w_dn)
    merged = torch.concatenate([ya, yc], axis=-1)
    out = torch.einsum('btf,fd->btd', merged, w_merge)
    return x + out
```

```python
class Asm:
    def __init__(self):
        self.lines = []
        self.kernels = []
        self.launches = []
        self.uid = 0
    def e(self, s=''):
        for l in s.split('\n'):
            self.lines.append(l.strip())
    def label(self, name):
        self.lines.append(name + ':')
    def newlabel(self, p='L'):
        self.uid += 1
        return f'{p}_{self.uid}'
    def begin(self, name):
        self.lines += ['.text', f'.globl {name}', '.p2align 8', f'.type {name},@function', f'{name}:']
    def end(self, name, vgpr, sgpr=102, accum=None):
        if accum is None: accum = min(256, (vgpr + 3) // 4 * 4)
        self.kernels.append((name, vgpr, sgpr, accum))
    def launch(self, name, grid, block, lds):
        self.launches.append(f'; @launch kernel={name} grid=({grid},1,1) block=({block},1,1) lds={lds}')
    def text(self, header=''):
        out = [header] if header else []
        out += self.launches
        out.append('.amdgcn_target "amdgcn-amd-amdhsa--gfx950"')
        out += self.lines
        out.append('.section .rodata,"a"')
        for name, v, s, a in self.kernels:
            out += ['.p2align 6', f'.amdhsa_kernel {name}',
                    f'  .amdhsa_next_free_vgpr {v}', f'  .amdhsa_next_free_sgpr {s}', f'  .amdhsa_accum_offset {a}',
                    '  .amdhsa_group_segment_fixed_size 0', '  .amdhsa_kernarg_size 96', '  .amdhsa_user_sgpr_count 2',
                    '  .amdhsa_user_sgpr_kernarg_segment_ptr 1', '  .amdhsa_system_sgpr_workgroup_id_x 1',
                    '.end_amdhsa_kernel']
        return '\n'.join(out) + '\n'
    def srd(self, d, base, nbytes, off=0):
        if off:
            self.e(f's_add_u32 s{d}, s{base}, {off & 0xffffffff}')
            self.e(f's_addc_u32 s{d+1}, s{base+1}, {off >> 32}')
        else:
            self.e(f's_mov_b32 s{d}, s{base}')
            self.e(f's_mov_b32 s{d+1}, s{base+1}')
        self.e(f's_mov_b32 s{d+2}, {nbytes}')
        self.e(f's_mov_b32 s{d+3}, 0x00020000')

    diag = False
    def stamp_begin(self):
        if self.diag:
            self.e('s_memrealtime s[96:97]\ns_memtime s[98:99]\ns_mov_b32 s95, s2\nv_lshrrev_b32 v1, 6, v0\ns_nop 1\nv_readfirstlane_b32 s94, v1\ns_waitcnt lgkmcnt(0)')
    def stamp_mid(self, i):
        if self.diag:
            self.e(f's_memtime s[{86+2*i}:{87+2*i}]')
    def endpgm(self, kidx):
        if self.diag:
            from layout import STAMP_OFF
            e = self.e
            e('s_waitcnt vmcnt(0) lgkmcnt(0)\ns_memrealtime s[84:85]\ns_memtime s[82:83]\ns_load_dwordx2 s[80:81], s[0:1], 88\ns_waitcnt lgkmcnt(0)')
            self.srd(76, 80, 1<<20, STAMP_OFF + kidx*(1<<20))
            e('s_mov_b64 exec, -1')
            e('v_mov_b32 v8, s96\nv_mov_b32 v9, s84\ns_sub_u32 s82, s82, s98\nv_mov_b32 v10, s82')
            for i in range(4):
                e(f's_sub_u32 s{86+2*i}, s{86+2*i}, s98\nv_mov_b32 v{11+i}, s{86+2*i}')
            e('v_mov_b32 v15, 0\nv_mov_b32 v4, 0\ns_lshl_b32 s95, s95, 3\ns_add_u32 s95, s95, s94\ns_lshl_b32 s95, s95, 5')
            e('buffer_store_dwordx4 v[8:11], v4, s[76:79], s95 offen\nbuffer_store_dwordx4 v[12:15], v4, s[76:79], s95 offen offset:16')
        self.e('s_endpgm')
```

```python
import sys
sys.path.insert(0,'dev')
from asmlib import Asm
from layout import *
MF='v_mfma_f32_16x16x32_bf16'
import struct
def f2u(x): return struct.unpack('<I', struct.pack('<f', x))[0]
QSCALE = 512**-0.5 * 1.4426950408889634
PITCH = 1040
BREG = 64*PITCH

def k0_kernel(a, name, kidx=0):
    e = a.e
    a.begin(name)
    e(f's_cmp_ge_u32 s2, 256\ns_cbranch_scc1 {name}_end')
    a.stamp_begin()
    e('s_load_dwordx16 s[36:51], s[0:1], 0')
    e('s_load_dwordx2 s[52:53], s[0:1], 64')
    e('s_load_dwordx2 s[4:5], s[0:1], 88')
    e('v_lshrrev_b32 v9, 6, v0\nv_and_b32 v0, 63, v0\ns_nop 0\nv_readfirstlane_b32 s24, v9')
    e('v_lshlrev_b32 v1, 4, v0')
    e('v_and_b32 v2, 15, v0\nv_lshrrev_b32 v3, 4, v0')
    e('''v_lshrrev_b32 v4, 3, v0
    v_and_b32 v5, 7, v0
    v_and_b32 v6, 2, v4
    v_lshlrev_b32 v6, 1, v6
    v_xor_b32 v5, v5, v6
    v_lshlrev_b32 v5, 4, v5''')
    e('s_and_b32 s54, s24, 1\ns_bfe_u32 s55, s24, 0x10001\ns_lshr_b32 s56, s24, 2')
    e('s_waitcnt lgkmcnt(0)')
    a.srd(8, 36, XA_SZ); a.srd(20, 4, XA_SZ, XA_OFF)
    e('s_lshl_b32 s60, s2, 3\ns_add_u32 s60, s60, s24\ns_lshl_b32 s60, s60, 12')
    for r in range(4): e(f'buffer_load_dwordx4 v[{16+4*r}:{19+4*r}], v1, s[8:11], s60 offen offset:{1024*r}')
    e(f's_mul_i32 s29, s24, {8*PITCH}')
    def rows_dma(srd, off0, off1, ldsadd):
        for i in range(8):
            e(f's_add_u32 m0, s29, {ldsadd + i*PITCH - (i%4)*1024}\ns_nop 0')
            e(f'buffer_load_dwordx4 v1, s[{srd}:{srd+3}], s{off0 if i < 4 else off1} offen offset:{(i%4)*1024} lds')
    e(f's_cmp_ge_u32 s2, 64\ns_cbranch_scc1 {name}_notM')
    e('s_and_b32 s25, s2, 7\ns_lshr_b32 s26, s2, 3')
    a.srd(12, 38, 524288); a.srd(16, 40, 524288)
    e('s_lshl_b32 s27, s54, 8\ns_lshr_b32 s28, s24, 1\ns_lshl_b32 s28, s28, 2\ns_add_u32 s27, s27, s28\ns_lshl_b32 s27, s27, 10')
    e('s_lshl_b32 s30, s25, 14\ns_add_u32 s30, s30, s27\ns_add_u32 s31, s30, 131072')
    e('s_lshl_b32 s32, s26, 14\ns_add_u32 s32, s32, s27\ns_add_u32 s33, s32, 131072')
    rows_dma(12, 30, 31, 0)
    rows_dma(16, 32, 33, BREG)
    e('s_mov_b32 s61, 0')
    e(f's_branch {name}_ln')
    a.label(f'{name}_notM')
    e(f's_cmp_ge_u32 s2, 192\ns_cbranch_scc1 {name}_notW')
    e('s_lshr_b32 s25, s2, 7\ns_and_b32 s26, s2, 7\ns_bfe_u32 s27, s2, 0x30003')
    a.srd(16, 52, 1024*1024)
    e('s_cmp_eq_u32 s25, 0\ns_cselect_b32 s12, s44, s50\ns_cselect_b32 s13, s45, s51\ns_mov_b32 s14, 524288\ns_mov_b32 s15, 0x20000')
    e('s_lshl_b32 s30, s56, 5\ns_lshl_b32 s31, s55, 2\ns_add_u32 s30, s30, s31\ns_lshl_b32 s31, s54, 4\ns_add_u32 s30, s30, s31\ns_lshl_b32 s31, s24, 3')
    e('s_cmp_eq_u32 s25, 0\ns_cselect_b32 s30, s30, s31\ns_cselect_b32 s31, 8, 4\ns_lshl_b32 s32, s27, 6\ns_add_u32 s30, s30, s32\ns_add_u32 s31, s31, s30')
    e('s_lshl_b32 s30, s30, 10\ns_lshl_b32 s31, s31, 10')
    rows_dma(12, 30, 31, 0)
    e('v_lshl_add_u32 v7, v4, 10, v5')
    e('s_lshl_b32 s28, s25, 19\ns_lshl_b32 s32, s26, 7\ns_add_u32 s28, s28, s32\ns_lshl_b32 s32, s24, 16\ns_add_u32 s28, s28, s32\ns_lshl_b32 s32, s24, 13')
    for i in range(8):
        e(f's_add_u32 m0, s32, {BREG + i*1024}\ns_nop 0\nbuffer_load_dwordx4 v7, s[16:19], s28 offen lds\ns_add_u32 s28, s28, 8192')
    e('s_mov_b32 s61, 1')
    e(f's_branch {name}_ln')
    a.label(f'{name}_notW')
    e('s_sub_u32 s25, s2, 192\ns_and_b32 s26, s25, 3\ns_lshr_b32 s25, s25, 2')
    a.srd(12, 46, 1024*1024)
    e('v_lshl_add_u32 v7, v4, 11, v5')
    e('s_lshr_b32 s28, s24, 1\ns_lshl_b32 s28, s28, 18\ns_lshl_b32 s30, s26, 16\ns_add_u32 s28, s28, s30\ns_lshl_b32 s30, s54, 15\ns_add_u32 s28, s28, s30\ns_lshl_b32 s30, s25, 7\ns_add_u32 s28, s28, s30\ns_lshl_b32 s30, s24, 11')
    for i in range(2):
        e(f's_add_u32 m0, s30, {i*1024}\ns_nop 0\nbuffer_load_dwordx4 v7, s[12:15], s28 offen lds\ns_add_u32 s28, s28, 16384')
    a.srd(16, 48, 31*1024)
    e('s_sub_u32 s33, s2, 252\ns_lshl_b32 s33, s33, 3\ns_add_u32 s33, s33, s24\ns_cmp_ge_u32 s2, 252\ns_cselect_b32 s33, s33, 0x8000\ns_lshl_b32 s34, s33, 5')
    e('v_and_b32 v8, 1, v3\nv_lshlrev_b32 v8, 10, v8\nv_lshl_add_u32 v8, v2, 1, v8')
    for ip in range(14):
        e(f'buffer_load_ushort v{80+ip}, v8, s[16:19], s34 offen offset:{2048*(ip%2)}')
        if ip % 2: e('s_add_u32 s34, s34, 4096')
    e('s_mov_b32 s61, 2')
    a.label(f'{name}_ln')
    e(f's_mov_b32 s62, 0xffff0000\ns_mov_b32 s63, {f2u(1/512)}\nv_mov_b32 v10, {f2u(1e-5)}')
    e('s_waitcnt vmcnt(16)')
    a.stamp_mid(0)
    def allsum(regs, tmps):
        for sh in (8, 4, 2, 1):
            for x in regs: e(f'v_add_f32_dpp v{x}, v{x}, v{x} row_ror:{sh} row_mask:0xf bank_mask:0xf')
        for sw in ('16', '32'):
            for x, t in zip(regs, tmps): e(f'v_mov_b32 v{t}, v{x}')
            e('s_nop 0')
            for x, t in zip(regs, tmps): e(f'v_permlane{sw}_swap_b32 v{t}, v{x}')
            e('s_nop 0')
            for x, t in zip(regs, tmps): e(f'v_add_f32 v{x}, v{x}, v{t}')
    X = lambda r, j: 32 + 8*r + j
    S = [64, 65, 66, 67]; Tm = [68, 69, 70, 71]
    for r in range(4):
        src = 16 + 4*r
        for k in range(4):
            e(f'v_lshlrev_b32 v{X(r,2*k)}, 16, v{src+k}\nv_and_b32 v{X(r,2*k+1)}, s62, v{src+k}')
    for r in range(4): e(f'v_add_f32 v{S[r]}, v{X(r,0)}, v{X(r,1)}')
    for j in range(2, 8):
        for r in range(4): e(f'v_add_f32 v{S[r]}, v{S[r]}, v{X(r,j)}')
    allsum(S, Tm)
    for r in range(4): e(f'v_mul_f32 v{S[r]}, s63, v{S[r]}')
    for j in range(8):
        for r in range(4): e(f'v_sub_f32 v{X(r,j)}, v{X(r,j)}, v{S[r]}')
    for r in range(4): e(f'v_mul_f32 v{S[r]}, v{X(r,0)}, v{X(r,0)}')
    for j in range(1, 8):
        for r in range(4): e(f'v_fmac_f32 v{S[r]}, v{X(r,j)}, v{X(r,j)}')
    allsum(S, Tm)
    for r in range(4): e(f'v_fma_f32 v{S[r]}, v{S[r]}, s63, v10')
    for r in range(4): e(f'v_rsq_f32 v{S[r]}, v{S[r]}')
    e('s_nop 0')
    for j in range(8):
        for r in range(4): e(f'v_mul_f32 v{X(r,j)}, v{X(r,j)}, v{S[r]}')
    for r in range(4):
        for k in range(4): e(f'v_cvt_pk_bf16_f32 v{16+4*r+k}, v{X(r,2*k)}, v{X(r,2*k+1)}')
    for r in range(4):
        e(f'buffer_store_dwordx4 v[{16+4*r}:{19+4*r}], v1, s[20:23], s60 offen offset:{1024*r}')
    a.stamp_mid(1)
    e('s_waitcnt vmcnt(4)\ns_barrier')
    a.stamp_mid(2)
    a.srd(20, 4, WS_SZ)
    e(f's_cmp_eq_u32 s61, 2\ns_cbranch_scc1 {name}_up2')
    e(f'v_mul_u32_u24 v6, {PITCH}, v2\nv_lshl_add_u32 v6, v3, 8, v6')
    e(f's_mul_i32 s30, s54, {32*PITCH}\nv_add_u32 v7, s30, v6')
    def gemm(bread, nb):
        def rd(st):
            r = 32 + 12*(st % 4)
            for jj in range(2): e(f'ds_read_b128 v[{r+4*jj}:{r+4*jj+3}], v7 offset:{jj*16*PITCH + 16*st}')
            bread(st, r+8)
        for st in range(3): rd(st)
        for st in range(16):
            e(f's_waitcnt lgkmcnt({(2+nb)*min(2,15-st)})')
            r = 32 + 12*(st % 4)
            for jj in range(2):
                d = 16 + 4*jj
                c = '0' if st == 0 else f'v[{d}:{d+3}]'
                e(f'{MF} v[{d}:{d+3}], v[{r+4*jj}:{r+4*jj+3}], v[{r+8}:{r+11}], {c}')
            if st + 3 < 16: rd(st+3)
        e('s_nop 7')
    e(f's_cmp_eq_u32 s61, 1\ns_cbranch_scc1 {name}_w2')
    e(f's_lshl_b32 s30, s55, 1\ns_add_u32 s30, s30, s56\ns_mul_i32 s30, s30, {16*PITCH}\ns_add_u32 s30, s30, {BREG}\nv_add_u32 v8, s30, v6')
    gemm(lambda st, r: e(f'ds_read_b128 v[{r}:{r+3}], v8 offset:{16*st}'), 1)
    e(f's_mov_b32 s33, {f2u(QSCALE)}')
    for i in range(8): e(f'v_mul_f32 v{16+i}, s33, v{16+i}')
    for k in range(4): e(f'v_cvt_pk_bf16_f32 v{24+k}, v{16+2*k}, v{16+2*k+1}')
    e(f's_lshl_b32 s28, s26, 1\ns_add_u32 s28, s28, s55\ns_lshl_b32 s28, s28, 15\ns_lshl_b32 s30, s25, 1\ns_add_u32 s30, s30, s54\ns_lshl_b32 s30, s30, 11\ns_add_u32 s28, s28, s30\ns_lshl_b32 s30, s56, 10\ns_add_u32 s28, s28, s30\ns_add_u32 s28, s28, {WA_OFF}')
    e('buffer_store_dwordx4 v[24:27], v1, s[20:23], s28 offen')
    a.endpgm(kidx)
    a.label(f'{name}_w2')
    e('''v_bfe_u32 v9, v0, 2, 2
    v_lshl_add_u32 v8, v3, 7, v9
    v_lshlrev_b32 v8, 7, v8
    v_and_b32 v11, 3, v0
    v_and_b32 v9, 2, v9
    v_lshlrev_b32 v9, 1, v9
    v_or_b32 v11, v11, v9''')
    e(f's_lshl_b32 s30, s55, 2\nv_xor_b32 v11, s30, v11\nv_lshl_add_u32 v8, v11, 4, v8\ns_lshl_b32 s30, s56, 3\ns_add_u32 s30, s30, {BREG}\nv_add_u32 v8, s30, v8')
    def wb(st, r):
        for x in range(2): e(f'ds_read_b64_tr_b16 v[{r+2*x}:{r+2*x+1}], v8 offset:{(8*st+4*x)*128}')
    gemm(wb, 2)
    for k in range(4): e(f'v_cvt_pk_bf16_f32 v{24+k}, v{16+2*k}, v{16+2*k+1}')
    e('s_lshl_b32 s35, s26, 2\ns_lshl_b32 s33, s55, 1\ns_add_u32 s35, s35, s33\ns_add_u32 s35, s35, s56\ns_lshl_b32 s30, s27, 1\ns_add_u32 s30, s30, s54')
    e(f's_lshl_b32 s28, s35, 14\ns_lshl_b32 s29, s30, 10\ns_add_u32 s28, s28, s29\ns_add_u32 s28, s28, {W1_OFF}')
    e(f's_lshr_b32 s29, s35, 3\ns_lshl_b32 s29, s29, 4\ns_add_u32 s29, s29, s30\ns_lshl_b32 s29, s29, 13\ns_and_b32 s33, s35, 7\ns_lshl_b32 s33, s33, 10\ns_add_u32 s29, s29, s33\ns_add_u32 s29, s29, {WF_OFF}')
    e('s_cmp_eq_u32 s25, 0\ns_cselect_b32 s28, s28, s29')
    e('buffer_store_dwordx4 v[24:27], v1, s[20:23], s28 offen')
    a.endpgm(kidx)
    a.label(f'{name}_up2')
    for ip in range(14, 16):
        e(f'buffer_load_ushort v{80+ip}, v8, s[16:19], s34 offen offset:{2048*(ip%2)}')
    e('''v_bfe_u32 v6, v0, 2, 2
    v_lshl_add_u32 v7, v3, 5, v6
    v_lshlrev_b32 v7, 7, v7
    v_and_b32 v9, 3, v0
    v_and_b32 v6, 2, v6
    v_lshlrev_b32 v6, 5, v6''')
    e('s_cmp_lt_u32 s25, 8\ns_cselect_b32 s30, 3, 4\ns_cselect_b32 s31, 32, 8')
    e('v_lshlrev_b32 v9, s30, v9\nv_add_u32 v7, v7, v9\ns_and_b32 s35, s24, 3\ns_lshl_b32 s32, s35, 10\nv_add_u32 v7, s32, v7')
    e('s_lshl_b32 s32, s56, 6\nv_xor_b32 v6, s32, v6\nv_add_u32 v11, v7, v6\nv_add_u32 v12, s31, v11')
    for f in range(2):
        for x in range(2): e(f'ds_read_b64_tr_b16 v[{16+4*f+2*x}:{16+4*f+2*x+1}], v{11+f} offset:{512*x}')
    e(f's_lshl_b32 s28, s25, 1\ns_add_u32 s28, s28, s56\ns_lshl_b32 s28, s28, 15\ns_add_u32 s28, s28, {WA_OFF + 524288}\ns_lshl_b32 s29, s26, 2\ns_add_u32 s29, s29, s35\ns_lshl_b32 s29, s29, 11\ns_add_u32 s28, s28, s29')
    e('s_waitcnt lgkmcnt(0)')
    for f in range(2):
        e(f'buffer_store_dwordx4 v[{16+4*f}:{19+4*f}], v1, s[20:23], s28 offen offset:{1024*f}')
    a.srd(20, 4, DW_SZ, DW_OFF)
    e('s_lshl_b32 s28, s33, 11\ns_waitcnt vmcnt(2)')
    for q in range(8): e(f'v_lshl_or_b32 v{32+q}, v{81+2*q}, 16, v{80+2*q}')
    e('buffer_store_dwordx4 v[32:35], v1, s[20:23], s28 offen\nbuffer_store_dwordx4 v[36:39], v1, s[20:23], s28 offen offset:1024')
    a.endpgm(kidx)
    a.label(f'{name}_end')
    e('s_endpgm')
    a.end(name, 96, 102)
    a.launch(name, 256, 512, 128*PITCH)

if __name__ == '__main__':
    a = Asm(); a.diag = True; k0_kernel(a, 'prep_kernel')
    open('k0.s','w').write(a.text())
```

```python
import sys
sys.path.insert(0,'dev')
from asmlib import Asm
from layout import *
import struct
def f2u(x): return struct.unpack('<I', struct.pack('<f', x))[0]
MF='v_mfma_f32_16x16x32_bf16'
PITCH = 1040
C0 = -2*0.7978845608028654*1.4426950408889634
C1 = C0*0.044715

def decode_wg(e):
    e('s_and_b32 s30, s2, 7\ns_lshr_b32 s31, s2, 3\ns_and_b32 s32, s31, 3\ns_lshr_b32 s31, s31, 2\ns_lshl_b32 s30, s30, 3\ns_add_u32 s30, s30, s31')
    e('s_lshr_b32 s33, s30, 5\ns_and_b32 s34, s30, 31')
    e('v_lshrrev_b32 v9, 6, v0\nv_and_b32 v0, 63, v0\ns_nop 0\nv_readfirstlane_b32 s24, v9')

V_L16=1; V_B0=2; V_B1=3; V_C0=4; V_C1=5; V_AD=6
TMP=16
FR=32; NF=8
ACC=[64,128]
def fr(f): return FR + 4*(f % NF)

def k1_kernel(a, name, kidx=1, order=(2,1,0), DF=6, W=2):
    e = a.e
    a.begin(name)
    e(f's_cmp_ge_u32 s2, 256\ns_cbranch_scc1 {name}_end')
    a.stamp_begin()
    e('s_load_dwordx2 s[4:5], s[0:1], 88\ns_load_dwordx2 s[6:7], s[0:1], 24')
    decode_wg(e)
    e(f'v_lshlrev_b32 v{V_L16}, 4, v0')
    e('s_waitcnt lgkmcnt(0)')
    a.srd(8, 4, XA_SZ, XA_OFF); a.srd(12, 4, WA_SZ, WA_OFF); a.srd(16, 4, WS_SZ)
    e('s_mul_i32 s25, s33, 4000\ns_lshl_b32 s39, s34, 7\ns_add_u32 s25, s25, s39\ns_lshl_b32 s39, s24, 5\ns_add_u32 s25, s25, s39\ns_lshl_b32 s25, s25, 10')
    e(f's_mul_i32 s27, s24, {32*PITCH}')
    for i in range(32):
        e(f's_add_u32 m0, s27, {i*PITCH - (i%4)*1024}')
        e('s_nop 0' if i % 4 or i == 0 else 's_add_u32 s25, s25, 4096')
        e(f'buffer_load_dwordx4 v{V_L16}, s[8:11], s25 offen offset:{(i%4)*1024} lds')
    a.srd(20, 6, 524288)
    e('s_lshl_b32 s40, s2, 2\ns_add_u32 s40, s40, s24\ns_and_b32 s41, s40, 31\ns_lshr_b32 s42, s40, 5')
    e(f'v_and_b32 v9, 15, v0\nv_lshrrev_b32 v10, 4, v0\nv_lshlrev_b32 v{V_AD}, 10, v9\nv_lshl_add_u32 v{V_AD}, v10, 4, v{V_AD}')
    e(f's_lshl_b32 s43, s42, 14\ns_lshl_b32 s44, s41, 14\ns_add_u32 s44, s44, {W1_OFF}')
    def sload(i):
        st = i // 2; r = 128 + 4*i
        if i % 2 == 0: return f'buffer_load_dwordx4 a[{r}:{r+3}], v{V_AD}, s[20:23], s43 offen offset:{64*st}'
        pre = 's_add_u32 s44, s44, 4096\n' if st % 4 == 0 and st else ''
        return pre + f'buffer_load_dwordx4 a[{r}:{r+3}], v{V_L16}, s[16:19], s44 offen offset:{1024*(st%4)}'
    e('s_lshl_b32 s45, s32, 2\ns_add_u32 s45, s45, s24\ns_lshl_b32 s46, s45, 15')
    def wload(ps, i):
        r = (ps % 2)*128 + 4*i
        pre = f's_add_u32 s47, s46, {order[ps]*524288 + (i//4)*4096}\n' if i % 4 == 0 else ''
        return pre + f'buffer_load_dwordx4 a[{r}:{r+3}], v{V_L16}, s[12:15], s47 offen offset:{(i%4)*1024}'
    e(f'v_mul_u32_u24 v9, {PITCH}, v9\nv_lshl_add_u32 v{V_B0}, v10, 8, v9\nv_add_u32 v{V_B1}, {64*PITCH}, v{V_B0}')
    e(f'v_mov_b32 v{V_C0}, {f2u(C0)}\nv_mov_b32 v{V_C1}, {f2u(C1)}')
    for i in range(31): e(wload(0, i))
    e(f's_lshr_b32 s64, s41, 3\ns_lshl_b32 s64, s64, 4\ns_lshr_b32 s65, s42, 1\ns_add_u32 s64, s64, s65\ns_lshl_b32 s64, s64, 13\ns_and_b32 s65, s41, 7\ns_lshl_b32 s65, s65, 10\ns_add_u32 s64, s64, s65\ns_and_b32 s65, s42, 1\ns_lshl_b32 s65, s65, 3\ns_add_u32 s64, s64, s65\ns_add_u32 s64, s64, {WF_OFF + 524288}')
    e('s_mul_i32 s48, s33, 250\ns_lshl_b32 s49, s34, 3\ns_add_u32 s48, s48, s49\ns_lshl_b32 s48, s48, 14')
    e('s_lshl_b32 s49, s45, 10\ns_add_u32 s50, s48, s49')
    e('s_lshl_b32 s49, s45, 11\ns_add_u32 s51, s48, s49')
    e('s_add_u32 s49, s33, 1\ns_mul_i32 s49, s49, 4096000')
    for kind, off, d in ((0, QF_OFF, 52), (1, UF_OFF, 56), (2, GF_OFF, 60)):
        e(f's_add_u32 s{d}, s4, {off}\ns_addc_u32 s{d+1}, s5, 0\ns_mov_b32 s{d+2}, s49\ns_mov_b32 s{d+3}, 0x20000')
    e('s_waitcnt vmcnt(31)')
    a.stamp_mid(0)
    e('s_barrier')
    a.stamp_mid(1)

    def reads(f):
        f0 = f % 128; ks, rt = f0 // 8, f0 % 8; r = fr(f)
        return f'ds_read_b128 v[{r}:{r+3}], v{V_B0 if rt < 4 else V_B1} offset:{(rt%4)*16*PITCH + 16*ks}'
    def epi_ops(ps):
        kind = order[ps]; A = ACC[ps % 2]; ops = []
        for rt in range(8):
            x = [A + 8*rt + j for j in range(8)]
            o = TMP + 8 + 4*(rt % 2)
            if kind:
                for h in range(2):
                    xs = x[4*h:4*h+4]; t = [TMP + 4*h + j for j in range(4)]
                    for j in range(4): ops.append((f'v_mul_f32 v{t[j]}, v{xs[j]}, v{xs[j]}', 1))
                    for j in range(4): ops.append((f'v_fma_f32 v{t[j]}, v{t[j]}, v{V_C1}, v{V_C0}', 1))
                    for j in range(4): ops.append((f'v_mul_f32 v{t[j]}, v{t[j]}, v{xs[j]}', 1))
                    for j in range(4): ops.append((f'v_exp_f32 v{t[j]}, v{t[j]}', 2))
                    for j in range(4): ops.append((f'v_add_f32 v{t[j]}, 1.0, v{t[j]}', 1))
                    for j in range(4): ops.append((f'v_rcp_f32 v{t[j]}, v{t[j]}', 2))
                    for j in range(4): ops.append((f'v_mul_f32 v{xs[j]}, v{xs[j]}, v{t[j]}', 1))
            for k in range(4): ops.append((f'v_cvt_pk_bf16_f32 v{o+k}, v{x[2*k]}, v{x[2*k+1]}', 1))
            if kind:
                ops.append((f's_add_u32 s49, s50, {rt*16384}', 1))
                ops.append((f'buffer_store_dwordx4 v[{o}:{o+3}], v{V_L16}, s[{52+4*kind}:{55+4*kind}], s49 offen', 1))
            else:
                ops.append((f's_add_u32 s49, s51, {(rt//2)*32768 + (rt%2)*1024}', 1))
                ops.append((f'buffer_store_dwordx4 v[{o}:{o+3}], v{V_L16}, s[52:55], s49 offen', 1))
        return ops
    vm = [['w0']*31]
    vq = vm[0]
    for f in range(DF): e(reads(f))
    for ps in range(3):
        A = ACC[ps % 2]
        fill = []
        if ps == 0: fill += [(wload(0, 31), 1, 'w0')] + [(wload(1, i), 1, 'w1') for i in range(32)]
        if ps > 0: fill += [(o, c, 'st' if o.startswith('buffer') else None) for o, c in epi_ops(ps-1)]
        tot = sum(c for _, c, _ in fill)
        start = 8 if ps else 0
        fi = 0; acc = 0.0
        seen = {}
        for n in range(256):
            f = n // 2; ks, rt, jh = f // 8, f % 8, n % 2
            w = []
            if n % (2*W) == 0:
                last = 128 if ps == 2 else 10**9
                w.append(f'lgkmcnt({max(0, min(f + DF, last) - (f + W))})')
            if rt == 0 and jh == 0:
                tag = f'w{ps}'
                idxs = [i for i, t in enumerate(vq) if t == tag]
                need = idxs[2*ks+1]
                w.append(f'vmcnt({min(63, len(vq) - 1 - need)})')
            if w: e('s_waitcnt ' + ' '.join(w))
            d = A + 8*rt + 4*jh; wr = (ps % 2)*128 + 4*(2*ks+jh)
            c = '0' if ks == 0 else f'v[{d}:{d+3}]'
            e(f'{MF} v[{d}:{d+3}], a[{wr}:{wr+3}], v[{fr(f)}:{fr(f)+3}], {c}')
            if jh == 1 and not (ps == 2 and f + DF >= 128): e(reads(f + DF))
            if ps == 1 and rt == 7 and jh == 0:
                pass
            if ps == 1 and rt in (2, 5) and jh == 0:
                e(wload(2, 2*ks + (rt == 5))); vq.append('w2')
            if ps == 2 and rt in (1, 3, 5, 7) and jh == 0 and ks < 8:
                e(sload(4*ks + rt//2)); vq.append('sd')
            if n >= start:
                acc += tot / (250 - start)
                while fi < len(fill) and acc >= fill[fi][1] - 0.5:
                    o, c2, tag = fill[fi]; e(o); acc -= c2; fi += 1
                    if tag: vq.append(tag)
        while fi < len(fill):
            o, c2, tag = fill[fi]; e(o); fi += 1
            if tag: vq.append(tag)
        if ps < 3: a.stamp_mid(min(3, ps+2)) if ps < 2 else None
    last_sd = max(i for i, t in enumerate(vq) if t == 'sd')
    e(f's_waitcnt vmcnt({len(vq) - 1 - last_sd})')
    fin = epi_ops(2); per = (len(fin) + 13) // 14
    for st in range(16):
        c = '0' if st == 0 else 'v[192:195]'
        e(f'{MF} v[192:195], a[{128+8*st}:{131+8*st}], a[{132+8*st}:{135+8*st}], {c}')
        if st >= 2:
            for o, c in fin[(st-2)*per:(st-1)*per]: e(o)
    e('s_nop 7')
    e('v_cvt_pk_bf16_f32 v196, v192, v193\nv_cvt_pk_bf16_f32 v197, v194, v195')
    e(f'buffer_store_dwordx2 v[196:197], v{V_L16}, s[16:19], s64 offen')
    a.endpgm(kidx)
    a.label(f'{name}_end')
    e('s_endpgm')
    a.end(name, 512, 102, 256)
    a.launch(name, 256, 256, 128*PITCH)

if __name__ == '__main__':
    from k0 import k0_kernel
    a = Asm(); a.diag = True
    k0_kernel(a, 'prep_kernel', 0); k1_kernel(a, 'front_kernel', 1)
    open('k01.s','w').write(a.text())
```

```python
import sys
sys.path.insert(0,'dev')
from asmlib import Asm
from layout import *

PITCH = 1040
SLOT = 32 * PITCH
NSLOT = 4
THRESH = 0x41f00000

V_KB=1; V_VB=2; V_KA=3; V_VA=4; V_L16=5; V_L=6
V_MX=8
V_T0=10; V_T1=11; V_T2=12; V_T3=13
S_BUF=[16,32]; NEGM=48; P=56; FR=64; NF=8; Q=128
def fr(f): return FR + 4*(f % NF)
MF='v_mfma_f32_16x16x32_bf16'

def attn16_kernel(a, name, kidx=2, DF=6, W=2, dma=True, stamps=False, barwait='vmcnt(8)', cap=2, pvpack=False, dma_g0=0, dma_step=2):
    a.begin(name)
    e = a.e
    e('s_cmp_ge_u32 s2, 256')
    e(f's_cbranch_scc1 {name}_end')
    a.stamp_begin()
    e('s_load_dwordx2 s[4:5], s[0:1], 88')
    e('s_and_b32 s30, s2, 7\ns_lshr_b32 s31, s2, 3\ns_and_b32 s32, s31, 3\ns_lshr_b32 s31, s31, 2\ns_lshl_b32 s30, s30, 3\ns_add_u32 s30, s30, s31')
    e('s_lshr_b32 s33, s30, 5\ns_and_b32 s34, s30, 31')
    e('v_lshrrev_b32 v9, 6, v0\nv_and_b32 v0, 63, v0\ns_nop 0\nv_readfirstlane_b32 s24, v9')
    e('s_waitcnt lgkmcnt(0)')
    a.srd(8, 4, XA_SZ, XA_OFF); a.srd(12, 4, QF_SZ, QF_OFF); a.srd(16, 4, OP_SZ, OP_OFF); a.srd(20, 4, LP_SZ, LP_OFF)
    e('s_lshl_b32 s35, s34, 2\ns_add_u32 s35, s35, s24\ns_mul_i32 s36, s33, 125\ns_cmp_lt_u32 s35, 125\ns_cselect_b32 s37, 0, 0x4000\ns_add_u32 s35, s35, s36\ns_add_u32 s35, s35, s37')
    e('s_mul_i32 s38, s32, 31\ns_cmp_gt_u32 s32, 0\ns_cselect_b32 s39, 1, 0\ns_add_u32 s38, s38, s39\ns_sub_u32 s26, 32, s39')
    e('s_mul_i32 s25, s33, 4000\ns_lshl_b32 s39, s38, 5\ns_add_u32 s25, s25, s39\ns_lshl_b32 s39, s24, 3\ns_add_u32 s25, s25, s39\ns_lshl_b32 s25, s25, 10')
    e(f's_mul_i32 s27, s24, {8*PITCH}')
    e(f'v_lshlrev_b32 v{V_L16}, 4, v0')
    def dma_m0(r, slotreg, add=0): return f's_add_u32 m0, {slotreg}, {add + r*PITCH - (r&3)*1024}'
    def dma_ld(r):
        so = 's25' if r < 4 else 's29'
        return f'buffer_load_dwordx4 v{V_L16}, s[8:11], {so} offen offset:{(r&3)*1024} lds'
    for t in range(3):
        e(f's_add_u32 s28, s27, {t*SLOT}\ns_add_u32 s29, s25, 4096')
        for r in range(8):
            e(dma_m0(r, 's28')); e('s_nop 0'); e(dma_ld(r))
        e('s_add_u32 s25, s25, 32768')
        if t == 0:
            e('s_lshl_b32 s39, s35, 15')
            for st in range(32):
                if st % 4 == 0 and st: e('s_add_u32 s39, s39, 4096')
                e(f'buffer_load_dwordx4 v[{Q+4*st}:{Q+4*st+3}], v{V_L16}, s[12:15], s39 offen offset:{(st%4)*1024}')
    def qf(step, qt): return Q + 4*(2*step+qt)
    e(f'''v_and_b32 v9, 7, v0
    v_lshlrev_b32 v9, 1, v9
    v_bfe_u32 v10, v0, 3, 1
    v_add_u32 v9, v9, v10
    v_mul_u32_u24 v9, {PITCH}, v9
    v_lshrrev_b32 v10, 4, v0
    v_lshlrev_b32 v10, 8, v10
    v_add_u32 v{V_KB}, v9, v10''')
    e(f'''v_bfe_u32 v9, v0, 2, 3
    v_lshlrev_b32 v9, 1, v9
    v_lshrrev_b32 v10, 5, v0
    v_add_u32 v9, v9, v10
    v_mul_u32_u24 v9, {PITCH}, v9
    v_and_b32 v10, 3, v0
    v_lshlrev_b32 v10, 3, v10
    v_add_u32 v{V_VB}, v9, v10''')
    for i in range(256): e(f'v_accvgpr_write_b32 a{i}, 0')
    e(f'v_mov_b32 v{V_L}, 0\nv_mov_b32 v{V_L+1}, 0')
    e('s_waitcnt vmcnt(8)\ns_barrier')
    a.stamp_mid(0)

    cur = [0]
    def reads(f):
        f0 = f % 64; r = fr(f)
        if f0 < 32:
            sl = (cur[0] + 1 + f // 64) % 4
            step, kt = f0 // 2, f0 % 2
            return [f'ds_read_b128 v[{r}:{r+3}], v{V_KB if sl < 2 else V_KA} offset:{(sl%2)*SLOT + kt*16*PITCH + 16*step}']
        dt = f0 - 32; sl = cur[0] % 4
        return [f'ds_read_b64_tr_b16 v[{r+2*kt}:{r+2*kt+1}], v{V_VB if sl < 2 else V_VA} offset:{(sl%2)*SLOT + kt*16*PITCH + 32*dt}' for kt in range(2)]
    def nreads(f): return 1 if (f % 64) < 32 else 2
    def mfma(n, Snext, first_c):
        f = n // 2; r = fr(f); qt = n % 2
        if n < 64:
            step, kt = f // 2, f % 2
            d = Snext + 8*qt + 4*kt
            c = first_c(qt) if step == 0 else f'v[{d}:{d+3}]'
            return f'{MF} v[{d}:{d+3}], v[{r}:{r+3}], v[{qf(step,qt)}:{qf(step,qt)+3}], {c}'
        dt = f - 32; o = 8*dt + 4*qt
        return f'{MF} a[{o}:{o+3}], v[{r}:{r+3}], v[{P+4*qt}:{P+4*qt+3}], a[{o}:{o+3}]'
    def maxtree(S):
        ops = []
        for qt in range(2):
            b = S + 8*qt; m = V_MX + qt
            ops.append([f'v_max3_f32 v{m}, v{b}, v{b+1}, v{b+2}', f'v_max3_f32 v{m}, v{m}, v{b+3}, v{b+4}',
                        f'v_max3_f32 v{m}, v{m}, v{b+5}, v{b+6}', f'v_max_f32 v{m}, v{m}, v{b+7}'])
        return [x for pair in zip(*ops) for x in pair]
    def xmax(reg):
        e(f'v_mov_b32 v{V_T0}, v{reg}\ns_nop 1\nv_permlane32_swap_b32 v{V_T0}, v{reg}\ns_nop 1\nv_max_f32 v{reg}, v{reg}, v{V_T0}')
        e(f's_nop 0\nv_mov_b32 v{V_T0}, v{reg}\ns_nop 1\nv_permlane16_swap_b32 v{V_T0}, v{reg}\ns_nop 1\nv_max_f32 v{reg}, v{reg}, v{V_T0}')
    def xsum(reg):
        e(f'v_mov_b32 v{V_T0}, v{reg}\ns_nop 1\nv_permlane32_swap_b32 v{V_T0}, v{reg}\ns_nop 1\nv_add_f32 v{reg}, v{reg}, v{V_T0}')
        e(f's_nop 0\nv_mov_b32 v{V_T0}, v{reg}\ns_nop 1\nv_permlane16_swap_b32 v{V_T0}, v{reg}\ns_nop 1\nv_add_f32 v{reg}, v{reg}, v{V_T0}')

    e(f'v_add_u32 v{V_KA}, {2*SLOT}, v{V_KB}\nv_add_u32 v{V_VA}, {2*SLOT}, v{V_VB}')
    cur[0] = -1
    for f in range(DF):
        for o in reads(f): e(o)
    for n in range(64):
        f = n // 2
        if n % 2 == 0: e(f's_waitcnt lgkmcnt({min(DF-1, 31-f)})')
        e(mfma(n, S_BUF[0], lambda qt: '0'))
        if n % 2 == 1 and f + DF < 32:
            for o in reads(f + DF): e(o)
    cur[0] = 0
    for f in range(DF):
        for o in reads(f): e(o)
    e('s_nop 7\ns_nop 7')
    for o in maxtree(S_BUF[0]): e(o)
    for qt in range(2):
        xmax(V_MX+qt)
        for i in range(4): e(f'v_sub_f32 v{NEGM+4*qt+i}, 0, v{V_MX+qt}')
        for i in range(8): e(f'v_sub_f32 v{S_BUF[0]+8*qt+i}, v{S_BUF[0]+8*qt+i}, v{V_MX+qt}')
    e('s_sub_u32 s26, s26, 1')
    e(f's_mov_b32 s45, {THRESH}')

    def softmax_ops(S):
        ops = []
        for k in range(8):
            qt = k // 4
            ops.append((f'v_exp_f32 v{S+2*k}, v{S+2*k}', 2))
            ops.append((f'v_exp_f32 v{S+2*k+1}, v{S+2*k+1}', 2))
            if k:
                kk = k - 1; q2 = kk // 4
                ops.append((f'v_add_f32 v{V_L+q2}, v{V_L+q2}, v{S+2*kk}', 1))
                ops.append((f'v_cvt_pk_bf16_f32 v{P+kk}, v{S+2*kk}, v{S+2*kk+1}', 1))
                ops.append((f'v_add_f32 v{V_L+q2}, v{V_L+q2}, v{S+2*kk+1}', 1))
        kk = 7
        ops.append(('s_nop 0', 1))
        ops.append((f'v_add_f32 v{V_L+1}, v{V_L+1}, v{S+2*kk}', 1))
        ops.append((f'v_cvt_pk_bf16_f32 v{P+kk}, v{S+2*kk}, v{S+2*kk+1}', 1))
        ops.append((f'v_add_f32 v{V_L+1}, v{V_L+1}, v{S+2*kk+1}', 1))
        return ops

    def body(jm):
        par = jm % 2; cur[0] = jm
        Scur, Snext = S_BUF[par], S_BUF[1-par]
        gap = [[] for _ in range(128)]
        used = [0]*128
        def put(n, op, cost=1):
            gap[n].append(op); used[n] += cost
        def fit(lo, cost, hi=127):
            n = lo
            while used[n] + cost > cap and n < hi: n += 1
            return n
        for g in range(32):
            f = 2*g + DF
            if f == 64:
                put(4*g, f's_waitcnt {barwait}'); put(4*g, 's_barrier')
                put(4*g+1, reads(f)[0]); put(4*g+1, reads(f+1)[0])
            elif nreads(f) == 1:
                put(4*g, reads(f)[0]); put(4*g, reads(f+1)[0])
            elif g < 16 or pvpack:
                for o in reads(f): put(4*g, o)
                for o in reads(f+1): put(4*g+2, o)
            else:
                for i, o in enumerate(reads(f) + reads(f+1)): put(4*g+i, o)
        waits = {}
        for f in range(0, 64, W):
            cnt = sum(nreads(x) for x in range(f + W, f + DF))
            waits[2*f] = cnt
            used[(2*f - 1) % 128] += 1
        n = 1; epos = []
        dpos = []
        if dma:
            for r in range(8):
                g = dma_g0 + r*dma_step
                m = fit(4*g+3, 1); put(m, dma_m0(r, 's27', ((jm+3)%4)*SLOT))
                l = fit(m+1, 1); put(l, dma_ld(r)); dpos.append(l)
        for k in range(16):
            n = fit(n, 2); put(n, f'v_exp_f32 v{Scur+k}, v{Scur+k}', 2); epos.append(n)
        for k in range(8):
            n = fit(epos[2*k+1]+1, 1); put(n, f'v_cvt_pk_bf16_f32 v{P+k}, v{Scur+2*k}, v{Scur+2*k+1}')
            assert n <= 61, n
        def place(ops, lo):
            n = lo
            for op in ops:
                c = op.count('\n') + 1
                n = fit(n, c); put(n, op, c)
            return n
        n = place([f'v_add_f32 v{V_L+(k%2)}, v{V_L+(k%2)}, v{Scur+8*(k%2)+k//2}' for k in range(16)], max(epos)+1)
        place(['s_add_u32 s25, s25, 32768','s_add_u32 s29, s25, 4096'], max([76]+[x+1 for x in dpos]))
        n = place(maxtree(Snext) + [f'v_max_f32 v{V_T3}, v{V_MX}, v{V_MX+1}', f'v_cmp_lt_f32 vcc, s45, v{V_T3}'], 72)
        assert n <= 125
        for n in range(128):
            if n in waits: e(f's_waitcnt lgkmcnt({waits[n]})')
            e(mfma(n, Snext, lambda qt: f'v[{NEGM+4*qt}:{NEGM+4*qt+3}]'))
            for o in gap[n]: e(o)
        return used

    def rescale(par, lbl, back):
        Snext = S_BUF[1-par]
        a.label(lbl)
        e('s_nop 7\ns_nop 7')
        for qt in range(2):
            e(f'v_max_f32 v{V_MX+qt}, 0, v{V_MX+qt}\ns_nop 0')
            xmax(V_MX+qt)
            for i in range(4): e(f'v_sub_f32 v{NEGM+4*qt+i}, v{NEGM+4*qt+i}, v{V_MX+qt}')
            for i in range(8): e(f'v_sub_f32 v{Snext+8*qt+i}, v{Snext+8*qt+i}, v{V_MX+qt}')
            e(f'v_sub_f32 v{V_MX+qt}, 0, v{V_MX+qt}\nv_exp_f32 v{V_MX+qt}, v{V_MX+qt}\ns_nop 0')
            e(f'v_mul_f32 v{V_L+qt}, v{V_L+qt}, v{V_MX+qt}')
        for i in range(0, 256, 2):
            qt = (i // 4) % 2
            e(f'v_accvgpr_read_b32 v{V_T1}, a{i}\nv_accvgpr_read_b32 v{V_T2}, a{i+1}\nv_mul_f32 v{V_T1}, v{V_T1}, v{V_MX+qt}\nv_mul_f32 v{V_T2}, v{V_T2}, v{V_MX+qt}')
            e(f'v_accvgpr_write_b32 a{i}, v{V_T1}\nv_accvgpr_write_b32 a{i+1}, v{V_T2}')
        e('s_nop 3')
        if back: e(f's_branch {back}')

    def tail(jm):
        par = jm % 2; cur[0] = jm
        Scur = S_BUF[par]
        e('s_waitcnt lgkmcnt(0)')
        for f in range(32, 32 + DF):
            for o in reads(f): e(o)
        for o, c in softmax_ops(Scur): e(o)
        e('s_nop 1')
        for n in range(64, 128):
            f = n // 2
            if n % 2 == 0: e(f's_waitcnt lgkmcnt({sum(nreads(m) for m in range(f+1, min(f+DF,64)))})')
            e(mfma(n, 0, None))
            if f + DF < 64: e(reads(f + DF)[n % 2])
        e(f's_branch {name}_epi')

    e('s_add_u32 s29, s25, 4096')
    a.label(f'{name}_L0')
    for jm in range(4):
        if jm == 2: e(f's_cmp_eq_u32 s26, 2\ns_cbranch_scc1 {name}_tail2')
        if jm == 3: e(f's_cmp_eq_u32 s26, 3\ns_cbranch_scc1 {name}_tail3')
        used = body(jm)
        e(f's_cbranch_vccnz {name}_R{jm}')
        a.label(f'{name}_B{jm}')
    e(f's_sub_u32 s26, s26, 4\ns_branch {name}_L0')
    for par in range(2):
        for jm in (par, par+2):
            a.label(f'{name}_R{jm}')
            e(f's_mov_b32 s49, {jm}')
            if jm == par: e(f's_branch {name}_RB{par}')
        rescale(par, f'{name}_RB{par}', None)
        e(f's_cmp_eq_u32 s49, {par}\ns_cbranch_scc1 {name}_B{par}\ns_branch {name}_B{par+2}')
    a.label(f'{name}_tail2'); tail(2)
    a.label(f'{name}_tail3'); tail(3)
    a.label(f'{name}_epi')
    a.stamp_mid(1)
    e('s_mul_i32 s39, s32, 250\ns_add_u32 s39, s39, s35\ns_lshl_b32 s48, s39, 7\ns_lshl_b32 s39, s39, 15')
    e(f'v_and_b32 v{V_T2}, 15, v0\nv_lshlrev_b32 v{V_T2}, 2, v{V_T2}')
    for qt in range(2):
        xsum(V_L+qt)
        e(f'v_log_f32 v{V_T1}, v{V_L+qt}\nv_rcp_f32 v{V_L+qt}, v{V_L+qt}\nv_sub_f32 v{V_MX+qt}, v{V_T1}, v{NEGM+4*qt}')
        e(f'buffer_store_dword v{V_MX+qt}, v{V_T2}, s[20:23], s48 offen offset:{64*qt}')
    e('s_nop 7\ns_nop 7')
    for fidx in range(32):
        u, qt = fidx // 2, fidx % 2
        base = 16 + (fidx % 8) * 12
        for j in range(8): e(f'v_accvgpr_read_b32 v{base+j}, a{16*u + 8*(j//4) + 4*qt + j%4}')
        for j in range(8): e(f'v_mul_f32 v{base+j}, v{base+j}, v{V_L+qt}')
        for j in range(4): e(f'v_cvt_pk_bf16_f32 v{base+8+j}, v{base+2*j}, v{base+2*j+1}')
        if fidx % 4 == 0 and fidx: e('s_add_u32 s39, s39, 4096')
        e(f'buffer_store_dwordx4 v[{base+8}:{base+11}], v{V_L16}, s[16:19], s39 offen offset:{(fidx%4)*1024}')
    a.endpgm(kidx)
    a.label(f'{name}_end')
    e('s_endpgm')
    a.end(name, 512, 102, 256)
    a.launch(name, 256, 256, NSLOT*SLOT)
    return used
```

```python
import sys
sys.path.insert(0,'dev')
from asmlib import Asm
from layout import *
from k1 import decode_wg, f2u
MF='v_mfma_f32_16x16x32_bf16'
PITCH = 1040
UC_L = 64*PITCH
OC_L = UC_L + 32768

class VQ:
    def __init__(s, e): s.e = e; s.q = []; s.done = 0
    def issue(s, op, tag):
        if len(s.q) - s.done >= 63:
            s.e('s_waitcnt vmcnt(62)'); s.done = len(s.q) - 62
        s.e(op); s.q.append(tag)
    def need(s, tag):
        i = max(k for k, t in enumerate(s.q) if t == tag)
        if i < s.done: return None
        s.done = i + 1
        return f'vmcnt({len(s.q) - 1 - i})'
    def wait(s, tag, extra=''):
        w = s.need(tag)
        if w or extra: s.e(('s_waitcnt ' + (w or '') + ' ' + extra).strip())

V_L16=1; V_GW=2; V_CB=3; V_XO=4; V_T=5
V_LS=8
SEL=16
V_A=24
FR=32
V_G=64
V_DW=128
V_U=192
V_X=224

def k3_kernel(a, name, kidx=3):
    e = a.e
    a.begin(name)
    e(f's_cmp_ge_u32 s2, 256\ns_cbranch_scc1 {name}_end')
    a.stamp_begin()
    e('s_load_dwordx2 s[4:5], s[0:1], 88\ns_load_dwordx2 s[6:7], s[0:1], 0\ns_load_dwordx2 s[26:27], s[0:1], 72')
    decode_wg(e)
    e('s_lshl_b32 s35, s34, 2\ns_add_u32 s35, s35, s32')
    e(f's_cmp_ge_u32 s35, 125\ns_cbranch_scc1 {name}_end')
    e(f'v_lshlrev_b32 v{V_L16}, 4, v0')
    e('s_mul_i32 s36, s33, 125\ns_add_u32 s36, s36, s35')
    e('s_waitcnt lgkmcnt(0)')
    a.srd(8, 4, WS_SZ)
    e(f's_mul_i32 s37, s33, 4096000\ns_add_u32 s37, s37, {GF_OFF}\ns_add_u32 s12, s4, s37\ns_addc_u32 s13, s5, 0\ns_mov_b32 s14, 4096000\ns_mov_b32 s15, 0x20000')
    a.srd(16, 6, XA_SZ); a.srd(20, 26, XA_SZ)
    vq = VQ(e)
    e('s_lshl_b32 s38, s35, 1\ns_add_u32 s38, s38, s24\ns_sub_u32 s38, s38, 1\ns_and_b32 s38, s38, 0xffff\ns_lshl_b32 s38, s38, 14')
    for p in range(16):
        if p % 4 == 0 and p: e('s_add_u32 s38, s38, 4096')
        vq.issue(f'buffer_load_dwordx4 v[{V_G+4*p}:{V_G+4*p+3}], v{V_L16}, s[12:15], s38 offen offset:{1024*(p%4)}', 'g')
    e(f's_lshl_b32 s38, s24, 14\ns_add_u32 s38, s38, {DW_OFF}')
    for i in range(16):
        if i % 4 == 0 and i: e('s_add_u32 s38, s38, 4096')
        vq.issue(f'buffer_load_dwordx4 v[{V_DW+4*i}:{V_DW+4*i+3}], v{V_L16}, s[8:11], s38 offen offset:{1024*(i%4)}', f'dw{i//2}')
    e(f's_lshl_b32 s38, s36, 15\ns_lshl_b32 s39, s24, 12\ns_add_u32 s38, s38, s39\ns_add_u32 s38, s38, {UF_OFF}\ns_add_u32 s39, s38, 16384')
    for pl in range(4):
        for tt in range(2):
            r = V_U + 8*pl + 4*tt
            vq.issue(f'buffer_load_dwordx4 v[{r}:{r+3}], v{V_L16}, s[8:11], s{38+tt} offen offset:{1024*pl}', 'u')
    e(f'v_and_b32 v{V_T}, 15, v0\nv_lshrrev_b32 v{V_T+1}, 4, v0\nv_lshlrev_b32 v{V_T+2}, 2, v{V_T}')
    e(f's_lshl_b32 s38, s36, 7\ns_add_u32 s38, s38, {LP_OFF}')
    for s in range(4):
        for qt in range(2):
            vq.issue(f'buffer_load_dword v{V_LS+2*s+qt}, v{V_T+2}, s[8:11], s38 offen offset:{64*qt}', 'L')
        e('s_add_u32 s38, s38, 32000')
    e(f's_lshl_b32 s40, s24, 17\ns_add_u32 s40, s40, {WF_OFF}')
    wn = [0]
    def wload():
        i = wn[0]
        if i >= 256: return
        wn[0] += 1
        if i % 4 == 0: e(f's_add_u32 s41, s40, {(i>>7)*524288 + ((i&127)//4)*4096}')
        r = 4*(i % 64)
        vq.issue(f'buffer_load_dwordx4 a[{r}:{r+3}], v{V_L16}, s[8:11], s41 offen offset:{1024*(i%4)}', f'w{i}')
    for _ in range(15): wload()
    m, G = V_T, V_T+1
    e(f's_lshl_b32 s38, s24, 4\nv_add_u32 v{V_GW}, s38, v{m}\nv_mul_u32_u24 v{V_GW}, {PITCH}, v{V_GW}\nv_lshl_add_u32 v{V_GW}, v{G}, 4, v{V_GW}')
    e(f'v_and_b32 v{V_CB}, 1, v{G}\nv_add3_u32 v{V_CB}, v{V_CB}, v{m}, 1\nv_mul_u32_u24 v{V_CB}, {PITCH}, v{V_CB}\nv_lshrrev_b32 v{V_T+2}, 1, v{G}\nv_lshl_add_u32 v{V_CB}, v{V_T+2}, 4, v{V_CB}\ns_lshl_b32 s38, s24, 8\nv_add_u32 v{V_CB}, s38, v{V_CB}')
    e(f'v_lshlrev_b32 v{V_XO}, 10, v{m}\nv_lshl_add_u32 v{V_XO}, v{G}, 4, v{V_XO}\nv_add_u32 v{V_XO}, s38, v{V_XO}')
    t0, t1, t2 = V_X, V_X+1, V_X+2
    e(f'v_lshrrev_b32 v{t0}, 3, v{m}\nv_cmp_eq_u32 vcc, v{t0}, v{V_T+2}\nv_bfe_u32 v{t0}, v{m}, 1, 2\ns_nop 0\nv_cndmask_b32 v{t0}, 8, v{t0}, vcc')
    e(f'v_and_b32 v{t1}, 1, v{m}\nv_cmp_eq_u32 vcc, 1, v{t1}')
    for par in range(2):
        bsel = 0x0302 if par else 0x0100
        e(f'v_mov_b32 v{t1}, {0x0c0c0000 | bsel}\nv_mov_b32 v{t2}, {(bsel << 16) | 0x0c0c}\nv_cndmask_b32 v{V_X+3+par}, v{t1}, v{t2}, vcc')
    e(f'v_mov_b32 v{t1}, 0x0c0c0c0c')
    for r in range(4):
        e(f'v_cmp_eq_u32 vcc, {r}, v{t0}\ns_nop 1')
        for par in range(2): e(f'v_cndmask_b32 v{SEL+4*par+r}, v{t1}, v{V_X+3+par}, vcc')
    vq.wait('g')
    a.stamp_mid(0)
    e(f's_mov_b32 s42, 0x3f803f80\ns_mov_b32 s43, 0xffff0000\ns_mov_b32 s44, {f2u(1/512)}')
    S = [V_X+8+i for i in range(4)]
    for i in range(4): e(f'v_mov_b32 v{S[i]}, 0')
    for i in range(64):
        e(f'v_dot2_f32_bf16 v{S[i%2]}, v{V_G+i}, s42, v{S[i%2]}')
        e(f'v_dot2_f32_bf16 v{S[2+i%2]}, v{V_G+i}, v{V_G+i}, v{S[2+i%2]}')
        if i % 8 == 7: wload()
    e('s_nop 2')
    e(f'v_add_f32 v{S[0]}, v{S[0]}, v{S[1]}\nv_add_f32 v{S[2]}, v{S[2]}, v{S[3]}')
    for sw in ('16', '32'):
        e(f'v_mov_b32 v{S[1]}, v{S[0]}\nv_mov_b32 v{S[3]}, v{S[2]}\ns_nop 1')
        e(f'v_permlane{sw}_swap_b32 v{S[1]}, v{S[0]}\nv_permlane{sw}_swap_b32 v{S[3]}, v{S[2]}\ns_nop 0')
        e(f'v_add_f32 v{S[0]}, v{S[0]}, v{S[1]}\nv_add_f32 v{S[2]}, v{S[2]}, v{S[3]}')
    e(f'v_mul_f32 v{S[0]}, s44, v{S[0]}\nv_mul_f32 v{S[2]}, s44, v{S[2]}\nv_fma_f32 v{S[2]}, -v{S[0]}, v{S[0]}, v{S[2]}\nv_max_f32 v{S[2]}, 0, v{S[2]}')
    e(f'v_add_f32 v{S[2]}, {f2u(1e-5)}, v{S[2]}\nv_rsq_f32 v{S[2]}, v{S[2]}\ns_nop 0\nv_mul_f32 v{S[0]}, -v{S[0]}, v{S[2]}')
    for p in range(16):
        tb = V_X + 16 + 8*(p % 2)
        for k in range(4):
            e(f'v_lshlrev_b32 v{tb+2*k}, 16, v{V_G+4*p+k}\nv_and_b32 v{tb+2*k+1}, s43, v{V_G+4*p+k}')
        for j in range(8): e(f'v_fma_f32 v{tb+j}, v{tb+j}, v{S[2]}, v{S[0]}')
        for k in range(4): e(f'v_cvt_pk_bf16_f32 v{V_G+4*p+k}, v{tb+2*k}, v{tb+2*k+1}')
        e(f'ds_write_b128 v{V_GW}, v[{V_G+4*p}:{V_G+4*p+3}] offset:{64*p}')
        wload()
    e('s_waitcnt lgkmcnt(0)\ns_barrier')
    a.stamp_mid(1)
    DFc = 6
    seq = [(c, ip, tt) for c in range(8) for ip in range(16) for tt in range(2)]
    def crd(n):
        c, ip, tt = seq[n]; r = FR + 4*(n % 8)
        e(f'ds_read_b128 v[{r}:{r+3}], v{V_CB} offset:{2*(ip+8*tt)*PITCH + 32*c}')
    def abuild(k, lo, hi):
        c, ip = k // 16, k % 16
        src = V_DW + 8*c + ip // 2
        for r in range(lo, hi): e(f'v_perm_b32 v{V_A+4*(k%2)+r}, v{src}, v{src}, v{SEL+4*(ip%2)+r}')
    for n in range(DFc): crd(n)
    vq.wait('dw0'); abuild(0, 0, 4); e('s_nop 1')
    for n in range(256):
        c, ip, tt = seq[n]; k = n // 2
        if n % 2 == 0:
            w = vq.need(f'dw{(k+1)//16}') if k + 1 < 128 else None
            e(f's_waitcnt lgkmcnt({max(0, min(n+DFc,256) - (n+2))}) ' + (w or ''))
        d = V_G + 8*c + 4*tt; r = FR + 4*(n % 8); A = V_A + 4*(k % 2)
        cc = '0' if ip == 0 else f'v[{d}:{d+3}]'
        e(f'{MF} v[{d}:{d+3}], v[{A}:{A+3}], v[{r}:{r+3}], {cc}')
        if k + 1 < 128: abuild(k+1, 3*tt if tt else 0, 3 if tt == 0 else 4)
        if n + DFc < 256: crd(n + DFc)
        else: e('s_nop 0')
        if n % 8 == 1 and wn[0] < 64: wload()
    vq.wait('u')
    e('s_nop 7')
    for pl in range(4):
        for tt in range(2):
            ur = V_U + 8*pl + 4*tt; tb = V_X + 16 + 8*tt
            for k in range(4):
                e(f'v_lshlrev_b32 v{tb+2*k}, 16, v{ur+k}\nv_and_b32 v{tb+2*k+1}, s43, v{ur+k}')
            for j in range(8): e(f'v_mul_f32 v{tb+j}, v{tb+j}, v{V_G + 8*(2*pl + j//4) + 4*tt + j%4}')
            for k in range(4): e(f'v_cvt_pk_bf16_f32 v{ur+k}, v{tb+2*k}, v{tb+2*k+1}')
    e(f's_lshl_b32 s38, s24, 13\nv_add_u32 v{V_GW}, s38, v{V_L16}')
    e(f'v_add_u32 v{V_CB}, {UC_L}, v{V_L16}\nv_add_u32 v{V_GW}, {UC_L}, v{V_GW}')
    for i in range(8): e(f'ds_write_b128 v{V_GW}, v[{V_U+4*i}:{V_U+4*i+3}] offset:{1024*i}')
    vq.wait('L')
    for qt in range(2):
        L = [V_LS + 2*s + qt for s in range(4)]; t = V_X + qt
        e(f'v_max3_f32 v{t}, v{L[0]}, v{L[1]}, v{L[2]}\nv_max_f32 v{t}, v{t}, v{L[3]}')
        for x in L: e(f'v_sub_f32 v{x}, v{x}, v{t}')
        for x in L: e(f'v_exp_f32 v{x}, v{x}')
        e(f's_nop 0\nv_add_f32 v{t}, v{L[0]}, v{L[1]}\nv_add_f32 v{t}, v{t}, v{L[2]}\nv_add_f32 v{t}, v{t}, v{L[3]}\nv_rcp_f32 v{t}, v{t}\ns_nop 0')
        for x in L: e(f'v_mul_f32 v{x}, v{x}, v{t}')
    e('s_waitcnt lgkmcnt(0)\ns_barrier')
    a.stamp_mid(2)
    ACC = 192
    e(f's_lshl_b32 s45, s36, 15\ns_lshl_b32 s38, s24, 13\ns_add_u32 s45, s45, s38\ns_add_u32 s45, s45, {OP_OFF}')
    pn = [0]
    def pload():
        k = pn[0]
        if k >= 32: return
        pn[0] += 1
        i, s = k // 4, k % 4
        e(f's_add_u32 s46, s45, {s*250*32768 + (i//4)*4096}')
        r = 64 + 32*s + 4*i
        vq.issue(f'buffer_load_dwordx4 v[{r}:{r+3}], v{V_L16}, s[8:11], s46 offen offset:{1024*(i%4)}', f'p{i}')
    xn = [0]
    def xload():
        k = xn[0]
        if k >= 8: return
        xn[0] += 1
        P, tt = k // 2, k % 2
        r = 64 + 4*k
        vq.issue(f'buffer_load_dwordx4 v[{r}:{r+3}], v{V_XO}, s[16:19], s{47+tt} offen offset:{64*P}', 'x')
    e('s_lshl_b32 s47, s36, 15\ns_add_u32 s48, s47, 16384')
    def gemm(half, extra):
        def brd(p):
            for tt in range(2):
                r = FR + 8*(p % 4) + 4*tt
                e(f'ds_read_b128 v[{r}:{r+3}], v{V_CB} offset:{half*32768 + 2048*p + 1024*tt}')
        brd(0); brd(1)
        for p in range(16):
            for e8 in range(8):
                i = 128*half + 8*p + e8
                w = vq.need(f'w{i}')
                l = f'lgkmcnt({2 if p < 15 else 0})' if e8 == 0 else ''
                if w or l: e(f's_waitcnt {w or ""} {l}')
                for tt in range(2):
                    d = ACC + 8*e8 + 4*tt; A = 4*(i % 64); Bq = FR + 8*(p % 4) + 4*tt
                    cc = '0' if (half == 0 and p == 0) else f'v[{d}:{d+3}]'
                    e(f'{MF} v[{d}:{d+3}], a[{A}:{A+3}], v[{Bq}:{Bq+3}], {cc}')
                wload()
                if e8 == 0 and p + 2 < 16: brd(p+2)
                extra(p, e8)
    gemm(0, lambda p, e8: pload() if e8 % 2 == 1 and p >= 4 else None)
    a.stamp_mid(3)
    for i in range(8):
        vq.wait(f'p{i}')
        qt = i % 2; tb = 16; ac = 24 + 0
        for s in range(4):
            src = 64 + 32*s + 4*i
            for k in range(4):
                e(f'v_lshlrev_b32 v{tb+2*k}, 16, v{src+k}\nv_and_b32 v{tb+2*k+1}, s43, v{src+k}')
            for j in range(8):
                if s == 0: e(f'v_mul_f32 v{ac+j}, v{tb+j}, v{V_LS+qt}')
                else: e(f'v_fmac_f32 v{ac+j}, v{tb+j}, v{V_LS+2*s+qt}')
        o = 64 + 4*i
        for k in range(4): e(f'v_cvt_pk_bf16_f32 v{o+k}, v{ac+2*k}, v{ac+2*k+1}')
        e(f'ds_write_b128 v{V_GW}, v[{o}:{o+3}] offset:{32768 + 1024*i}')
    e('s_waitcnt lgkmcnt(0)\ns_barrier')
    gemm(1, lambda p, e8: xload() if p == 8 else None)
    vq.wait('x')
    e('s_nop 7')
    for k in range(8):
        P, tt = k // 2, k % 2; xr = 64 + 4*k; tb = 16 + 8*(k % 2)
        for q in range(4):
            e(f'v_lshlrev_b32 v{tb+2*q}, 16, v{xr+q}\nv_and_b32 v{tb+2*q+1}, s43, v{xr+q}')
        for j in range(8): e(f'v_add_f32 v{tb+j}, v{tb+j}, v{ACC + 8*(2*P + j//4) + 4*tt + j%4}')
        for q in range(4): e(f'v_cvt_pk_bf16_f32 v{xr+q}, v{tb+2*q}, v{tb+2*q+1}')
        e(f'buffer_store_dwordx4 v[{xr}:{xr+3}], v{V_XO}, s[20:23], s{47+tt} offen offset:{64*P}')
    a.endpgm(kidx)
    a.label(f'{name}_end')
    e('s_endpgm')
    a.end(name, 512, 102, 256)
    a.launch(name, 256, 256, OC_L + 32768)
```

```python
T = 4000; B = 2; D = 512; ROWS = 8000
XA_OFF   = 0
XA_SZ    = ROWS * 1024
QF_OFF   = 0x0080_0000
QF_SZ    = 250 * 32768
OP_OFF   = 0x0100_0000
OP_SZ    = 4 * 250 * 32768
LP_OFF   = 0x0300_0000
LP_SZ    = 4 * 250 * 256
UF_OFF   = 0x0380_0000
GF_OFF   = 0x0400_0000
UG_SZ    = 500 * 16384
WA_OFF   = 0x0480_0000
WA_SZ    = 3 * 16 * 32768
W1_OFF   = 0x04A0_0000
W1_SZ    = 32 * 16 * 1024
WF_OFF   = 0x04B0_0000
WF_SZ    = 2 * 4 * 16 * 8 * 1024
DW_OFF   = 0x04C0_0000
DW_SZ    = 32 * 2048
FLAG_OFF = 0x04D0_0000
STAMP_OFF = 0x0F00_0000
WS_SZ = 268435456
FA_REL = 0; FB_REL = 4096; FC_REL = 8192; FLAG_SZ = 8192 + 250*64
WV_OFF = 0x04A8_0000
```

```python
import sys
sys.path.insert(0,'dev')
from asmlib import Asm
from k0 import k0_kernel
from k1 import k1_kernel
from k2 import attn16_kernel
from k3 import k3_kernel
HDR = open('standalone__conformer_family_branchformer__speech.s.ref').read().split('; Override launch')[0].rstrip()
def build(diag):
    a = Asm(); a.diag = diag
    k0_kernel(a, 'prep_kernel', 0); k1_kernel(a, 'front_kernel', 1); attn16_kernel(a, 'attn_kernel', 2); k3_kernel(a, 'final_kernel', 3)
    return a.text(HDR)
if __name__ == '__main__':
    open('full_diag.s','w').write(build(True))
    open('standalone__conformer_family_branchformer__speech.s','w').write(build(False))
```

```python
import re
V32 = ('v_mul_f32','v_add_f32','v_sub_f32','v_max_f32','v_min_f32','v_exp_f32','v_rcp_f32','v_rsq_f32','v_log_f32','v_mov_b32','v_and_b32','v_or_b32','v_xor_b32',
       'v_lshlrev_b32','v_lshrrev_b32','v_add_u32','v_sub_u32','v_fmac_f32','v_cmp_lt_f32','v_cmp_ne_u32','v_cmp_eq_u32','v_cndmask_b32','v_mul_u32_u24','v_min_u32','v_cmp_gt_u32')
INL = set(str(i) for i in range(-16,65)) | {'0.5','1.0','2.0','4.0','-0.5','-1.0','-2.0','-4.0'}
def is_lit(tok):
    tok = tok.strip()
    if re.fullmatch(r'-?(v|s|a)\d+|-?(v|s|a)\[\d+:\d+\]|vcc|exec|m0|off|scc', tok): return False
    if tok in INL: return False
    if re.fullmatch(r'0x[0-9a-fA-F]+', tok): return not (int(tok,16) <= 64)
    return True
def info(line):
    l = line.split(';')[0].strip()
    if not l or l.endswith(':') or l.startswith('.'): return None
    parts = l.split(None, 1); op = parts[0]; args = parts[1].split(',') if len(parts) > 1 else []
    if op.startswith('s_'):
        if op.startswith(('s_load','s_memtime','s_memrealtime')): return (8, False)
        if op.startswith(('s_waitcnt','s_nop','s_barrier','s_branch','s_cbranch','s_endpgm','s_sleep','s_setprio','s_getpc','s_getreg')): return (4, False)
        return (8 if any(is_lit(x) for x in args) else 4, False)
    if op.endswith('_dpp') or op.endswith('_e64'): return (8, False)
    if op in V32:
        if any(is_lit(x) for x in args): return (8, False)
        if any(x.strip().startswith('-') and not x.strip() in INL for x in args): return (8, False)
        return (4, True)
    if op in ('v_readfirstlane_b32','v_permlane32_swap_b32','v_permlane16_swap_b32','v_nop'): return (4, False)
    return (8, False)
def align(lines, pad=False):
    out = list(lines); off = 0; run = []
    mis = 0; res = []
    for l in lines:
        if l.startswith('.p2align'): off = 0; run = []; res.append(l); continue
        inf = info(l)
        if inf is None:
            res.append(l); continue
        sz, wid = inf
        if sz == 4:
            run.append((len(res), off, wid)); off += 4; res.append(l)
        else:
            if off % 8:
                c = [r for r in run if r[2]]
                if c:
                    al = [r for r in c if r[1] % 8 == 0]
                    k = (al or c)[-1][0]
                    p = res[k].split(None, 1)
                    res[k] = p[0] + '_e64 ' + p[1]; off += 4
                elif pad and run:
                    res.append('s_nop 0'); off += 4
                else: mis += 1
            run = []; off += 8; res.append(l)
    return res, mis
if __name__ == '__main__':
    import subprocess, sys
    src = open(sys.argv[1]).read().split('\n')
    subprocess.run(['clang','-x','assembler','-target','amdgcn-amd-amdhsa','-mcpu=gfx950','-c',sys.argv[1],'-o','al.o'],check=True)
    d = subprocess.run(['llvm-objdump','-d','--mcpu=gfx950','al.o'],capture_output=True,text=True).stdout.split('\n')
    ins = [(l.split('//')[0].strip(), len(l.split(':')[-1].split())*4, int(l.split('//')[1].split(':')[0],16)) for l in d if '//' in l]
    k = 0; bad = 0; mis = 0
    for l in src:
        if l.startswith('.section'): break
        if l.startswith('.p2align 8'):
            while ins[k][2] % 256: k += 1
        inf = info(l)
        if inf is None: continue
        if inf[0] != ins[k][1]:
            bad += 1
            if bad < 20: print('SIZE MISMATCH', l, '|', ins[k])
        if ins[k][1] == 8 and ins[k][2] % 8: mis += 1
        k += 1
    print('checked', k, 'bad', bad, 'misaligned 8B', mis)
```

```python
import re
class Asm:
    def __init__(self):
        self.lines = []
        self.kernels = []
        self.launches = []
        self.uid = 0
    def e(self, s=''):
        for l in s.split('\n'):
            m = re.search(r'offset:(\d+)', l)
            if m:
                lim = 4095 if l.strip().startswith('buffer') else 65535
                assert int(m.group(1)) <= lim, l
            self.lines.append(l.strip())
    def label(self, name):
        self.lines.append(name + ':')
    def newlabel(self, p='L'):
        self.uid += 1
        return f'{p}_{self.uid}'
    def begin(self, name):
        self.lines += ['.text', f'.globl {name}', '.p2align 8', f'.type {name},@function', f'{name}:']
    def end(self, name, vgpr, sgpr=102, accum=None):
        if accum is None: accum = min(256, (vgpr + 3) // 4 * 4)
        self.kernels.append((name, vgpr, sgpr, accum))
    def launch(self, name, grid, block, lds):
        self.launches.append(f'; @launch kernel={name} grid=({grid},1,1) block=({block},1,1) lds={lds}')
    def text(self, header=''):
        out = [header] if header else []
        out += self.launches
        out.append('.amdgcn_target "amdgcn-amd-amdhsa--gfx950"')
        from align import align
        body, self.mis = align(self.lines, self.pad) if self.do_align else (self.lines, -1)
        out += body
        out.append('.section .rodata,"a"')
        for name, v, s, a in self.kernels:
            out += ['.p2align 6', f'.amdhsa_kernel {name}',
                    f'  .amdhsa_next_free_vgpr {v}', f'  .amdhsa_next_free_sgpr {s}', f'  .amdhsa_accum_offset {a}',
                    '  .amdhsa_group_segment_fixed_size 0', '  .amdhsa_kernarg_size 96', '  .amdhsa_user_sgpr_count 2',
                    '  .amdhsa_user_sgpr_kernarg_segment_ptr 1', '  .amdhsa_system_sgpr_workgroup_id_x 1',
                    '.end_amdhsa_kernel']
        return '\n'.join(out) + '\n'
    def srd(self, d, base, nbytes, off=0):
        if off:
            self.e(f's_add_u32 s{d}, s{base}, {off & 0xffffffff}')
            self.e(f's_addc_u32 s{d+1}, s{base+1}, {off >> 32}')
        else:
            self.e(f's_mov_b32 s{d}, s{base}')
            self.e(f's_mov_b32 s{d+1}, s{base+1}')
        self.e(f's_mov_b32 s{d+2}, {nbytes}')
        self.e(f's_mov_b32 s{d+3}, 0x00020000')

    diag = False
    def stamp_begin(self):
        if self.diag:
            self.e('s_memrealtime s[96:97]\ns_memtime s[98:99]\ns_mov_b32 s95, s2\nv_lshrrev_b32 v1, 6, v0\ns_nop 1\nv_readfirstlane_b32 s94, v1\ns_waitcnt lgkmcnt(0)')
    def stamp_mid(self, i):
        if self.diag:
            self.e(f's_memtime s[{76+2*i}:{77+2*i}]')
    def touch_code(self, lo, hi, sreg, vtmp, vdst, wave_sreg, n, lane='v0', issue=None):
        e = self.e
        here = self.newlabel('pc')
        e(f's_getpc_b64 s[{sreg}:{sreg+1}]')
        self.label(here)
        e(f's_add_u32 s{sreg}, s{sreg}, {lo}-{here}\ns_addc_u32 s{sreg+1}, s{sreg+1}, ({lo}-{here})>>32')
        e(f's_mul_i32 s{sreg+2}, s{wave_sreg}, {n*8192}')
        e(f'v_lshlrev_b32 v{vtmp}, 7, {lane}\nv_add_u32 v{vtmp}, s{sreg+2}, v{vtmp}')
        for k in range(n):
            e(f'v_min_u32 v{vtmp+1}, {hi}-{lo}-4, v{vtmp}')
            op = f'global_load_dword v{vdst}, v{vtmp+1}, s[{sreg}:{sreg+1}]'
            if issue: issue(op)
            else: e(op)
            if k + 1 < n: e(f'v_add_u32 v{vtmp}, 8192, v{vtmp}')
    marks = []
    do_align = True
    pad = False
    def mark(self, nm):
        if nm in self.marks: self.stamp_mid(self.marks.index(nm))
    def endpgm(self, kidx):
        if self.diag:
            from layout import STAMP_OFF
            e = self.e
            e('s_waitcnt vmcnt(0) lgkmcnt(0)\ns_memrealtime s[92:93]\ns_memtime s[100:101]\ns_load_dwordx2 s[6:7], s[0:1], 88\ns_waitcnt lgkmcnt(0)')
            self.srd(8, 6, 1<<20, STAMP_OFF + kidx*(1<<20))
            e('s_mov_b64 exec, -1')
            e('v_mov_b32 v8, s96\nv_mov_b32 v9, s92\ns_sub_u32 s100, s100, s98\nv_mov_b32 v10, s100\nv_mov_b32 v11, 0')
            for i in range(8):
                e(f's_sub_u32 s{76+2*i}, s{76+2*i}, s98\nv_mov_b32 v{12+i}, s{76+2*i}')
            e('v_mov_b32 v4, 0\ns_lshl_b32 s95, s95, 3\ns_add_u32 s95, s95, s94\ns_lshl_b32 s95, s95, 6')
            e('buffer_store_dwordx4 v[8:11], v4, s[8:11], s95 offen\nbuffer_store_dwordx4 v[12:15], v4, s[8:11], s95 offen offset:16\nbuffer_store_dwordx4 v[16:19], v4, s[8:11], s95 offen offset:32')
        self.e('s_endpgm')
```

```python
import sys
sys.path.insert(0,'dev')
from asmlib import Asm
from layout import *
import struct
def f2u(x): return struct.unpack('<I', struct.pack('<f', x))[0]
MF='v_mfma_f32_16x16x32_bf16'
PITCH = 1040; SLOT = 32*PITCH
C0 = -2*0.7978845608028654*1.4426950408889634
C1 = C0*0.044715
THRESH = 0x41f00000
SPIN_MAX = 1 << 20

class VQ:
    def __init__(s, e, lim=63): s.e = e; s.q = []; s.done = 0; s.lim = lim
    def issue(s, op, tag):
        if len(s.q) - s.done >= s.lim:
            s.e(f's_waitcnt vmcnt({s.lim-1})'); s.done = len(s.q) - (s.lim-1)
        s.e(op); s.q.append(tag)
    def need(s, tag):
        i = max(k for k, t in enumerate(s.q) if t == tag)
        if i < s.done: return None
        s.done = i + 1
        return f'vmcnt({len(s.q) - 1 - i})'
    def wait(s, tag, extra=''):
        w = s.need(tag)
        if w or extra: s.e(('s_waitcnt ' + (w or '') + ' ' + extra).strip())
    def drain(s):
        s.e('s_waitcnt vmcnt(0)'); s.done = len(s.q)

class LQ:
    def __init__(s, e): s.e = e; s.q = []; s.done = 0
    def issue(s, op, tag):
        if len(s.q) - s.done >= 15:
            s.e('s_waitcnt lgkmcnt(12)'); s.done = len(s.q) - 12
        s.e(op); s.q.append(tag)
    def need(s, tag):
        i = max(k for k, t in enumerate(s.q) if t == tag)
        if i < s.done: return None
        s.done = i + 1
        return f'lgkmcnt({len(s.q) - 1 - i})'
    def drained(s): s.done = len(s.q)

R_XA=8; R_WS=12; R_AUX=16; R_OUT=20; R_Q=52; R_U=56; R_G=60; R_GL=64; R_OP=68; R_FL=72
def srd(r): return f's[{r}:{r+3}]'
V_L16=1

def fused_kernel(a, name, kidx=1, order=(0,2,1), DF=7, W=2, AW=2, dlate=False, nodma=False, nobar=False, flagA_unit=None, pollA_unit=None, flagC_n=8, pf=True, dcost=1, psc=' sc1', FDF=12, nopl=False, nopub=False, wpf=False, plsc=' sc1'):
    e = a.e
    a.begin(name)
    e(f's_cmp_ge_u32 s2, 256\ns_cbranch_scc1 {name}_end')
    a.stamp_begin()
    e(f's_load_dwordx2 s[4:5], s[0:1], 88\ns_load_dwordx2 s[{R_AUX}:{R_AUX+1}], s[0:1], 0\ns_load_dwordx2 s[{R_OUT}:{R_OUT+1}], s[0:1], 72')
    e('s_and_b32 s30, s2, 7\ns_lshr_b32 s31, s2, 3\ns_and_b32 s32, s31, 3\ns_lshr_b32 s31, s31, 2\ns_lshl_b32 s30, s30, 3\ns_add_u32 s30, s30, s31')
    e('s_lshr_b32 s33, s30, 5\ns_and_b32 s34, s30, 31')
    e('v_lshrrev_b32 v9, 6, v0\nv_and_b32 v0, 63, v0\ns_nop 0\nv_readfirstlane_b32 s24, v9')
    vq = VQ(e)
    if pf: a.touch_code(name, f'{name}_R0', 60, 10, 120, 24, 2, issue=lambda op: vq.issue(op, 'tc'))
    e(f'v_lshlrev_b32 v{V_L16}, 4, v0')
    e('s_mul_i32 s25, s33, 4000\ns_lshl_b32 s39, s34, 7\ns_add_u32 s25, s25, s39\ns_lshl_b32 s39, s24, 3\ns_add_u32 s25, s25, s39\ns_lshl_b32 s25, s25, 10')
    e(f's_mul_i32 s35, s24, {8*PITCH}\ns_sub_u32 s35, s35, 65536')
    e(f's_cmp_gt_u32 s32, 0\ns_cselect_b32 s38, 1, 0\ns_cselect_b32 s39, {SLOT}, 0\ns_add_u32 s27, s35, s39')
    e(f's_cmp_gt_u32 s32, 0\ns_cselect_b32 s28, 0, {3*SLOT}\ns_add_u32 s28, s28, s35')
    e('s_lshl_b32 s45, s32, 2\ns_add_u32 s45, s45, s24')
    e(f's_lshl_b32 s46, s45, 15\ns_add_u32 s46, s46, {WA_OFF}')
    e('s_waitcnt lgkmcnt(0)')
    a.srd(R_XA, 4, XA_SZ, XA_OFF); a.srd(R_WS, 4, WS_SZ)
    slow = []
    def poll(loads, regs, back_tag):
        lbl = a.newlabel(name + '_sp'); back = a.newlabel(name + '_bk')
        def chk():
            if back_tag: back_tag()
            for r in regs[1:]: e(f'v_and_b32 v{regs[0]}, v{regs[0]}, v{r}')
            e(f'v_cmp_ne_u32 vcc, 1, v{regs[0]}')
        chk()
        e(f's_cbranch_vccnz {lbl}')
        a.label(back)
        def sp():
            a.label(lbl)
            e(f's_mov_b32 s3, {SPIN_MAX}')
            l2 = a.newlabel(name + '_sl'); a.label(l2)
            e('s_sleep 4')
            for l in loads: e(l)
            e('s_waitcnt vmcnt(0)')
            chk()
            e(f's_cbranch_vccz {back}')
            e(f's_sub_u32 s3, s3, 1\ns_cmp_lg_u32 s3, 0\ns_cbranch_scc1 {l2}\ns_branch {back}')
        slow.append(sp)

    MB='v_mfma_f32_32x32x16_bf16'
    V_B0=2; V_B2=3; V_C0=4; V_C1=5; V_WP=6; V_ONE=7; V_FA=8; V_PL=9; V_B3=10; V_SQ=11; V_SU=12
    TMP=16; FR=32; Q=128
    ACCB = lambda unit: [128, 144][unit] if unit < 2 else [96, 112][unit % 2]
    def fr(f): return FR + 4*(f % 16)
    def dma_ops(base, slot, src, src2, tag):
        ops = []
        for r in range(8):
            pre = f's_add_u32 m0, {base}, {65536 + slot*SLOT + r*PITCH - (r&3)*1024}'
            if r == 0: pre += f'\ns_add_u32 {src2}, {src}, 4096'
            if r == 4: pre += f'\ns_add_u32 {src}, {src}, 32768'
            so = src if r < 4 else src2
            ops.append((pre, lambda r=r, so=so: vq.issue(f'buffer_load_dwordx4 v{V_L16}, {srd(R_XA)}, {so} offen offset:{(r&3)*1024} lds', tag)))
        return ops
    xops = lambda t: dma_ops('s27', t, 's25', 's29', f'x{t}') if t < 3 else dma_ops('s28', 0, 's25', 's29', 'x3')
    kops = lambda t: dma_ops('s27', t, 's26', 's29', f'k{t}')
    def wop(ps, i):
        r = (ps % 2)*128 + 4*i; ks, h = i // 2, i % 2
        pre = f's_add_u32 s47, s46, {order[ps]*524288 + (ks//2)*4096}' if i % 4 == 0 else None
        return (pre, lambda: vq.issue(f'buffer_load_dwordx4 a[{r}:{r+3}], v{V_WP}, {srd(R_WS)}, s47 offen offset:{(ks%2)*2048 + 512*h}', f'w{ps}_{i}'))
    def now(ops):
        for pre, f in ops:
            if pre: e(pre); e('s_nop 0') if 'm0' in pre.split('\n')[-1] else None
            f()
    now(xops(0)); now(xops(1))
    e(f"""v_and_b32 v13, 3, v0
    v_and_b32 v14, 4, v0
    v_add_u32 v13, v13, v14
    v_bfe_u32 v14, v0, 4, 1
    v_lshl_add_u32 v13, v14, 3, v13
    v_lshlrev_b32 v13, 4, v13
    v_bfe_u32 v15, v0, 3, 1
    v_lshl_add_u32 v13, v15, 10, v13
    v_lshrrev_b32 v15, 5, v0
    v_lshl_add_u32 v{V_WP}, v15, 8, v13""")
    now([wop(0, i) for i in range(16)])
    a.srd(R_FL, 4, FLAG_SZ, FLAG_OFF)
    e(f's_mul_i32 s37, s33, 4096000\ns_add_u32 s37, s37, {GF_OFF}')
    e(f's_add_u32 s{R_GL}, s4, s37\ns_addc_u32 s{R_GL+1}, s5, 0\ns_mov_b32 s{R_GL+2}, 4096000\ns_mov_b32 s{R_GL+3}, 0x20000')
    e(f's_mov_b32 s{R_AUX+2}, {XA_SZ}\ns_mov_b32 s{R_AUX+3}, 0x20000\ns_mov_b32 s{R_OUT+2}, {XA_SZ}\ns_mov_b32 s{R_OUT+3}, 0x20000')
    a.srd(R_OP, 4, OP_SZ, OP_OFF)
    e('s_lshl_b32 s40, s30, 1\ns_add_u32 s40, s40, s32\ns_sub_u32 s40, s40, 1\ns_lshl_b32 s40, s40, 2\ns_add_u32 s40, s40, s24\ns_and_b32 s41, s40, 31\ns_lshr_b32 s42, s40, 5')
    e(f'v_and_b32 v13, 15, v0\nv_lshlrev_b32 v{V_FA}, 2, v13\nv_lshlrev_b32 v13, 4, v13\nv_lshl_add_u32 v13, v15, 8, v13')
    e(f'v_lshl_add_u32 v{V_SQ}, v14, 10, v13\nv_lshl_add_u32 v{V_SU}, v14, 14, v13')
    e(f'v_and_b32 v13, 31, v0\nv_mul_u32_u24 v13, {PITCH}, v13\nv_lshl_add_u32 v13, v15, 8, v13')
    e(f's_mul_i32 s39, s38, {SLOT}\nv_add_u32 v{V_B0}, s39, v13\nv_add_u32 v{V_B2}, {2*SLOT}, v{V_B0}\ns_sub_u32 s39, s28, s35\nv_add_u32 v{V_B3}, s39, v13')
    e(f's_cmp_eq_u32 s32, 3\ns_cselect_b32 s37, 0x50000000, 0')
    e(f's_lshl_b32 s43, s42, 15\ns_add_u32 s43, s43, {WV_OFF}\ns_add_u32 s43, s43, s37\ns_lshl_b32 s44, s41, 14\ns_add_u32 s44, s44, {W1_OFF}\ns_add_u32 s44, s44, s37')
    e(f'v_mov_b32 v{V_C0}, {f2u(C0)}\nv_mov_b32 v{V_C1}, {f2u(C1)}\nv_mov_b32 v{V_ONE}, 1')
    e(f's_lshr_b32 s36, s41, 3\ns_lshl_b32 s36, s36, 4\ns_add_u32 s36, s36, s42\ns_lshl_b32 s36, s36, 13\ns_add_u32 s36, s36, s37\ns_and_b32 s37, s41, 7\ns_lshl_b32 s37, s37, 10\ns_add_u32 s36, s36, s37\ns_add_u32 s36, s36, {WF_OFF + 524288}')
    e('s_mul_i32 s48, s33, 250\ns_lshl_b32 s49, s34, 3\ns_add_u32 s48, s48, s49\ns_lshl_b32 s48, s48, 14')
    e('s_lshl_b32 s49, s45, 10\ns_add_u32 s50, s48, s49\ns_lshl_b32 s49, s45, 11\ns_add_u32 s51, s48, s49')
    e('s_lshl_b32 s49, s24, 15\ns_add_u32 s48, s48, s49')
    e('s_add_u32 s49, s33, 1\ns_mul_i32 s49, s49, 4096000')
    for off, d in ((QF_OFF, R_Q), (UF_OFF, R_U), (GF_OFF, R_G)):
        e(f's_add_u32 s{d}, s4, {off}\ns_addc_u32 s{d+1}, s5, 0\ns_mov_b32 s{d+2}, s49\ns_mov_b32 s{d+3}, 0x20000')
    e('s_lshl_b32 s40, s30, 6\ns_lshl_b32 s41, s45, 2\ns_add_u32 s41, s41, s40')
    e('s_mul_i32 s26, s32, 992\ns_mul_i32 s39, s33, 4000\ns_add_u32 s26, s26, s39\ns_lshl_b32 s39, s38, 5\ns_add_u32 s26, s26, s39\ns_lshl_b32 s39, s24, 3\ns_add_u32 s26, s26, s39\ns_lshl_b32 s26, s26, 10')
    seq = [(u, i) for i in range(32) for u in range(2)] + [(u, i) for u in range(2, 12) for i in range(32)]
    def fread(n):
        u, i = seq[n]; t = u % 4; r = fr(n)
        b, o = [(V_B0, 0), (V_B0, SLOT), (V_B2, 0), (V_B3, 0)][t]
        return f'ds_read_b128 v[{r}:{r+3}], v{b} offset:{o + 512*(i%2) + 16*(i//2)}'
    def epi_ops(unit, pk=False):
        ps, t = unit // 4, unit % 4
        kind = order[ps]; ops = []
        def v(s, c=1): ops.append(('v', s, c))
        for b in range(2):
            x = [ACCB(unit) + 8*b + j for j in range(8)]; o = (160 if unit == 1 else TMP + 8) + 4*b
            if kind and not pk:
                for h in range(2):
                    xs = x[4*h:4*h+4]; tt = [TMP + 4*h + j for j in range(4)]
                    for j in range(4): v(f'v_mul_f32 v{tt[j]}, v{xs[j]}, v{xs[j]}')
                    for j in range(4): v(f'v_fma_f32 v{tt[j]}, v{tt[j]}, v{V_C1}, v{V_C0}')
                    for j in range(4): v(f'v_mul_f32 v{tt[j]}, v{tt[j]}, v{xs[j]}')
                    for j in range(4): v(f'v_exp_f32 v{tt[j]}, v{tt[j]}', 2)
                    for j in range(4): v(f'v_add_f32 v{tt[j]}, 1.0, v{tt[j]}')
                    for j in range(4): v(f'v_rcp_f32 v{tt[j]}, v{tt[j]}', 2)
                    for j in range(4): v(f'v_mul_f32 v{xs[j]}, v{xs[j]}, v{tt[j]}')
            elif kind:
                P2 = lambda r: f'v[{r}:{r+1}]'
                for j in range(0, 8, 2): v(f'v_pk_mul_f32 {P2(TMP+j)}, {P2(x[j])}, {P2(x[j])}')
                for j in range(0, 8, 2): v(f'v_pk_fma_f32 {P2(TMP+j)}, {P2(TMP+j)}, {P2(V_C0)}, {P2(V_C0)} op_sel:[0,1,0] op_sel_hi:[1,1,0]')
                for j in range(0, 8, 2): v(f'v_pk_mul_f32 {P2(TMP+j)}, {P2(TMP+j)}, {P2(x[j])}')
                for j in range(8): v(f'v_exp_f32 v{TMP+j}, v{TMP+j}', 2)
                for j in range(0, 8, 2): v(f'v_pk_add_f32 {P2(TMP+j)}, {P2(TMP+j)}, 1.0 op_sel_hi:[1,0]')
                for j in range(8): v(f'v_rcp_f32 v{TMP+j}, v{TMP+j}', 2)
                for j in range(0, 8, 2): v(f'v_pk_mul_f32 {P2(x[j])}, {P2(x[j])}, {P2(TMP+j)}')
            for k in range(4): v(f'v_cvt_pk_bf16_f32 v{o+k}, v{x[2*k]}, v{x[2*k+1]}')
            R = [R_Q, R_U, R_G][kind]
            pre = f's_add_u32 s49, s{50 if kind else 51}, {t*32768}'
            ops.append(('m', (pre, lambda o=o, b=b, R=R: vq.issue(f'buffer_store_dwordx4 v[{o}:{o+3}], v{V_SU if kind else V_SQ}, {srd(R)}, s49 offen offset:{512*b} sc1', f'st{kind}')), 3))
        return ops
    assert order[0] == 0
    pollA_ld = f'buffer_load_dword v{V_PL}, v{V_FA}, {srd(R_FL)}, s40 offen offset:{FA_REL} sc1'
    def qop(i):
        pre = 's_add_u32 s48, s48, 4096' if i % 4 == 0 and i else None
        return (pre, lambda: vq.issue(f'buffer_load_dwordx4 v[{Q+4*i}:{Q+4*i+3}], v{V_L16}, {srd(R_Q)}, s48 offen offset:{(i%4)*1024} sc1', 'q'))
    bar = ('s_barrier', lambda: None)
    mem = {u: [] for u in range(1, 12)}
    mem[1] = [x for pr in zip([wop(0, i) for i in range(16, 24)], xops(2)) for x in pr] + [wop(0, i) for i in range(24, 32)] + xops(3) + [wop(1, i) for i in range(4)]
    mem[2] = [wop(1, i) for i in range(4, 16)]
    mem[3] = [wop(1, i) for i in range(16, 32)]
    mem[4] = [wop(2, i) for i in range(12)]
    mem[5] = [(None, lambda: (vq.wait('st0'), vq.issue(f'buffer_store_dword v{V_ONE}, off, {srd(R_FL)}, s41 offset:{FA_REL} sc1', 'fl')))] + [wop(2, i) for i in range(12, 22)]
    mem[6] = [wop(2, i) for i in range(22, 32)] + [(None, lambda: vq.issue(pollA_ld, 'pa'))]
    mem[7] = [(None, lambda: None)]*3 + [(None, lambda: (vq.wait('pa'), poll([pollA_ld], [V_PL], None)))] + [qop(i) for i in range(8)]
    mem[8] = [qop(i) for i in range(8, 20)]
    mem[9] = [bar] + kops(0) + [qop(i) for i in range(20, 24)]
    mem[10] = [bar] + kops(1) + [qop(i) for i in range(24, 28)]
    mem[11] = [bar] + kops(2) + [qop(i) for i in range(28, 32)]
    vq.wait('x1'); e('s_barrier')
    a.mark('x0')
    FW = 2
    for f in range(FDF): e(fread(f))
    def wait_for(n):
        if n >= len(seq): return
        u, i = seq[n]; w = []
        if n % FW == 0: w.append(f'lgkmcnt({max(0, min(n - 1 + FDF, len(seq)) - (n + FW))})')
        if u % 4 == 0:
            x = vq.need(f'w{u//4}_{i}')
            if x: w.append(x)
        if w: e('s_waitcnt ' + ' '.join(w))
    n = 0
    wait_for(0)
    for blk in range(1, 12):
        N = 64 if blk == 1 else 32
        ep = [] if blk == 1 else (epi_ops(0) + epi_ops(1) if blk == 2 else epi_ops(blk - 1))
        mq = list(mem[blk]); nm = len(mq); pend = []
        tot = sum(c for k, o, c in ep if k == 'v'); acc = 0.0; start = 2; issued = 0
        for g in range(N):
            u, i = seq[n]; d = ACCB(u); wr = ((u//4) % 2)*128 + 4*i
            c = '0' if i == 0 else f'v[{d}:{d+15}]'
            e(f'{MB} v[{d}:{d+15}], a[{wr}:{wr+3}], v[{fr(n)}:{fr(n)+3}], {c}')
            wait_for(n + 1)
            m = None
            if pend: m = pend.pop(0)
            elif mq and issued * (N - 1) <= g * nm: m = mq.pop(0); issued += 1
            if m and m[0]: e(m[0])
            if n + FDF < len(seq):
                un, inn = seq[n + FDF]
                if inn == 0 and un in (2, 3):
                    assert vq.q.count(f'x{un}') == 8
                    vq.wait(f'x{un}'); e('s_barrier')
                e(fread(n + FDF))
            elif m and m[0]: e('s_nop 0')
            if m: m[1]()
            if g >= start:
                acc += tot / (N - 2 - start) - (2 if m else 0) + (2.0 * (nm + 2) / N)
                while ep and (ep[0][0] == 'm' or acc >= ep[0][2] - 0.5):
                    k, o, c2 = ep.pop(0)
                    if k == 'v': e(o); acc -= c2
                    else: pend.append(o)
            n += 1
        for k, o, c2 in ep:
            if k == 'v': e(o)
            else: pend.append(o)
        now(pend + mq)
        a.mark(f'u{blk}')
    e('s_nop 7\ns_nop 7')
    for k, o, c2 in epi_ops(11, pk=True):
        if k == 'v': e(o)
        else: now([o])
    V_KB=2; V_VB=3; V_KA=4; V_VA=5; V_L=8; V_MX=10; V_T0=12; V_T1=13; V_T2=14; V_T3=15
    S_BUF=[16,32]; NEGM=48; P=56; AFR=64
    e(f'''v_and_b32 v12, 7, v0
    v_lshlrev_b32 v12, 1, v12
    v_bfe_u32 v13, v0, 3, 1
    v_add_u32 v12, v12, v13
    v_mul_u32_u24 v12, {PITCH}, v12
    v_lshrrev_b32 v13, 4, v0
    v_lshlrev_b32 v13, 8, v13
    v_add_u32 v{V_KB}, v12, v13
    v_bfe_u32 v12, v0, 2, 3
    v_lshlrev_b32 v12, 1, v12
    v_lshrrev_b32 v13, 5, v0
    v_add_u32 v12, v12, v13
    v_mul_u32_u24 v12, {PITCH}, v12
    v_and_b32 v13, 3, v0
    v_lshlrev_b32 v13, 3, v13
    v_add_u32 v{V_VB}, v12, v13''')
    e(f'v_add_u32 v{V_KA}, {2*SLOT}, v{V_KB}\nv_add_u32 v{V_VA}, {2*SLOT}, v{V_VB}')
    e(f'v_mov_b32 v{V_L}, 0\nv_mov_b32 v{V_L+1}, 0')
    e(f's_mov_b32 s45, {THRESH}\ns_mov_b32 s31, 7')
    for i in range(192, 256): e(f'v_accvgpr_write_b32 a{i}, 0')
    a.mark('zero')
    x1 = vq.need('k1'); x2 = vq.need('q')
    e(f's_waitcnt {x2 or x1}\ns_barrier')
    a.mark('attn0')
    def afr(f): return AFR + 4*(f % 8)
    def qf(step, qt): return Q + 4*(2*step+qt)
    cur = [0]
    def reads(f):
        f0 = f % 64; r = afr(f)
        if f0 < 32:
            sl = (cur[0] + 1 + f // 64) % 4
            step, kt = f0 // 2, f0 % 2
            return [f'ds_read_b128 v[{r}:{r+3}], v{V_KB if sl < 2 else V_KA} offset:{(sl%2)*SLOT + kt*16*PITCH + 16*step}']
        dt = f0 - 32; sl = (cur[0] + f // 64) % 4
        return [f'ds_read_b64_tr_b16 v[{r+2*kt}:{r+2*kt+1}], v{V_VB if sl < 2 else V_VA} offset:{(sl%2)*SLOT + kt*16*PITCH + 32*dt}' for kt in range(2)]
    def nreads(f): return 1 if (f % 64) < 32 else 2
    def mfma(n, Snext, first_c):
        f = n // 2; r = afr(f); qt = n % 2
        if n < 64:
            step, kt = f // 2, f % 2
            d = Snext + 8*qt + 4*kt
            c = first_c(qt) if step == 0 else f'v[{d}:{d+3}]'
            return f'{MF} v[{d}:{d+3}], v[{r}:{r+3}], v[{qf(step,qt)}:{qf(step,qt)+3}], {c}'
        dt = f - 32; o = 8*dt + 4*qt
        return f'{MF} a[{o}:{o+3}], v[{r}:{r+3}], v[{P+4*qt}:{P+4*qt+3}], a[{o}:{o+3}]'
    def maxtree(S):
        ops = []
        for qt in range(2):
            b = S + 8*qt; m = V_MX + qt
            ops.append([f'v_max3_f32 v{m}, v{b}, v{b+1}, v{b+2}', f'v_max3_f32 v{m}, v{m}, v{b+3}, v{b+4}',
                        f'v_max3_f32 v{m}, v{m}, v{b+5}, v{b+6}', f'v_max_f32 v{m}, v{m}, v{b+7}'])
        return [x for pair in zip(*ops) for x in pair]
    def xred(op, regs):
        ts = [V_T0, V_T1]
        for sw in ('32', '16'):
            for r, t in zip(regs, ts): e(f'v_mov_b32 v{t}, v{r}')
            e('s_nop 1')
            for r, t in zip(regs, ts): e(f'v_permlane{sw}_swap_b32 v{t}, v{r}')
            e('s_nop 1')
            for r, t in zip(regs, ts): e(f'{op} v{r}, v{r}, v{t}')
    def qk0(j0):
        S = S_BUF[j0 % 2]
        cur[0] = j0 - 1
        fl = []
        SD = 96
        if j0 == 1:
            for st in range(16):
                for k in range(3):
                    r = 12*st + 4*k
                    def f(st=st, k=k, r=r):
                        if st % 4 == 0 and st and k == 0: e('s_add_u32 s43, s43, 4096\ns_add_u32 s44, s44, 4096')
                        if st % 4 == 0 and k == 1: e('s_add_u32 s47, s43, 16384')
                        so = ['s43', 's47', 's44'][k]
                        e(f'buffer_load_dwordx4 a[{r}:{r+3}], v{V_L16}, {srd(R_WS)}, {so} offen offset:{1024*(st%4)}')
                    fl.append(f)
        else:
            for z in range(0, 192, 3):
                fl.append(lambda z=z: e(f'v_accvgpr_write_b32 a{z}, 0\nv_accvgpr_write_b32 a{z+1}, 0\nv_accvgpr_write_b32 a{z+2}, 0'))
        for f in range(DF): e(reads(f)[0])
        for n in range(64):
            f = n // 2
            if n % 4 == 0: e(f's_waitcnt lgkmcnt({DF-2})')
            e(mfma(n, S, lambda qt: '0'))
            if n % 2 == 1:
                e(reads(f + DF if f + DF < 32 else f + DF + 32)[0])
            if n < len(fl): fl[n]()
        e('s_nop 5\ns_add_u32 s29, s26, 4096')
        for o in maxtree(S): e(o)
        xred('v_max_f32', [V_MX, V_MX+1])
        for qt in range(2):
            for i in range(4): e(f'v_sub_f32 v{NEGM+4*qt+i}, 0, v{V_MX+qt}')
            for i in range(8): e(f'v_sub_f32 v{S+8*qt+i}, v{S+8*qt+i}, v{V_MX+qt}')
        if j0 == 1:
            for st in range(16):
                e(f's_waitcnt vmcnt({45 - 3*st})')
                for jj in range(2):
                    c = '0' if st == 0 else f'v[{SD+4*jj}:{SD+4*jj+3}]'
                    e(f'{MF} v[{SD+4*jj}:{SD+4*jj+3}], a[{12*st+4*jj}:{12*st+4*jj+3}], a[{12*st+8}:{12*st+11}], {c}')
                    if st:
                        for z in range(6): e(f'v_accvgpr_write_b32 a{12*(st-1)+6*jj+z}, 0')
            for z in range(12): e(f'v_accvgpr_write_b32 a{180+z}, 0')
            for k in range(4): e(f'v_cvt_pk_bf16_f32 v{SD+8+k}, v{SD+2*k}, v{SD+2*k+1}')
            e(f'buffer_store_dwordx4 v[{SD+8}:{SD+11}], v{V_L16}, {srd(R_WS)}, s36 offen sc1')
        a.mark('loop0')
        e(f's_add_u32 s41, s41, {FB_REL}\ns_waitcnt lgkmcnt(0)')
    e(f's_cmp_eq_u32 s38, 0\ns_cbranch_scc1 {name}_q0')
    qk0(1)
    e(f's_branch {name}_L1')
    a.label(f'{name}_q0')
    qk0(0)

    V_G=128; V_DW=192; V_U=96
    vt = VQ(e)
    pollB_ld = [f'buffer_load_dwordx4 v[{96+4*i}:{99+4*i}], v{V_L16}, {srd(R_FL)}, s44 offen offset:{1024*i} sc1' for i in range(4)]
    PF = []
    for pl in range(2):
        for tt in range(2):
            r = V_U + 16 + 8*pl + 4*tt
            PF.append((None, f'buffer_load_dwordx4 v[{r}:{r+3}], v{V_L16}, {srd(R_U)}, s{46+tt} offen offset:{1024*(pl+2)} sc1', 'u', -1))
    for p in range(16):
        PF.append(('s_add_u32 s39, s39, 4096' if p % 4 == 0 and p else None, f'buffer_load_dwordx4 v[{V_G+4*p}:{V_G+4*p+3}], v{V_L16}, {srd(R_GL)}, s39 offen offset:{1024*(p%4)} sc1', 'g', p // 2))
    for pl in range(2):
        for tt in range(2):
            r = V_U + 8*pl + 4*tt
            PF.append((None, f'buffer_load_dwordx4 v[{r}:{r+3}], v{V_L16}, {srd(R_U)}, s{46+tt} offen offset:{1024*pl} sc1', 'u', -1))
    for i in range(16):
        PF.append(('s_add_u32 s38, s38, 4096' if i % 4 == 0 and i else None, f'buffer_load_dwordx4 v[{V_DW+4*i}:{V_DW+4*i+3}], v{V_L16}, {srd(R_WS)}, s38 offen offset:{1024*(i%4)}', f'dw{i//4}', 8 + i // 2))
    def body(jm, special=False):
        par = jm % 2; cur[0] = jm
        Scur, Snext = S_BUF[par], S_BUF[1-par]
        sc = [[] for _ in range(128)]; gap = [[] for _ in range(128)]; used = [0]*128
        first = {}
        def put(n, op, cost=1): gap[n].append(op); used[n] += cost
        def fit(lo, cost, hi=127):
            n = lo
            while used[n] + cost > 2 and n < hi: n += 1
            return n
        def rmap(f): return f + 32 if (special and f >= 64) else f
        rdq = {}
        for f in range(64):
            x = rmap(f + DF)
            if x == 64:
                sc[2*f] += ['s_waitcnt vmcnt(8)', 's_nop 0' if nobar else 's_barrier']; used[2*f] += 1
            for i, o in enumerate(reads(x)):
                put(2*f + i, o); rdq.setdefault(2*f + i, []).append(f + DF)
        q = list(range(DF)); wgaps = []
        for n in range(128):
            if (n + 1) % (2*AW) == 0:
                need = (n + 1)//2 + AW - 1
                sc[n].insert(0, f's_waitcnt lgkmcnt({sum(1 for x in q if x > need)})'); wgaps.append(n)
                assert need in q and sum(1 for x in q if x == need) == nreads(rmap(need))
            q += rdq.get(n, [])
        free_odd = [n for n in range(1, 64, 2) if used[n] == 0]
        eg = [n for n in free_odd if n in wgaps]; og = [n for n in free_odd if n not in wgaps]
        dg = []
        if not special:
            dg = [og[(i*len(og))//8] for i in range(8)] if dlate else og[:8]
            for r, n in enumerate(dg):
                sc[n-1].append(f's_add_u32 m0, s35, {65536 + ((jm+3)%4)*SLOT + r*PITCH - (r&3)*1024}')
                if nodma: used[n] += 2
                else: put(n, f'buffer_load_dwordx4 v{V_L16}, {srd(R_XA)}, {"s26" if r < 4 else "s29"} offen offset:{(r&3)*1024} lds', 2)
            sc[70].append('s_add_u32 s26, s26, 32768'); sc[72].append('s_add_u32 s29, s26, 4096')
        else:
            dg = og[1:]
            dg = dg[:len(og) + len(eg) - 16]
        epos = sorted(eg + [n for n in og if n not in dg])[:16]
        assert len(epos) == 16
        for k, n in enumerate(epos):
            op = f'v_exp_f32 v{Scur+k}, v{Scur+k}'
            if n in wgaps: first[n] = op; used[n] += 2
            else: put(n, op, 2)
        adds = [f'v_add_f32 v{V_L+(k//8)}, v{V_L+(k//8)}, v{Scur+k}' for k in range(16)]
        for n in wgaps:
            if n not in first and n != 127:
                first[n] = 's_nop 0'; used[n] += 1
        for k in range(8):
            n = fit(epos[2*k+1]+1, 1); put(n, f'v_cvt_pk_bf16_f32 v{P+k}, v{Scur+2*k}, v{Scur+2*k+1}')
            assert n <= 61, n
        def place(ops, lo):
            n = lo
            for op in ops:
                n = fit(n, 1); put(n, op)
            return n
        place(adds, max(epos)+1)
        n = place(maxtree(Snext) + [f'v_max_f32 v{V_T3}, v{V_MX}, v{V_MX+1}'], 72)
        if special:
            slots = dg + list(range(53, 124, 4))
            for n in slots:
                pr, op, tag, minq = PF.pop(0)
                assert n >= 4*minq + 4
                if pr: sc[n].append(pr)
                gap[n].insert(len(rdq.get(n, [])), (op, tag))
        gap[125].append(f'v_cmp_lt_f32 vcc, s45, v{V_T3}')
        assert n <= 124
        for n in range(128):
            e(mfma(n, Snext, lambda qt: f'v[{NEGM+4*qt}:{NEGM+4*qt+3}]'))
            for o in sc[n]: e(o)
            if n in first: e(first[n])
            for o in gap[n]:
                if isinstance(o, tuple): vt.issue(*o)
                else: e(o)
    def rescale(par):
        Snext = S_BUF[1-par]
        e('s_nop 7\ns_nop 7')
        for qt in range(2): e(f'v_max_f32 v{V_MX+qt}, 0, v{V_MX+qt}')
        xred('v_max_f32', [V_MX, V_MX+1])
        for qt in range(2):
            for i in range(4): e(f'v_sub_f32 v{NEGM+4*qt+i}, v{NEGM+4*qt+i}, v{V_MX+qt}')
            for i in range(8): e(f'v_sub_f32 v{Snext+8*qt+i}, v{Snext+8*qt+i}, v{V_MX+qt}')
            e(f'v_sub_f32 v{V_MX+qt}, 0, v{V_MX+qt}\nv_exp_f32 v{V_MX+qt}, v{V_MX+qt}\ns_nop 0')
            e(f'v_mul_f32 v{V_L+qt}, v{V_L+qt}, v{V_MX+qt}')
    a.label(f'{name}_L0')
    for jm in range(4):
        if jm == 1: a.label(f'{name}_L1')
        if jm == 2: e(f's_cmp_eq_u32 s31, 0\ns_cbranch_scc1 {name}_sp2')
        body(jm)
        e(f's_cbranch_vccnz {name}_R{jm}')
        a.label(f'{name}_B{jm}')
    e(f's_sub_u32 s31, s31, 1\ns_cmp_eq_u32 s31, 6\ns_cbranch_scc1 {name}_fb')
    if pf:
        e(f's_cmp_lg_u32 s31, 0\ns_cbranch_scc1 {name}_L0')
        a.touch_code(f'{name}_sp2', f'{name}_end', 36, 113, 112, 24, 2)
        e(f's_mov_b32 s44, {FB_REL}')
        for l in pollB_ld: e(l)
        e('s_lshl_b32 s48, s34, 2\ns_add_u32 s48, s48, s32\ns_mul_i32 s49, s33, 125\ns_add_u32 s49, s49, s48')
        e('s_lshl_b32 s39, s48, 1\ns_add_u32 s39, s39, s24\ns_sub_u32 s39, s39, 1\ns_and_b32 s39, s39, 0xffff\ns_lshl_b32 s39, s39, 14')
        e(f's_lshl_b32 s38, s24, 14\ns_add_u32 s38, s38, {DW_OFF}')
        e('s_lshl_b32 s46, s49, 15\ns_lshl_b32 s47, s24, 12\ns_add_u32 s46, s46, s47\ns_add_u32 s47, s46, 16384')
        if wpf:
            e(f's_lshr_b32 s36, s2, 3\ns_lshl_b32 s36, s36, 2\ns_add_u32 s36, s36, s24\ns_lshl_b32 s36, s36, 13\ns_add_u32 s36, s36, {WF_OFF}\nv_lshlrev_b32 v113, 7, v0')
            e(f'buffer_load_dword v112, v113, {srd(R_WS)}, s36 offen sc1')
    e(f's_branch {name}_L0')
    a.label(f'{name}_fb')
    e(f'buffer_store_dword v{V_ONE}, off, {srd(R_FL)}, s41 sc1\ns_branch {name}_L0')
    for rid in (0, 2, 4):
        a.label(f'{name}_R{rid}'); e(f's_mov_b32 s42, {rid}')
        if rid != 4: e(f's_branch {name}_RB0')
    a.label(f'{name}_RB0'); rescale(0); e(f's_branch {name}_RC')
    for rid in (1, 3):
        a.label(f'{name}_R{rid}'); e(f's_mov_b32 s42, {rid}')
        if rid != 3: e(f's_branch {name}_RB1')
    a.label(f'{name}_RB1'); rescale(1)
    a.label(f'{name}_RC')
    for i in range(0, 256, 2):
        qt = (i // 4) % 2
        e(f'v_accvgpr_read_b32 v{V_T1}, a{i}\nv_accvgpr_read_b32 v{V_T2}, a{i+1}\nv_mul_f32 v{V_T1}, v{V_T1}, v{V_MX+qt}\nv_mul_f32 v{V_T2}, v{V_T2}, v{V_MX+qt}')
        e(f'v_accvgpr_write_b32 a{i}, v{V_T1}\nv_accvgpr_write_b32 a{i+1}, v{V_T2}')
    e('s_nop 3')
    for rid in range(4): e(f's_cmp_eq_u32 s42, {rid}\ns_cbranch_scc1 {name}_B{rid}')
    e(f's_branch {name}_B4')
    a.label(f'{name}_sp2')
    a.mark('sp2')
    poll(pollB_ld, list(range(96, 112)), None)
    for _ in range(8): vt.q.append('old')
    body(2, special=True)
    e(f's_cbranch_vccnz {name}_R4')
    a.label(f'{name}_B4')
    a.mark('b4')
    cur[0] = 3; Scur = S_BUF[1]
    for k in range(16): e(f'v_exp_f32 v{Scur+k}, v{Scur+k}')
    for k in range(8): e(f'v_cvt_pk_bf16_f32 v{P+k}, v{Scur+2*k}, v{Scur+2*k+1}')
    e('s_nop 0')
    adds = [f'v_add_f32 v{V_L+(k%2)}, v{V_L+(k%2)}, v{Scur+8*(k%2)+k//2}' for k in range(16)]
    for n in range(64, 128):
        f = n // 2
        if n % 4 == 0: e(f's_waitcnt lgkmcnt({sum(nreads(m) for m in range(f+2, min(f+DF,64)))})')
        e(mfma(n, 0, None))
        m = PF.pop(0) if (PF and n % 4 == 1) else None
        if m and m[0]: e(m[0])
        if f + DF < 64: e(reads(f + DF)[n % 2])
        if m: vt.issue(m[1], m[2])
        elif adds: e(adds.pop(0))
    assert not PF and not adds
    vt.wait('g', 'lgkmcnt(0)'); e('s_barrier')
    a.mark('attn1')
    UC_L = 64*PITCH; OC_L = UC_L + 32768; LL_L = OC_L + 32768
    e('s_lshl_b32 s36, s34, 2\ns_add_u32 s36, s36, s24\ns_cmp_lt_u32 s36, 125\ns_cselect_b32 s37, 0, 0x4000\ns_add_u32 s36, s36, s37\ns_mul_i32 s37, s33, 125\ns_add_u32 s36, s36, s37')
    xred('v_add_f32', [V_L, V_L+1])
    e(f'v_and_b32 v{V_T0}, 16, v0\nv_cmp_eq_u32 vcc, 0, v{V_T0}\nv_and_b32 v{V_T1}, 15, v0\nv_lshlrev_b32 v{V_T1}, 4, v{V_T1}\nv_lshrrev_b32 v{V_T2}, 4, v0\nv_lshl_add_u32 v{V_T1}, v{V_T2}, 2, v{V_T1}')
    e(f'v_cndmask_b32 v{V_MX}, v{NEGM+4}, v{NEGM}, vcc\nv_cndmask_b32 v{V_MX+1}, v{V_L+1}, v{V_L}, vcc\nv_cmp_gt_u32 vcc, 32, v0\ns_nop 1\nv_cndmask_b32 v{V_MX}, v{V_MX+1}, v{V_MX}, vcc')
    e(f's_lshl_b32 s40, s24, 17\ns_add_u32 s40, s40, {WF_OFF}')
    wn = [0]; wcap = [0]
    pslots = []
    for r in range(4): pslots += [V_DW + 16*r + 4*j for j in range(4)] + [V_U + 8*r + 4*j for j in range(2)]
    def wreg(i):
        if 192 <= i < 216: return f'v[{pslots[i-192]}:{pslots[i-192]+3}]'
        if i >= 216: i -= 24
        return f'a[{4*(i%64)}:{4*(i%64)+3}]'
    def wl(q=None):
        i = wn[0]
        if i >= 256 or i >= wcap[0]: return False
        wn[0] += 1
        sg = (i & 127) // 8
        p = 4*(sg % 4) + sg // 4 if i < 128 else sg
        if i % 4 == 0: e(f's_add_u32 s41, s40, {(i>>7)*524288 + p*8192 + ((i%8)//4)*4096}')
        (q or vt).issue(f'buffer_load_dwordx4 {wreg(i)}, v{V_WP}, {srd(R_WS)}, s41 offen offset:{2048*((i%4)//2) + 512*(i%2)}' + (' sc1' if i >= 128 else ''), f'w{i}')
        return True
    e('s_cmp_eq_u32 s24, s32\ns_cselect_b64 s[30:31], -1, 0\ns_cselect_b32 s37, 0x4000, 0\ns_add_u32 s36, s36, s37')
    e(f's_mul_i32 s39, s32, 250\ns_add_u32 s39, s39, s36\ns_lshl_b32 s38, s39, 8\ns_lshl_b32 s29, s39, 15')
    a.srd(R_Q, 4, LP_SZ, LP_OFF)
    vt.issue(f'buffer_store_dword v{V_MX}, v{V_T1}, {srd(R_Q)}, s38 offen sc1', 'ps')
    e(f'v_add_u32 v{V_T1}, {LL_L}, v{V_T1}\ns_mov_b64 exec, s[30:31]\nds_write_b32 v{V_T1}, v{V_MX}\ns_mov_b64 exec, -1')
    V_OC = 0
    pubn = [0]
    def pub_ops(lq=None):
        fidx = pubn[0]; pubn[0] += 1
        u, qt = fidx // 2, fidx % 2; o = 88 + 4*(fidx % 2); ops = []
        for j in range(8): ops.append(lambda j=j: e(f'v_accvgpr_read_b32 v{80+j}, a{16*u + 8*(j//4) + 4*qt + j%4}'))
        for j in range(4): ops.append(lambda j=j: e(f'v_cvt_pk_bf16_f32 v{o+j}, v{80+2*j}, v{80+2*j+1}'))
        def st():
            if fidx % 4 == 0 and fidx: e('s_add_u32 s29, s29, 4096')
            vt.issue(f'buffer_store_dwordx4 v[{o}:{o+3}], v{V_L16}, {srd(R_OP)}, s29 offen offset:{(fidx%4)*1024}{psc}', 'ps')
            if qt == 1: wcap[0] = 4*(u+1)
        def lw():
            e('s_mov_b64 exec, s[30:31]')
            op = f'ds_write_b128 v{V_OC}, v[{o}:{o+3}] offset:{1024*fidx}'
            lq.issue(op, 'pw')
            e('s_mov_b64 exec, -1')
        ops += [st, lw]
        return ops
    e(f's_lshl_b32 s36, s36, 6\ns_lshl_b32 s37, s32, 2\ns_add_u32 s36, s36, s37\ns_add_u32 s36, s36, {FC_REL}')
    def flagC():
        vt.wait('ps')
        vt.issue(f'buffer_store_dword v{V_ONE}, off, {srd(R_FL)}, s36 sc1', 'fc')
    lq = LQ(e)
    V_GW=2; V_CB=3; V_XO=4; V_UCR=5; V_M=13; V_Gq=14; V_LS=8; SEL=16; V_A=24; TFR=32; V_X=64
    m, G = V_M, V_Gq; t3 = 15
    e(f'v_and_b32 v{m}, 15, v0\nv_lshrrev_b32 v{G}, 4, v0')
    e(f's_lshl_b32 s38, s24, 4\nv_add_u32 v{V_GW}, s38, v{m}\nv_mul_u32_u24 v{V_GW}, {PITCH}, v{V_GW}\nv_lshl_add_u32 v{V_GW}, v{G}, 4, v{V_GW}')
    e(f'v_and_b32 v{V_CB}, 1, v{G}\nv_lshlrev_b32 v{V_CB}, 4, v{V_CB}\nv_add3_u32 v{V_CB}, v{V_CB}, v{m}, 1\nv_mul_u32_u24 v{V_CB}, {PITCH}, v{V_CB}\nv_lshrrev_b32 v{t3}, 1, v{G}\nv_lshl_add_u32 v{V_CB}, v{t3}, 4, v{V_CB}\ns_lshl_b32 s38, s24, 8\nv_add_u32 v{V_CB}, s38, v{V_CB}')
    e(f'v_and_b32 v{V_XO}, 31, v0\nv_lshlrev_b32 v{V_XO}, 10, v{V_XO}\nv_lshl_add_u32 v{V_XO}, v{t3}, 4, v{V_XO}\nv_add_u32 v{V_XO}, s38, v{V_XO}')
    e(f'v_and_b32 v{V_UCR}, 1, v{G}\nv_lshlrev_b32 v{V_UCR}, 10, v{V_UCR}\nv_lshl_add_u32 v{V_UCR}, v{t3}, 8, v{V_UCR}\nv_lshl_add_u32 v{V_UCR}, v{m}, 4, v{V_UCR}\nv_add_u32 v{V_UCR}, {UC_L}, v{V_UCR}')
    e(f'v_add_u32 v{V_OC}, {OC_L}, v{V_L16}')
    t0, t1, t2 = V_X, V_X+1, V_X+2
    e(f'v_lshrrev_b32 v{t0}, 3, v{m}\nv_cmp_eq_u32 vcc, v{t0}, v{t3}\nv_bfe_u32 v{t0}, v{m}, 1, 2\ns_nop 0\nv_cndmask_b32 v{t0}, 8, v{t0}, vcc')
    e(f'v_and_b32 v{t1}, 1, v{m}\nv_cmp_eq_u32 vcc, 1, v{t1}')
    for par in range(2):
        bsel = 0x0302 if par else 0x0100
        e(f'v_mov_b32 v{t1}, {0x0c0c0000 | bsel}\nv_mov_b32 v{t2}, {(bsel << 16) | 0x0c0c}\nv_cndmask_b32 v{V_X+3+par}, v{t1}, v{t2}, vcc')
    e(f'v_mov_b32 v{t1}, 0x0c0c0c0c')
    for r in range(4):
        e(f'v_cmp_eq_u32 vcc, {r}, v{t0}\ns_nop 1')
        for par in range(2): e(f'v_cndmask_b32 v{SEL+4*par+r}, v{t1}, v{V_X+3+par}, vcc')
    e(f's_mov_b32 s42, 0x3f803f80\ns_mov_b32 s43, 0xffff0000\ns_mov_b32 s44, {f2u(1/512)}')
    S = [V_X+8, V_X+10, V_X+9, V_X+11]
    for i in range(4): e(f'v_mov_b32 v{S[i]}, 0')
    for i in range(64):
        e(f'v_dot2_f32_bf16 v{S[i%2]}, v{V_G+i}, s42, v{S[i%2]}')
        e(f'v_dot2_f32_bf16 v{S[2+i%2]}, v{V_G+i}, v{V_G+i}, v{S[2+i%2]}')
        if i % 6 == 5:
            for o in pub_ops(lq): o()
        if i % 6 == 2: wl()
    e('s_nop 2')
    e(f'v_add_f32 v{S[0]}, v{S[0]}, v{S[1]}\nv_add_f32 v{S[2]}, v{S[2]}, v{S[3]}')
    for sw in ('16', '32'):
        e(f'v_mov_b32 v{S[1]}, v{S[0]}\nv_mov_b32 v{S[3]}, v{S[2]}\ns_nop 1')
        e(f'v_permlane{sw}_swap_b32 v{S[1]}, v{S[0]}\nv_permlane{sw}_swap_b32 v{S[3]}, v{S[2]}\ns_nop 0')
        e(f'v_add_f32 v{S[0]}, v{S[0]}, v{S[1]}\nv_add_f32 v{S[2]}, v{S[2]}, v{S[3]}')
    e(f'v_mul_f32 v{S[0]}, s44, v{S[0]}\nv_mul_f32 v{S[2]}, s44, v{S[2]}\nv_fma_f32 v{S[2]}, -v{S[0]}, v{S[0]}, v{S[2]}\nv_max_f32 v{S[2]}, 0, v{S[2]}')
    e(f'v_add_f32 v{S[2]}, {f2u(1e-5)}, v{S[2]}\nv_rsq_f32 v{S[2]}, v{S[2]}\ns_nop 0\nv_mul_f32 v{S[0]}, -v{S[0]}, v{S[2]}')
    for p in range(16):
        tb = 32 + 8*(p % 2)
        for k in range(4):
            e(f'v_lshlrev_b32 v{tb+2*k}, 16, v{V_G+4*p+k}\nv_and_b32 v{tb+2*k+1}, s43, v{V_G+4*p+k}')
        for j in range(0, 8, 2): e(f'v_pk_fma_f32 v[{tb+j}:{tb+j+1}], v[{tb+j}:{tb+j+1}], v[{S[0]}:{S[0]+1}], v[{S[0]}:{S[0]+1}] op_sel:[0,1,0] op_sel_hi:[1,1,0]')
        wl()
        for k in range(4): e(f'v_cvt_pk_bf16_f32 v{V_G+4*p+k}, v{tb+2*k}, v{tb+2*k+1}')
        lq.issue(f'ds_write_b128 v{V_GW}, v[{V_G+4*p}:{V_G+4*p+3}] offset:{64*p}', 'gw')
        if p % 4 != 3:
            for o in pub_ops(lq): o()
    e('s_waitcnt lgkmcnt(0)\ns_barrier'); lq.drained()
    a.mark('stage')
    ABUF = [8, 12, 24, 28]; CACC = 64; GB = 80; GACC = 128
    V_PA = 3
    e(f's_lshl_b32 s38, s24, 13\nv_add_u32 v{V_GW}, s38, v{V_L16}\nv_add_u32 v{V_GW}, {UC_L}, v{V_GW}')
    for k in range(3):
        e(f's_add_u32 s38, s32, {k+1}\ns_and_b32 s38, s38, 3\ns_mul_i32 s38, s38, 250\ns_add_u32 s38, s38, s49\ns_lshl_b32 s{26+k}, s38, 8\ns_lshl_b32 s38, s38, 15\ns_lshl_b32 s39, s24, 13\ns_add_u32 s{45+k}, s38, s39')
    e(f's_lshl_b32 s37, s49, 6\ns_add_u32 s37, s37, {FC_REL}\ns_lshl_b32 s50, s49, 15')
    pollC_ld = f'buffer_load_dwordx4 v[{V_U}:{V_U+3}], off, {srd(R_FL)}, s37 sc1'
    pn = [0]; pcap = [0]
    def pload():
        k = pn[0]
        if k >= pcap[0]: return False
        pn[0] += 1
        i, s = k // 3, k % 3
        if i == 4: e(f's_add_u32 s{45+s}, s{45+s}, 4096')
        r = pslots[k]
        vt.issue(f'buffer_load_dwordx4 v[{r}:{r+3}], v{V_L16}, {srd(R_FL if nopl else R_OP)}, s{45+s} offen offset:{1024*(i%4)}{plsc}', f'p{i}')
        return True
    def waits(*ws):
        ws = [w for w in ws if w]
        if ws: e('s_waitcnt ' + ' '.join(ws))
    def stage(rc, rg):
        ring = [32 + 4*j for j in range(8)] + ([GACC + 4*j for j in range(4)] if rg is None else [])
        dfc = len(ring) - 2
        pq = []
        if rc == 0:
            while pubn[0] < 32: pq += pub_ops(lq)
        def crd(n):
            c, ip, tt = 2*rc + n // 32, (n // 2) % 16, n % 2; r = ring[n % len(ring)]
            lq.issue(f'ds_read_b128 v[{r}:{r+3}], v{V_CB} offset:{(ip+16*tt)*PITCH + 32*c}', f'c{rc}_{n}')
        def abuild(k, lo, hi):
            c, ip = 2*rc + k // 16, k % 16
            src = V_DW + 8*c + ip // 2
            for r in range(lo, hi): e(f'v_perm_b32 v{ABUF[k%4]+r}, v{src}, v{src}, v{SEL+4*(ip%2)+r}')
        def brd(j, h):
            p = 4*j + rg; r = GB + 8*(j % 2) + 4*h
            lq.issue(f'ds_read_b128 v[{r}:{r+3}], v{V_UCR} offset:{2048*p + 512*h}', f'b{rg}_{j}')
        if rg is not None: brd(0, 0); brd(0, 1)
        if rc is not None:
            for n in range(dfc): crd(n)
            vt.wait(f'dw{rc}')
            abuild(0, 0, 4); abuild(1, 0, 4)
            waits(lq.need(f'c{rc}_3'))
        def gwait(k):
            if rg is not None and k < 32: waits(vt.need(f'w{32*rg + k}'), lq.need(f'b{rg}_{k//8}'))
        if rc is None: gwait(0)
        for k in range(32):
            if rc is not None:
                for tt in range(2):
                    n = 2*k + tt
                    d = CACC + 8*(k // 16) + 4*tt; r = ring[n % len(ring)]; A = ABUF[k % 4]
                    cc = '0' if k % 16 == 0 else f'v[{d}:{d+3}]'
                    e(f'{MF} v[{d}:{d+3}], v[{A}:{A+3}], v[{r}:{r+3}], {cc}')
                    if tt == 1:
                        gwait(k)
                        if rg is None and k % 2 == 1 and k < 31: waits(lq.need(f'c{rc}_{n+4}'))
                    if n + dfc < 64: crd(n + dfc)
                    if rg is None:
                        if tt == 0: wl()
                        else:
                            while pq and pq[0].__name__ in ('st', 'lw'): pq.pop(0)()
                    if k + 2 < 32:
                        if rg is None: abuild(k+2, 2*tt, 2*tt+2)
                        else: abuild(k+2, tt, tt+1)
                    if rg is None:
                        for _ in range(2 + tt):
                            if pq and pq[0].__name__ not in ('st', 'lw'): pq.pop(0)()
            if rg is not None:
                j, e8 = k // 8, k % 8; i = 32*rg + k
                d = GACC + 16*(e8 // 2); Bq = GB + 8*(j % 2) + 4*(e8 % 2)
                cc = '0' if (rg == 0 and j == 0 and e8 % 2 == 0) else f'v[{d}:{d+15}]'
                e(f'{MB} v[{d}:{d+15}], {wreg(i)}, v[{Bq}:{Bq+3}], {cc}')
                if rc is None: gwait(k+1)
                elif k % 2 == 1 and k < 31: waits(lq.need(f'c{rc}_{2*k+5}'))
                if e8 in (1, 2) and j < 3: brd(j+1, e8-1)
                wcap[0] = i + 1 + 64
                if rc is not None:
                    if rg == 0 and k == flagC_n: flagC()
                    if rg == 1 and k == 12: vt.issue(pollC_ld, 'pc')
                    wl()
                    if k % 2 == 0 or rc == 3:
                        if not pload(): wl()
                    if k + 2 < 32: abuild(k+2, 2, 4)
                elif k % 2 == 1:
                    if not pload(): wl()
        for o in pq: o()
        if rc is not None:
            vt.wait('u')
            e('s_nop 7')
            for tt in range(2):
                ur = V_U + 8*rc + 4*tt; tb = [8, 24][tt]
                for q in range(4):
                    e(f'v_lshlrev_b32 v{tb+2*q}, 16, v{ur+q}\nv_and_b32 v{tb+2*q+1}, s43, v{ur+q}')
                for j in range(0, 8, 2):
                    x = CACC + 8*(j//4) + 4*tt + j%4
                    e(f'v_pk_mul_f32 v[{tb+j}:{tb+j+1}], v[{tb+j}:{tb+j+1}], v[{x}:{x+1}]')
                for q in range(4): e(f'v_cvt_pk_bf16_f32 v{ur+q}, v{tb+2*q}, v{tb+2*q+1}')
                e(f'ds_write_b128 v{V_GW}, v[{ur}:{ur+3}] offset:{2048*rc + 1024*tt}')
                wl()
            e('s_waitcnt lgkmcnt(0)\ns_barrier'); lq.drained()
    stage(0, None)
    assert pubn[0] == 32
    e(f's_cmp_lt_u32 s48, 125\ns_cbranch_scc1 {name}_cont')
    e('s_waitcnt vmcnt(0)')
    e(f'buffer_store_dword v{V_ONE}, off, {srd(R_FL)}, s36 sc1')
    a.endpgm(kidx)
    a.label(f'{name}_cont')
    a.mark('c0')
    stage(1, 0)
    a.mark('c1')
    stage(2, 1)
    a.mark('c2')
    vt.wait('pc')
    def fixown():
        for k in range(4): e(f's_cmp_eq_u32 s32, {k}\ns_cselect_b32 s38, 1, 0\nv_or_b32 v{V_U+k}, s38, v{V_U+k}')
    poll([pollC_ld], [V_U+k for k in range(4)], fixown)
    a.mark('pc1')
    pcap[0] = 18
    stage(3, 2)
    a.mark('c3')
    pcap[0] = 24
    LM = 32
    e(f'v_and_b32 v{V_PA}, 0xf0, v{V_L16}')
    for k in range(3): vt.issue(f'buffer_load_dwordx4 v[{LM+4*k}:{LM+4*k+3}], v{V_PA}, {srd(R_Q)}, s{26+k} offen sc1', 'L')
    e(f'v_add_u32 v{V_PA}, {LL_L}, v{V_PA}')
    lq.issue(f'ds_read_b128 v[{LM+12}:{LM+15}], v{V_PA}', 'ol')
    OWN = [48, 52, 56, 60, 64, 68, 72, 76]
    for i in range(8): lq.issue(f'ds_read_b128 v[{OWN[i]}:{OWN[i]+3}], v{V_GW} offset:{32768 + 1024*i}', 'own')
    stage(None, 3)
    a.mark('gemm1')
    vt.wait('L')
    V_LS = 8
    for qt in range(2):
        L = [LM + 4*s + qt for s in range(4)]; l = [LM + 4*s + 2 + qt for s in range(4)]; t = 16 + qt
        e(f'v_min3_f32 v{t}, v{L[0]}, v{L[1]}, v{L[2]}\nv_min_f32 v{t}, v{t}, v{L[3]}')
        for x in L: e(f'v_sub_f32 v{x}, v{t}, v{x}')
        for x in L: e(f'v_exp_f32 v{x}, v{x}')
        e(f's_nop 0\nv_mul_f32 v{t}, v{L[0]}, v{l[0]}')
        for k in range(1, 4): e(f'v_fmac_f32 v{t}, v{L[k]}, v{l[k]}')
        e(f'v_rcp_f32 v{t}, v{t}\ns_nop 0')
        for s_, x in enumerate(L): e(f'v_mul_f32 v{V_LS+2*s_+qt}, v{x}, v{t}')
        wl()
    for i in range(8):
        vt.wait(f'p{i}')
        qt = i % 2; tb = 16; ac = 24
        for s in range(4):
            src = OWN[i] if s == 3 else pslots[3*i + s]
            for k in range(4):
                e(f'v_lshlrev_b32 v{tb+2*k}, 16, v{src+k}\nv_and_b32 v{tb+2*k+1}, s43, v{src+k}')
            wv = V_LS + 2*s
            for j in range(0, 8, 2):
                if s == 0: e(f'v_pk_mul_f32 v[{ac+j}:{ac+j+1}], v[{tb+j}:{tb+j+1}], v[{wv}:{wv+1}] op_sel:[0,{qt}] op_sel_hi:[1,{qt}]')
                else: e(f'v_pk_fma_f32 v[{ac+j}:{ac+j+1}], v[{tb+j}:{tb+j+1}], v[{wv}:{wv+1}], v[{ac+j}:{ac+j+1}] op_sel:[0,{qt},0] op_sel_hi:[1,{qt},1]')
            if s == 3: wcap[0] = 192 + 3*i + 3
            wl()
        o = OWN[i]
        for k in range(4): e(f'v_cvt_pk_bf16_f32 v{o+k}, v{ac+2*k}, v{ac+2*k+1}')
        e(f'ds_write_b128 v{V_GW}, v[{o}:{o+3}] offset:{32768 + 1024*i}')
    while wl(): pass
    e('s_waitcnt lgkmcnt(0)\ns_barrier')
    a.mark('comb')
    V_X = 64
    xq = [(lambda k=k: vt.issue(f'buffer_load_dwordx4 v[{V_X+4*k}:{V_X+4*k+3}], v{V_XO}, {srd(R_AUX)}, s50 offen offset:{32*k}', 'x')) for k in range(8)]
    def brd2(p, h):
        r = 32 + 8*(p % 4) + 4*h
        e(f'ds_read_b128 v[{r}:{r+3}], v{V_UCR} offset:{32768 + 2048*p + 512*h}')
    for p in range(2):
        for h in range(2): brd2(p, h)
    waits(vt.need('w128'), 'lgkmcnt(2)')
    for i in range(128, 256):
        p, e8 = (i - 128) // 8, i % 8
        d = GACC + 16*(e8 // 2); Bq = 32 + 8*(p % 4) + 4*(e8 % 2)
        e(f'{MB} v[{d}:{d+15}], {wreg(i)}, v[{Bq}:{Bq+3}], v[{d}:{d+15}]')
        if i < 255: waits(vt.need(f'w{i+1}'), f'lgkmcnt({2 if p < 14 else 0})' if e8 == 7 else None)
        wcap[0] = i + 1 + 88
        if e8 in (1, 3) and p + 2 < 16: brd2(p+2, e8 // 2)
        if i % 2 == 0 and not wl() and xq: xq.pop(0)()
    assert not xq
    a.mark('gemm2')
    vt.wait('x')
    e('s_nop 7\ns_nop 7')
    for k in range(8):
        xr = V_X + 4*k; tb = 16 + 8*(k % 2)
        for q in range(4):
            e(f'v_lshlrev_b32 v{tb+2*q}, 16, v{xr+q}\nv_and_b32 v{tb+2*q+1}, s43, v{xr+q}')
        for j in range(0, 8, 2):
            x = GACC + 8*k + j
            e(f'v_pk_add_f32 v[{tb+j}:{tb+j+1}], v[{tb+j}:{tb+j+1}], v[{x}:{x+1}]')
        for q in range(4): e(f'v_cvt_pk_bf16_f32 v{xr+q}, v{tb+2*q}, v{tb+2*q+1}')
        e(f'buffer_store_dwordx4 v[{xr}:{xr+3}], v{V_XO}, {srd(R_OUT)}, s50 offen offset:{32*k}')
    a.endpgm(kidx)
    for sp in slow: sp()
    a.label(f'{name}_end')
    e('s_endpgm')
    a.end(name, 512, 102, 256)
    a.launch(name, 256, 256, 4*SLOT)
```

```python
import sys
sys.path.insert(0,'dev')
from asmlib import Asm
from layout import *
MF='v_mfma_f32_16x16x32_bf16'
import struct
def f2u(x): return struct.unpack('<I', struct.pack('<f', x))[0]
QSCALE = 512**-0.5 * 1.4426950408889634
PITCH = 1040
BREG = 64*PITCH

def k0_kernel(a, name, kidx=0):
    e = a.e
    a.begin(name)
    e(f's_cmp_ge_u32 s2, 256\ns_cbranch_scc1 {name}_end')
    a.stamp_begin()
    e('s_load_dwordx16 s[36:51], s[0:1], 0')
    e('s_load_dwordx2 s[52:53], s[0:1], 64')
    e('s_load_dwordx2 s[4:5], s[0:1], 88')
    e('v_lshrrev_b32 v9, 6, v0\nv_and_b32 v0, 63, v0\ns_nop 0\nv_readfirstlane_b32 s24, v9')
    a.touch_code(name, 'main_kernel_end', 64, 10, 95, 24, 2)
    e('v_lshlrev_b32 v1, 4, v0')
    e('v_and_b32 v2, 15, v0\nv_lshrrev_b32 v3, 4, v0')
    e('''v_lshrrev_b32 v4, 3, v0
    v_and_b32 v5, 7, v0
    v_and_b32 v6, 2, v4
    v_lshlrev_b32 v6, 1, v6
    v_xor_b32 v5, v5, v6
    v_lshlrev_b32 v5, 4, v5''')
    e('s_and_b32 s54, s24, 1\ns_bfe_u32 s55, s24, 0x10001\ns_lshr_b32 s56, s24, 2')
    e('s_waitcnt lgkmcnt(0)')
    a.srd(8, 36, XA_SZ); a.srd(20, 4, XA_SZ, XA_OFF)
    e('s_lshl_b32 s60, s2, 3\ns_add_u32 s60, s60, s24\ns_lshl_b32 s60, s60, 12')
    for r in range(4): e(f'buffer_load_dwordx4 v[{16+4*r}:{19+4*r}], v1, s[8:11], s60 offen offset:{1024*r}')
    e(f's_mul_i32 s29, s24, {8*PITCH}')
    def rows_dma(srd, off0, off1, ldsadd):
        for i in range(8):
            e(f's_add_u32 m0, s29, {ldsadd + i*PITCH - (i%4)*1024}\ns_nop 0')
            e(f'buffer_load_dwordx4 v1, s[{srd}:{srd+3}], s{off0 if i < 4 else off1} offen offset:{(i%4)*1024} lds')
    e(f's_cmp_ge_u32 s2, 64\ns_cbranch_scc1 {name}_notM')
    e('s_and_b32 s25, s2, 7\ns_lshr_b32 s26, s2, 3')
    a.srd(12, 38, 524288); a.srd(16, 40, 524288)
    e('s_lshl_b32 s27, s54, 8\ns_lshr_b32 s28, s24, 1\ns_lshl_b32 s28, s28, 2\ns_add_u32 s27, s27, s28\ns_lshl_b32 s27, s27, 10')
    e('s_lshl_b32 s30, s25, 14\ns_add_u32 s30, s30, s27\ns_add_u32 s31, s30, 131072')
    e('s_lshl_b32 s32, s26, 14\ns_add_u32 s32, s32, s27\ns_add_u32 s33, s32, 131072')
    rows_dma(12, 30, 31, 0)
    rows_dma(16, 32, 33, BREG)
    e('s_mov_b32 s61, 0')
    e(f's_branch {name}_ln')
    a.label(f'{name}_notM')
    e(f's_cmp_ge_u32 s2, 192\ns_cbranch_scc1 {name}_notW')
    e('s_lshr_b32 s25, s2, 7\ns_and_b32 s26, s2, 7\ns_bfe_u32 s27, s2, 0x30003')
    a.srd(16, 52, 1024*1024)
    e('s_cmp_eq_u32 s25, 0\ns_cselect_b32 s12, s44, s50\ns_cselect_b32 s13, s45, s51\ns_mov_b32 s14, 524288\ns_mov_b32 s15, 0x20000')
    e('s_lshl_b32 s30, s56, 5\ns_lshl_b32 s31, s55, 2\ns_add_u32 s30, s30, s31\ns_lshl_b32 s31, s54, 4\ns_add_u32 s30, s30, s31\ns_lshl_b32 s31, s24, 3')
    e('s_cmp_eq_u32 s25, 0\ns_cselect_b32 s30, s30, s31\ns_cselect_b32 s31, 8, 4\ns_lshl_b32 s32, s27, 6\ns_add_u32 s30, s30, s32\ns_add_u32 s31, s31, s30')
    e('s_lshl_b32 s30, s30, 10\ns_lshl_b32 s31, s31, 10')
    rows_dma(12, 30, 31, 0)
    e('v_lshl_add_u32 v7, v4, 10, v5')
    e('s_lshl_b32 s28, s25, 19\ns_lshl_b32 s32, s26, 7\ns_add_u32 s28, s28, s32\ns_lshl_b32 s32, s24, 16\ns_add_u32 s28, s28, s32\ns_lshl_b32 s32, s24, 13')
    for i in range(8):
        e(f's_add_u32 m0, s32, {BREG + i*1024}\ns_nop 0\nbuffer_load_dwordx4 v7, s[16:19], s28 offen lds\ns_add_u32 s28, s28, 8192')
    e('s_mov_b32 s61, 1')
    e(f's_branch {name}_ln')
    a.label(f'{name}_notW')
    e('s_sub_u32 s25, s2, 192\ns_and_b32 s26, s25, 3\ns_lshr_b32 s25, s25, 2')
    a.srd(12, 46, 1024*1024)
    e('v_lshl_add_u32 v7, v4, 11, v5')
    e('s_lshr_b32 s28, s24, 1\ns_lshl_b32 s28, s28, 18\ns_lshl_b32 s30, s26, 16\ns_add_u32 s28, s28, s30\ns_lshl_b32 s30, s54, 15\ns_add_u32 s28, s28, s30\ns_lshl_b32 s30, s25, 7\ns_add_u32 s28, s28, s30\ns_lshl_b32 s30, s24, 11')
    for i in range(2):
        e(f's_add_u32 m0, s30, {i*1024}\ns_nop 0\nbuffer_load_dwordx4 v7, s[12:15], s28 offen lds\ns_add_u32 s28, s28, 16384')
    a.srd(16, 48, 31*1024)
    e('s_sub_u32 s33, s2, 252\ns_lshl_b32 s33, s33, 3\ns_add_u32 s33, s33, s24\ns_cmp_ge_u32 s2, 252\ns_cselect_b32 s33, s33, 0x8000\ns_lshl_b32 s34, s33, 5')
    e('v_and_b32 v8, 1, v3\nv_lshlrev_b32 v8, 14, v8\nv_lshl_add_u32 v8, v2, 1, v8')
    for ip in range(13):
        e(f'buffer_load_ushort v{80+ip}, v8, s[16:19], s34 offen offset:{1024*(ip%4)}')
        if ip % 4 == 3: e('s_add_u32 s34, s34, 4096')
    a.srd(68, 42, 524288)
    e('s_sub_u32 s58, s2, 192\ns_lshl_b32 s58, s58, 3\ns_add_u32 s58, s58, s24\ns_lshr_b32 s59, s58, 4\ns_lshl_b32 s59, s59, 14\ns_and_b32 s57, s58, 15\ns_lshl_b32 s57, s57, 6\ns_add_u32 s59, s59, s57')
    e('v_lshlrev_b32 v13, 10, v2\nv_lshl_add_u32 v13, v3, 4, v13')
    e('buffer_load_dwordx4 v[76:79], v13, s[68:71], s59 offen')
    e('s_mov_b32 s61, 2')
    a.label(f'{name}_ln')
    e(f's_mov_b32 s62, 0xffff0000\ns_mov_b32 s63, {f2u(1/512)}\nv_mov_b32 v10, {f2u(1e-5)}')
    e('s_waitcnt vmcnt(16)')
    a.stamp_mid(0)
    def allsum(regs, tmps):
        for sh in (8, 4, 2, 1):
            for x in regs: e(f'v_add_f32_dpp v{x}, v{x}, v{x} row_ror:{sh} row_mask:0xf bank_mask:0xf')
        for sw in ('16', '32'):
            for x, t in zip(regs, tmps): e(f'v_mov_b32 v{t}, v{x}')
            e('s_nop 0')
            for x, t in zip(regs, tmps): e(f'v_permlane{sw}_swap_b32 v{t}, v{x}')
            e('s_nop 0')
            for x, t in zip(regs, tmps): e(f'v_add_f32 v{x}, v{x}, v{t}')
    X = lambda r, j: 32 + 8*r + j
    S = [64, 65, 66, 67]; Tm = [68, 69, 70, 71]
    for r in range(4):
        src = 16 + 4*r
        for k in range(4):
            e(f'v_lshlrev_b32 v{X(r,2*k)}, 16, v{src+k}\nv_and_b32 v{X(r,2*k+1)}, s62, v{src+k}')
    for r in range(4): e(f'v_add_f32 v{S[r]}, v{X(r,0)}, v{X(r,1)}')
    for j in range(2, 8):
        for r in range(4): e(f'v_add_f32 v{S[r]}, v{S[r]}, v{X(r,j)}')
    allsum(S, Tm)
    for r in range(4): e(f'v_mul_f32 v{S[r]}, s63, v{S[r]}')
    for j in range(8):
        for r in range(4): e(f'v_sub_f32 v{X(r,j)}, v{X(r,j)}, v{S[r]}')
    for r in range(4): e(f'v_mul_f32 v{S[r]}, v{X(r,0)}, v{X(r,0)}')
    for j in range(1, 8):
        for r in range(4): e(f'v_fmac_f32 v{S[r]}, v{X(r,j)}, v{X(r,j)}')
    allsum(S, Tm)
    for r in range(4): e(f'v_fma_f32 v{S[r]}, v{S[r]}, s63, v10')
    for r in range(4): e(f'v_rsq_f32 v{S[r]}, v{S[r]}')
    e('s_nop 0')
    for j in range(8):
        for r in range(4): e(f'v_mul_f32 v{X(r,j)}, v{X(r,j)}, v{S[r]}')
    for r in range(4):
        for k in range(4): e(f'v_cvt_pk_bf16_f32 v{16+4*r+k}, v{X(r,2*k)}, v{X(r,2*k+1)}')
    for r in range(4):
        e(f'buffer_store_dwordx4 v[{16+4*r}:{19+4*r}], v1, s[20:23], s60 offen offset:{1024*r}')
    a.srd(20, 4, FLAG_SZ, FLAG_OFF)
    e('s_lshl_b32 s57, s24, 8\ns_add_u32 s57, s57, s2\ns_lshl_b32 s57, s57, 10')
    for k in range(4): e(f'v_mov_b32 v{72+k}, 0')
    e('buffer_store_dwordx4 v[72:75], v1, s[20:23], s57 offen')
    a.stamp_mid(1)
    e('s_waitcnt vmcnt(5)\ns_barrier')
    a.stamp_mid(2)
    a.srd(20, 4, WS_SZ)
    e(f's_cmp_eq_u32 s61, 2\ns_cbranch_scc1 {name}_up2')
    e(f'v_mul_u32_u24 v6, {PITCH}, v2\nv_lshl_add_u32 v6, v3, 8, v6')
    e(f's_mul_i32 s30, s54, {32*PITCH}\nv_add_u32 v7, s30, v6')
    def gemm(bread, nb):
        def rd(st):
            r = 32 + 12*(st % 4)
            for jj in range(2): e(f'ds_read_b128 v[{r+4*jj}:{r+4*jj+3}], v7 offset:{jj*16*PITCH + 16*st}')
            bread(st, r+8)
        for st in range(3): rd(st)
        for st in range(16):
            e(f's_waitcnt lgkmcnt({(2+nb)*min(2,15-st)})')
            r = 32 + 12*(st % 4)
            for jj in range(2):
                d = 16 + 4*jj
                c = '0' if st == 0 else f'v[{d}:{d+3}]'
                e(f'{MF} v[{d}:{d+3}], v[{r+4*jj}:{r+4*jj+3}], v[{r+8}:{r+11}], {c}')
            if st + 3 < 16: rd(st+3)
        e('s_nop 7')
    e(f's_cmp_eq_u32 s61, 1\ns_cbranch_scc1 {name}_w2')
    e(f's_lshl_b32 s30, s55, 1\ns_add_u32 s30, s30, s56\ns_mul_i32 s30, s30, {16*PITCH}\ns_add_u32 s30, s30, {BREG}\nv_add_u32 v8, s30, v6')
    gemm(lambda st, r: e(f'ds_read_b128 v[{r}:{r+3}], v8 offset:{16*st}'), 1)
    e(f's_mov_b32 s33, {f2u(QSCALE)}')
    for i in range(8): e(f'v_mul_f32 v{16+i}, s33, v{16+i}')
    for k in range(4): e(f'v_cvt_pk_bf16_f32 v{24+k}, v{16+2*k}, v{16+2*k+1}')
    e(f's_lshl_b32 s28, s26, 1\ns_add_u32 s28, s28, s55\ns_lshl_b32 s28, s28, 15\ns_lshl_b32 s30, s25, 1\ns_add_u32 s30, s30, s54\ns_lshl_b32 s30, s30, 11\ns_add_u32 s28, s28, s30\ns_lshl_b32 s30, s56, 10\ns_add_u32 s28, s28, s30\ns_add_u32 s28, s28, {WA_OFF}')
    e('buffer_store_dwordx4 v[24:27], v1, s[20:23], s28 offen')
    a.endpgm(kidx)
    a.label(f'{name}_w2')
    e('''v_bfe_u32 v9, v0, 2, 2
    v_lshl_add_u32 v8, v3, 7, v9
    v_lshlrev_b32 v8, 7, v8
    v_and_b32 v11, 3, v0
    v_and_b32 v9, 2, v9
    v_lshlrev_b32 v9, 1, v9
    v_or_b32 v11, v11, v9''')
    e(f's_lshl_b32 s30, s55, 2\nv_xor_b32 v11, s30, v11\nv_lshl_add_u32 v8, v11, 4, v8\ns_lshl_b32 s30, s56, 3\ns_add_u32 s30, s30, {BREG}\nv_add_u32 v8, s30, v8')
    def wb(st, r):
        for x in range(2): e(f'ds_read_b64_tr_b16 v[{r+2*x}:{r+2*x+1}], v8 offset:{(8*st+4*x)*128}')
    gemm(wb, 2)
    for k in range(4): e(f'v_cvt_pk_bf16_f32 v{24+k}, v{16+2*k}, v{16+2*k+1}')
    e('s_lshl_b32 s35, s26, 2\ns_lshl_b32 s33, s55, 1\ns_add_u32 s35, s35, s33\ns_add_u32 s35, s35, s56\ns_lshl_b32 s30, s27, 1\ns_add_u32 s30, s30, s54')
    e(f's_lshl_b32 s28, s35, 14\ns_lshl_b32 s29, s30, 10\ns_add_u32 s28, s28, s29\ns_add_u32 s28, s28, {W1_OFF}')
    e(f's_lshr_b32 s29, s35, 3\ns_lshl_b32 s29, s29, 4\ns_add_u32 s29, s29, s30\ns_lshl_b32 s29, s29, 13\ns_and_b32 s33, s35, 7\ns_lshl_b32 s33, s33, 10\ns_add_u32 s29, s29, s33\ns_add_u32 s29, s29, {WF_OFF}')
    e('s_cmp_eq_u32 s25, 0\ns_cselect_b32 s28, s28, s29')
    e('buffer_store_dwordx4 v[24:27], v1, s[20:23], s28 offen')
    a.endpgm(kidx)
    a.label(f'{name}_up2')
    for ip in range(13, 16):
        e(f'buffer_load_ushort v{80+ip}, v8, s[16:19], s34 offen offset:{1024*(ip%4)}')
    e(f's_lshl_b32 s58, s58, 10\ns_add_u32 s58, s58, {WV_OFF}')
    e('buffer_store_dwordx4 v[76:79], v1, s[20:23], s58 offen')
    e('''v_bfe_u32 v6, v0, 2, 2
    v_lshl_add_u32 v7, v3, 5, v6
    v_lshlrev_b32 v7, 7, v7
    v_and_b32 v9, 3, v0
    v_and_b32 v6, 2, v6
    v_lshlrev_b32 v6, 5, v6''')
    e('s_cmp_lt_u32 s25, 8\ns_cselect_b32 s30, 3, 4\ns_cselect_b32 s31, 32, 8')
    e('v_lshlrev_b32 v9, s30, v9\nv_add_u32 v7, v7, v9\ns_and_b32 s35, s24, 3\ns_lshl_b32 s32, s35, 10\nv_add_u32 v7, s32, v7')
    e('s_lshl_b32 s32, s56, 6\nv_xor_b32 v6, s32, v6\nv_add_u32 v11, v7, v6\nv_add_u32 v12, s31, v11')
    for f in range(2):
        for x in range(2): e(f'ds_read_b64_tr_b16 v[{16+4*f+2*x}:{16+4*f+2*x+1}], v{11+f} offset:{512*x}')
    e(f's_lshl_b32 s28, s25, 1\ns_add_u32 s28, s28, s56\ns_lshl_b32 s28, s28, 15\ns_add_u32 s28, s28, {WA_OFF + 524288}\ns_lshl_b32 s29, s26, 2\ns_add_u32 s29, s29, s35\ns_lshl_b32 s29, s29, 11\ns_add_u32 s28, s28, s29')
    e('s_waitcnt lgkmcnt(0)')
    for f in range(2):
        e(f'buffer_store_dwordx4 v[{16+4*f}:{19+4*f}], v1, s[20:23], s28 offen offset:{1024*f}')
    a.srd(20, 4, DW_SZ, DW_OFF)
    e('s_lshl_b32 s28, s33, 11\ns_waitcnt vmcnt(3)')
    for q in range(8): e(f'v_lshl_or_b32 v{32+q}, v{81+2*q}, 16, v{80+2*q}')
    e('buffer_store_dwordx4 v[32:35], v1, s[20:23], s28 offen\nbuffer_store_dwordx4 v[36:39], v1, s[20:23], s28 offen offset:1024')
    a.endpgm(kidx)
    a.label(f'{name}_end')
    e('s_endpgm')
    a.end(name, 96, 102)
    a.launch(name, 256, 512, 128*PITCH)

if __name__ == '__main__':
    a = Asm(); a.diag = True; k0_kernel(a, 'prep_kernel')
    open('k0.s','w').write(a.text())
```

```python
import sys
sys.path.insert(0,'dev')
from asmlib import Asm
from k0 import k0_kernel
from fused import fused_kernel
HDR = open('standalone__conformer_family_branchformer__speech.s.ref').read().split('; Override launch')[0].rstrip()
def build(diag, marks=(), **kw):
    a = Asm(); a.diag = diag; a.marks = list(marks)
    k0_kernel(a, 'prep_kernel', 0); fused_kernel(a, 'main_kernel', 1, **kw)
    return a.text(HDR)
M0=['x0','u3','attn0','attn1','stage','c3','gemm1','comb']
MA=['x0','u1','u3','u5','u7','u9','u11','attn0']
MB=['attn1','stage','c0','c1','c2','c3','gemm1','comb']
MC=['attn1','stage','c1','pc1','c3','gemm1','comb','gemm2']
ML=['attn0','loop0','sp2','b4','attn1']
if __name__ == '__main__':
    open('full_diag.s','w').write(build(True, M0))
    open('full_diagA.s','w').write(build(True, MA))
    open('full_diagB.s','w').write(build(True, MB))
    open('standalone__conformer_family_branchformer__speech.s','w').write(build(False))
    for spec in sys.argv[1:]:
        nm, marks, kw = spec.split('|')
        open(f'x_diag_{nm}.s','w').write(build(True, eval(marks), **eval(f'dict({kw})')))
```

```python
import re
class Asm:
    def __init__(self):
        self.lines = []
        self.kernels = []
        self.launches = []
        self.uid = 0
    def e(self, s=''):
        for l in s.split('\n'):
            m = re.search(r'offset:(\d+)', l)
            if m:
                lim = 4095 if l.strip().startswith('buffer') else 65535
                assert int(m.group(1)) <= lim, l
            self.lines.append(l.strip())
    def label(self, name):
        self.lines.append(name + ':')
    def newlabel(self, p='L'):
        self.uid += 1
        return f'{p}_{self.uid}'
    def begin(self, name):
        self.lines += ['.text', f'.globl {name}', '.p2align 8', f'.type {name},@function', f'{name}:']
    def end(self, name, vgpr, sgpr=102, accum=None):
        if accum is None: accum = min(256, (vgpr + 3) // 4 * 4)
        self.kernels.append((name, vgpr, sgpr, accum))
    def launch(self, name, grid, block, lds):
        self.launches.append(f'; @launch kernel={name} grid=({grid},1,1) block=({block},1,1) lds={lds}')
    def text(self, header=''):
        out = [header] if header else []
        out += self.launches
        out.append('.amdgcn_target "amdgcn-amd-amdhsa--gfx950"')
        from align import align
        body, self.mis = align(self.lines, self.pad) if self.do_align else (self.lines, -1)
        out += body
        out.append('.section .rodata,"a"')
        for name, v, s, a in self.kernels:
            out += ['.p2align 6', f'.amdhsa_kernel {name}',
                    f'  .amdhsa_next_free_vgpr {v}', f'  .amdhsa_next_free_sgpr {s}', f'  .amdhsa_accum_offset {a}',
                    '  .amdhsa_group_segment_fixed_size 0', '  .amdhsa_kernarg_size 96', '  .amdhsa_user_sgpr_count 2',
                    '  .amdhsa_user_sgpr_kernarg_segment_ptr 1', '  .amdhsa_system_sgpr_workgroup_id_x 1',
                    '.end_amdhsa_kernel']
        return '\n'.join(out) + '\n'
    def srd(self, d, base, nbytes, off=0):
        if off:
            self.e(f's_add_u32 s{d}, s{base}, {off & 0xffffffff}')
            self.e(f's_addc_u32 s{d+1}, s{base+1}, {off >> 32}')
        else:
            self.e(f's_mov_b32 s{d}, s{base}')
            self.e(f's_mov_b32 s{d+1}, s{base+1}')
        self.e(f's_mov_b32 s{d+2}, {nbytes}')
        self.e(f's_mov_b32 s{d+3}, 0x00020000')

    diag = False
    def stamp_begin(self):
        if self.diag:
            self.e('s_memrealtime s[96:97]\ns_memtime s[98:99]\ns_mov_b32 s95, s2\nv_lshrrev_b32 v1, 6, v0\ns_nop 1\nv_readfirstlane_b32 s94, v1\ns_waitcnt lgkmcnt(0)')
    def stamp_mid(self, i):
        if self.diag:
            if self.dual: self.e(f's_memtime s[{76+4*i}:{77+4*i}]\ns_memrealtime s[{78+4*i}:{79+4*i}]')
            else: self.e(f's_memtime s[{76+2*i}:{77+2*i}]')
    def touch_code(self, lo, hi, sreg, vtmp, vdst, wave_sreg, n, lane='v0', issue=None):
        e = self.e
        here = self.newlabel('pc')
        e(f's_getpc_b64 s[{sreg}:{sreg+1}]')
        self.label(here)
        e(f's_add_u32 s{sreg}, s{sreg}, {lo}-{here}\ns_addc_u32 s{sreg+1}, s{sreg+1}, ({lo}-{here})>>32')
        e(f's_mul_i32 s{sreg+2}, s{wave_sreg}, {n*8192}')
        e(f'v_lshlrev_b32 v{vtmp}, 7, {lane}\nv_add_u32 v{vtmp}, s{sreg+2}, v{vtmp}')
        for k in range(n):
            e(f'v_min_u32 v{vtmp+1}, {hi}-{lo}-4, v{vtmp}')
            op = f'global_load_dword v{vdst}, v{vtmp+1}, s[{sreg}:{sreg+1}]'
            if issue: issue(op)
            else: e(op)
            if k + 1 < n: e(f'v_add_u32 v{vtmp}, 8192, v{vtmp}')
    marks = []
    dual = False
    do_align = True
    pad = False
    def mark(self, nm):
        if nm in self.marks: self.stamp_mid(self.marks.index(nm))
    def endpgm(self, kidx):
        if self.diag:
            from layout import STAMP_OFF
            e = self.e
            e('s_waitcnt vmcnt(0) lgkmcnt(0)\ns_memrealtime s[92:93]\ns_memtime s[100:101]\ns_load_dwordx2 s[6:7], s[0:1], 88\ns_waitcnt lgkmcnt(0)')
            self.srd(8, 6, 1<<20, STAMP_OFF + kidx*(1<<20))
            e('s_mov_b64 exec, -1')
            e('v_mov_b32 v8, s96\nv_mov_b32 v9, s92\ns_sub_u32 s100, s100, s98\nv_mov_b32 v10, s100\nv_mov_b32 v11, 0')
            for i in range(8):
                e(f's_sub_u32 s{76+2*i}, s{76+2*i}, s{96 if (self.dual and i%2) else 98}\nv_mov_b32 v{12+i}, s{76+2*i}')
            e('v_mov_b32 v4, 0\ns_lshl_b32 s95, s95, 3\ns_add_u32 s95, s95, s94\ns_lshl_b32 s95, s95, 6')
            e('buffer_store_dwordx4 v[8:11], v4, s[8:11], s95 offen\nbuffer_store_dwordx4 v[12:15], v4, s[8:11], s95 offen offset:16\nbuffer_store_dwordx4 v[16:19], v4, s[8:11], s95 offen offset:32')
        self.e('s_endpgm')
```

```python
import sys
sys.path.insert(0,'dev')
from asmlib import Asm
from layout import *
import struct
def f2u(x): return struct.unpack('<I', struct.pack('<f', x))[0]
MF='v_mfma_f32_16x16x32_bf16'
PITCH = 1040; SLOT = 32*PITCH
C0 = -2*0.7978845608028654*1.4426950408889634
C1 = C0*0.044715
THRESH = 0x41f00000
SPIN_MAX = 1 << 20

class VQ:
    def __init__(s, e, lim=63): s.e = e; s.q = []; s.done = 0; s.lim = lim
    def issue(s, op, tag):
        if len(s.q) - s.done >= s.lim:
            s.e(f's_waitcnt vmcnt({s.lim-1})'); s.done = len(s.q) - (s.lim-1)
        s.e(op); s.q.append(tag)
    def need(s, tag):
        i = max(k for k, t in enumerate(s.q) if t == tag)
        if i < s.done: return None
        s.done = i + 1
        return f'vmcnt({len(s.q) - 1 - i})'
    def wait(s, tag, extra=''):
        w = s.need(tag)
        if w or extra: s.e(('s_waitcnt ' + (w or '') + ' ' + extra).strip())
    def drain(s):
        s.e('s_waitcnt vmcnt(0)'); s.done = len(s.q)

class LQ:
    def __init__(s, e): s.e = e; s.q = []; s.done = 0
    def issue(s, op, tag):
        if len(s.q) - s.done >= 15:
            s.e('s_waitcnt lgkmcnt(12)'); s.done = len(s.q) - 12
        s.e(op); s.q.append(tag)
    def need(s, tag):
        i = max(k for k, t in enumerate(s.q) if t == tag)
        if i < s.done: return None
        s.done = i + 1
        return f'lgkmcnt({len(s.q) - 1 - i})'
    def drained(s): s.done = len(s.q)

R_XA=8; R_WS=12; R_AUX=16; R_OUT=20; R_Q=52; R_U=56; R_G=60; R_GL=64; R_OP=68; R_FL=72
def srd(r): return f's[{r}:{r+3}]'
V_L16=1

def fused_kernel(a, name, kidx=1, order=(0,2,1), DF=7, W=2, AW=2, dlate=False, nodma=False, f16=True, t16=False, xpf=True, pre=0, vper=2, npub=(0,22,10), fC=8, pC=30, pD=12, nobar=False, flagA_unit=None, pollA_unit=None, flagC_n=8, pf=True, dcost=1, psc=' sc1', FDF=12, nopl=False, nopub=False, wpf=False, plsc=' sc1'):
    e = a.e
    a.begin(name)
    e(f's_cmp_ge_u32 s2, 256\ns_cbranch_scc1 {name}_end')
    a.stamp_begin()
    e(f's_load_dwordx2 s[4:5], s[0:1], 88\ns_load_dwordx2 s[{R_AUX}:{R_AUX+1}], s[0:1], 0\ns_load_dwordx2 s[{R_OUT}:{R_OUT+1}], s[0:1], 72')
    e('s_and_b32 s30, s2, 7\ns_lshr_b32 s31, s2, 3\ns_and_b32 s32, s31, 3\ns_lshr_b32 s31, s31, 2\ns_lshl_b32 s30, s30, 3\ns_add_u32 s30, s30, s31')
    e('s_lshr_b32 s33, s30, 5\ns_and_b32 s34, s30, 31')
    e('v_lshrrev_b32 v9, 6, v0\nv_and_b32 v0, 63, v0\ns_nop 0\nv_readfirstlane_b32 s24, v9')
    vq = VQ(e)
    if pf: a.touch_code(name, f'{name}_R0', 60, 10, 120, 24, 2, issue=lambda op: vq.issue(op, 'tc'))
    e(f'v_lshlrev_b32 v{V_L16}, 4, v0')
    e('s_mul_i32 s25, s33, 4000\ns_lshl_b32 s39, s34, 7\ns_add_u32 s25, s25, s39\ns_lshl_b32 s39, s24, 3\ns_add_u32 s25, s25, s39\ns_lshl_b32 s25, s25, 10')
    e(f's_mul_i32 s35, s24, {8*PITCH}\ns_sub_u32 s35, s35, 65536')
    e(f's_cmp_gt_u32 s32, 0\ns_cselect_b32 s38, 1, 0\ns_cselect_b32 s39, {SLOT}, 0\ns_add_u32 s27, s35, s39')
    e(f's_cmp_gt_u32 s32, 0\ns_cselect_b32 s28, 0, {3*SLOT}\ns_add_u32 s28, s28, s35')
    e('s_lshl_b32 s45, s32, 2\ns_add_u32 s45, s45, s24')
    e(f's_lshl_b32 s46, s45, 15\ns_add_u32 s46, s46, {WA_OFF}')
    e('s_waitcnt lgkmcnt(0)')
    a.srd(R_XA, 4, XA_SZ, XA_OFF); a.srd(R_WS, 4, WS_SZ)
    slow = []
    def poll(loads, regs, back_tag):
        lbl = a.newlabel(name + '_sp'); back = a.newlabel(name + '_bk')
        def chk():
            if back_tag: back_tag()
            for r in regs[1:]: e(f'v_and_b32 v{regs[0]}, v{regs[0]}, v{r}')
            e(f'v_cmp_ne_u32 vcc, 1, v{regs[0]}')
        chk()
        e(f's_cbranch_vccnz {lbl}')
        a.label(back)
        def sp():
            a.label(lbl)
            e(f's_mov_b32 s3, {SPIN_MAX}')
            l2 = a.newlabel(name + '_sl'); a.label(l2)
            e('s_sleep 4')
            for l in loads: e(l)
            e('s_waitcnt vmcnt(0)')
            chk()
            e(f's_cbranch_vccz {back}')
            e(f's_sub_u32 s3, s3, 1\ns_cmp_lg_u32 s3, 0\ns_cbranch_scc1 {l2}\ns_branch {back}')
        slow.append(sp)

    MB='v_mfma_f32_32x32x16_bf16'
    V_B0=2; V_B2=3; V_C0=4; V_C1=5; V_WP=6; V_ONE=7; V_FA=8; V_PL=9; V_B3=10; V_SQ=11; V_SU=12
    TMP=16; FR=32; Q=128
    ACCB = lambda unit: [128, 144][unit] if unit < 2 else [96, 112][unit % 2]
    def fr(f): return FR + 4*(f % 16)
    def dma_ops(base, slot, src, src2, tag):
        ops = []
        for r in range(8):
            pre = f's_add_u32 m0, {base}, {65536 + slot*SLOT + r*PITCH - (r&3)*1024}'
            if r == 0: pre += f'\ns_add_u32 {src2}, {src}, 4096'
            if r == 4: pre += f'\ns_add_u32 {src}, {src}, 32768'
            so = src if r < 4 else src2
            ops.append((pre, lambda r=r, so=so: vq.issue(f'buffer_load_dwordx4 v{V_L16}, {srd(R_XA)}, {so} offen offset:{(r&3)*1024} lds', tag)))
        return ops
    xops = lambda t: dma_ops('s27', t, 's25', 's29', f'x{t}') if t < 3 else dma_ops('s28', 0, 's25', 's29', 'x3')
    kops = lambda t: dma_ops('s27', t, 's26', 's29', f'k{t}')
    def wop(ps, i):
        r = (ps % 2)*128 + 4*i; ks, h = i // 2, i % 2
        pre = f's_add_u32 s47, s46, {order[ps]*524288 + (ks//2)*4096}' if i % 4 == 0 else None
        return (pre, lambda: vq.issue(f'buffer_load_dwordx4 a[{r}:{r+3}], v{V_L16 if f16 else V_WP}, {srd(R_WS)}, s47 offen offset:{(ks%2)*2048 + (1024 if f16 else 512)*h}', f'w{ps}_{i}'))
    def now(ops):
        for pre, f in ops:
            if pre: e(pre); e('s_nop 0') if 'm0' in pre.split('\n')[-1] else None
            f()
    now(xops(0)); now(xops(1))
    e(f"""v_and_b32 v13, 3, v0
    v_and_b32 v14, 4, v0
    v_add_u32 v13, v13, v14
    v_bfe_u32 v14, v0, 4, 1
    v_lshl_add_u32 v13, v14, 3, v13
    v_lshlrev_b32 v13, 4, v13
    v_bfe_u32 v15, v0, 3, 1
    v_lshl_add_u32 v13, v15, 10, v13
    v_lshrrev_b32 v15, 5, v0
    v_lshl_add_u32 v{V_WP}, v15, 8, v13""")
    now([wop(0, i) for i in range(16)])
    a.srd(R_FL, 4, FLAG_SZ, FLAG_OFF)
    e(f's_mul_i32 s37, s33, 4096000\ns_add_u32 s37, s37, {GF_OFF}')
    e(f's_add_u32 s{R_GL}, s4, s37\ns_addc_u32 s{R_GL+1}, s5, 0\ns_mov_b32 s{R_GL+2}, 4096000\ns_mov_b32 s{R_GL+3}, 0x20000')
    e(f's_mov_b32 s{R_AUX+2}, {XA_SZ}\ns_mov_b32 s{R_AUX+3}, 0x20000\ns_mov_b32 s{R_OUT+2}, {XA_SZ}\ns_mov_b32 s{R_OUT+3}, 0x20000')
    a.srd(R_OP, 4, OP_SZ, OP_OFF)
    e('s_lshl_b32 s40, s30, 1\ns_add_u32 s40, s40, s32\ns_sub_u32 s40, s40, 1\ns_lshl_b32 s40, s40, 2\ns_add_u32 s40, s40, s24\ns_and_b32 s41, s40, 31\ns_lshr_b32 s42, s40, 5')
    e(f'v_and_b32 v13, 15, v0\nv_lshlrev_b32 v{V_FA}, 2, v13\nv_lshlrev_b32 v13, 4, v13\nv_lshl_add_u32 v13, v15, 8, v13')
    e(f'v_lshl_add_u32 v{V_SQ}, v14, 10, v13\nv_lshl_add_u32 v{V_SU}, v14, 14, v13')
    if f16: e(f'v_and_b32 v13, 15, v0\nv_mul_u32_u24 v13, {PITCH}, v13\nv_lshrrev_b32 v15, 4, v0\nv_lshl_add_u32 v13, v15, 8, v13')
    else: e(f'v_and_b32 v13, 31, v0\nv_mul_u32_u24 v13, {PITCH}, v13\nv_lshl_add_u32 v13, v15, 8, v13')
    e(f's_mul_i32 s39, s38, {SLOT}\nv_add_u32 v{V_B0}, s39, v13\nv_add_u32 v{V_B2}, {2*SLOT}, v{V_B0}\ns_sub_u32 s39, s28, s35\nv_add_u32 v{V_B3}, s39, v13')
    e(f's_cmp_eq_u32 s32, 3\ns_cselect_b32 s37, 0x50000000, 0')
    e(f's_lshl_b32 s43, s42, 15\ns_add_u32 s43, s43, {WV_OFF}\ns_add_u32 s43, s43, s37\ns_lshl_b32 s44, s41, 14\ns_add_u32 s44, s44, {W1_OFF}\ns_add_u32 s44, s44, s37')
    e(f'v_mov_b32 v{V_C0}, {f2u(C0)}\nv_mov_b32 v{V_C1}, {f2u(C1)}\nv_mov_b32 v{V_ONE}, 1')
    e(f's_lshr_b32 s36, s41, 3\ns_lshl_b32 s36, s36, 4\ns_add_u32 s36, s36, s42\ns_lshl_b32 s36, s36, 13\ns_add_u32 s36, s36, s37\ns_and_b32 s37, s41, 7\ns_lshl_b32 s37, s37, 10\ns_add_u32 s36, s36, s37\ns_add_u32 s36, s36, {WF_OFF + 524288}')
    e('s_mul_i32 s48, s33, 250\ns_lshl_b32 s49, s34, 3\ns_add_u32 s48, s48, s49\ns_lshl_b32 s48, s48, 14')
    e('s_lshl_b32 s49, s45, 10\ns_add_u32 s50, s48, s49\ns_lshl_b32 s49, s45, 11\ns_add_u32 s51, s48, s49')
    e('s_lshl_b32 s49, s24, 15\ns_add_u32 s48, s48, s49')
    e('s_add_u32 s49, s33, 1\ns_mul_i32 s49, s49, 4096000')
    for off, d in ((QF_OFF, R_Q), (UF_OFF, R_U), (GF_OFF, R_G)):
        e(f's_add_u32 s{d}, s4, {off}\ns_addc_u32 s{d+1}, s5, 0\ns_mov_b32 s{d+2}, s49\ns_mov_b32 s{d+3}, 0x20000')
    e('s_lshl_b32 s40, s30, 6\ns_lshl_b32 s41, s45, 2\ns_add_u32 s41, s41, s40')
    e('s_mul_i32 s26, s32, 992\ns_mul_i32 s39, s33, 4000\ns_add_u32 s26, s26, s39\ns_lshl_b32 s39, s38, 5\ns_add_u32 s26, s26, s39\ns_lshl_b32 s39, s24, 3\ns_add_u32 s26, s26, s39\ns_lshl_b32 s26, s26, 10')
    seq = [(u, i) for i in range(32) for u in range(2)] + [(u, i) for u in range(2, 12) for i in range(32)]
    def fread(n):
        u, i = seq[n]; t = u % 4; r = fr(n)
        b, o = [(V_B0, 0), (V_B0, SLOT), (V_B2, 0), (V_B3, 0)][t]
        return f'ds_read_b128 v[{r}:{r+3}], v{b} offset:{o + (16*PITCH if f16 else 512)*(i%2) + 16*(i//2)}'
    def epi_ops(unit, pk=False):
        ps, t = unit // 4, unit % 4
        kind = order[ps]; ops = []
        def v(s, c=1): ops.append(('v', s, c))
        for b in range(2):
            x = [ACCB(unit) + 8*b + j for j in range(8)]; o = (160 if unit == 1 else TMP + 8) + 4*b
            if kind and not pk:
                for h in range(2):
                    xs = x[4*h:4*h+4]; tt = [TMP + 4*h + j for j in range(4)]
                    for j in range(4): v(f'v_mul_f32 v{tt[j]}, v{xs[j]}, v{xs[j]}')
                    for j in range(4): v(f'v_fma_f32 v{tt[j]}, v{tt[j]}, v{V_C1}, v{V_C0}')
                    for j in range(4): v(f'v_mul_f32 v{tt[j]}, v{tt[j]}, v{xs[j]}')
                    for j in range(4): v(f'v_exp_f32 v{tt[j]}, v{tt[j]}', 2)
                    for j in range(4): v(f'v_add_f32 v{tt[j]}, 1.0, v{tt[j]}')
                    for j in range(4): v(f'v_rcp_f32 v{tt[j]}, v{tt[j]}', 2)
                    for j in range(4): v(f'v_mul_f32 v{xs[j]}, v{xs[j]}, v{tt[j]}')
            elif kind:
                P2 = lambda r: f'v[{r}:{r+1}]'
                for j in range(0, 8, 2): v(f'v_pk_mul_f32 {P2(TMP+j)}, {P2(x[j])}, {P2(x[j])}')
                for j in range(0, 8, 2): v(f'v_pk_fma_f32 {P2(TMP+j)}, {P2(TMP+j)}, {P2(V_C0)}, {P2(V_C0)} op_sel:[0,1,0] op_sel_hi:[1,1,0]')
                for j in range(0, 8, 2): v(f'v_pk_mul_f32 {P2(TMP+j)}, {P2(TMP+j)}, {P2(x[j])}')
                for j in range(8): v(f'v_exp_f32 v{TMP+j}, v{TMP+j}', 2)
                for j in range(0, 8, 2): v(f'v_pk_add_f32 {P2(TMP+j)}, {P2(TMP+j)}, 1.0 op_sel_hi:[1,0]')
                for j in range(8): v(f'v_rcp_f32 v{TMP+j}, v{TMP+j}', 2)
                for j in range(0, 8, 2): v(f'v_pk_mul_f32 {P2(x[j])}, {P2(x[j])}, {P2(TMP+j)}')
            for k in range(4): v(f'v_cvt_pk_bf16_f32 v{o+k}, v{x[2*k]}, v{x[2*k+1]}')
            R = [R_Q, R_U, R_G][kind]
            pre = f's_add_u32 s49, s{50 if kind else 51}, {t*32768 + (b*(16384 if kind else 1024) if f16 else 0)}'
            ops.append(('m', (pre, lambda o=o, b=b, R=R: vq.issue(f'buffer_store_dwordx4 v[{o}:{o+3}], v{V_L16 if f16 else (V_SU if kind else V_SQ)}, {srd(R)}, s49 offen offset:{0 if f16 else 512*b} sc1', f'st{kind}')), 3))
        return ops
    assert order[0] == 0
    pollA_ld = f'buffer_load_dword v{V_PL}, v{V_FA}, {srd(R_FL)}, s40 offen offset:{FA_REL} sc1'
    def qop(i):
        pre = 's_add_u32 s48, s48, 4096' if i % 4 == 0 and i else None
        return (pre, lambda: vq.issue(f'buffer_load_dwordx4 v[{Q+4*i}:{Q+4*i+3}], v{V_L16}, {srd(R_Q)}, s48 offen offset:{(i%4)*1024} sc1', 'q'))
    bar = ('s_barrier', lambda: None)
    mem = {u: [] for u in range(1, 12)}
    mem[1] = [x for pr in zip([wop(0, i) for i in range(16, 24)], xops(2)) for x in pr] + [wop(0, i) for i in range(24, 32)] + xops(3) + [wop(1, i) for i in range(4)]
    mem[2] = [wop(1, i) for i in range(4, 16)]
    mem[3] = [wop(1, i) for i in range(16, 32)]
    mem[4] = [wop(2, i) for i in range(12)]
    mem[5] = [(None, lambda: (vq.wait('st0'), vq.issue(f'buffer_store_dword v{V_ONE}, off, {srd(R_FL)}, s41 offset:{FA_REL} sc1', 'fl')))] + [wop(2, i) for i in range(12, 22)]
    mem[6] = [wop(2, i) for i in range(22, 32)] + [(None, lambda: vq.issue(pollA_ld, 'pa'))]
    mem[7] = [(None, lambda: None)]*3 + [(None, lambda: (vq.wait('pa'), poll([pollA_ld], [V_PL], None)))] + [qop(i) for i in range(8)]
    mem[8] = [qop(i) for i in range(8, 20)]
    mem[9] = [bar] + kops(0) + [qop(i) for i in range(20, 24)]
    mem[10] = [bar] + kops(1) + [qop(i) for i in range(24, 28)]
    mem[11] = [bar] + kops(2) + [qop(i) for i in range(28, 32)]
    vq.wait('x1'); e('s_barrier')
    a.mark('x0')
    FW = 2
    for f in range(FDF): e(fread(f))
    def wait_for(n):
        if n >= len(seq): return
        u, i = seq[n]; w = []
        if n % FW == 0: w.append(f'lgkmcnt({max(0, min(n - 1 + FDF, len(seq)) - (n + FW))})')
        if u % 4 == 0:
            x = vq.need(f'w{u//4}_{i|1 if f16 else i}')
            if x: w.append(x)
        if w: e('s_waitcnt ' + ' '.join(w))
    n = 0
    wait_for(0)
    for blk in range(1, 12):
        N = 64 if blk == 1 else 32
        ep = [] if blk == 1 else (epi_ops(0) + epi_ops(1) if blk == 2 else epi_ops(blk - 1))
        mq = list(mem[blk]); nm = len(mq); pend = []
        tot = sum(c for k, o, c in ep if k == 'v'); acc = 0.0; start = 2; issued = 0
        for g in range(N):
            u, i = seq[n]; d = ACCB(u); wr = ((u//4) % 2)*128 + 4*i
            c = '0' if i == 0 else f'v[{d}:{d+15}]'
            def small(jh):
                dd = d + 8*(i%2) + 4*jh; w2 = ((u//4) % 2)*128 + 4*((i & ~1) + jh)
                e(f'{MF} v[{dd}:{dd+3}], a[{w2}:{w2+3}], v[{fr(n)}:{fr(n)+3}], ' + ('0' if i < 2 else f'v[{dd}:{dd+3}]'))
            if f16:
                small(0)
                if g >= start:
                    b2 = 0
                    while ep and ep[0][0] == 'v' and b2 + ep[0][2] <= 2:
                        k, o, c2 = ep.pop(0); e(o); acc -= c2; b2 += c2
                small(1)
            else: e(f'{MB} v[{d}:{d+15}], a[{wr}:{wr+3}], v[{fr(n)}:{fr(n)+3}], {c}')
            wait_for(n + 1)
            m = None
            if pend: m = pend.pop(0)
            elif mq and issued * (N - 1) <= g * nm: m = mq.pop(0); issued += 1
            if m and m[0]: e(m[0])
            if n + FDF < len(seq):
                un, inn = seq[n + FDF]
                if inn == 0 and un in (2, 3):
                    assert vq.q.count(f'x{un}') == 8
                    vq.wait(f'x{un}'); e('s_barrier')
                e(fread(n + FDF))
            elif m and m[0]: e('s_nop 0')
            if m: m[1]()
            if g >= start:
                acc += tot / (N - 2 - start) - (2 if m else 0) + (2.0 * (nm + 2) / N)
                while ep and (ep[0][0] == 'm' or acc >= ep[0][2] - 0.5):
                    k, o, c2 = ep.pop(0)
                    if k == 'v': e(o); acc -= c2
                    else: pend.append(o)
            n += 1
        for k, o, c2 in ep:
            if k == 'v': e(o)
            else: pend.append(o)
        now(pend + mq)
        a.mark(f'u{blk}')
    e('s_nop 7\ns_nop 7')
    for k, o, c2 in epi_ops(11, pk=True):
        if k == 'v': e(o)
        else: now([o])
    V_KB=2; V_VB=3; V_KA=4; V_VA=5; V_L=8; V_MX=10; V_T0=12; V_T1=13; V_T2=14; V_T3=15
    S_BUF=[16,32]; NEGM=48; P=56; AFR=64
    e(f'''v_and_b32 v12, 7, v0
    v_lshlrev_b32 v12, 1, v12
    v_bfe_u32 v13, v0, 3, 1
    v_add_u32 v12, v12, v13
    v_mul_u32_u24 v12, {PITCH}, v12
    v_lshrrev_b32 v13, 4, v0
    v_lshlrev_b32 v13, 8, v13
    v_add_u32 v{V_KB}, v12, v13
    v_bfe_u32 v12, v0, 2, 3
    v_lshlrev_b32 v12, 1, v12
    v_lshrrev_b32 v13, 5, v0
    v_add_u32 v12, v12, v13
    v_mul_u32_u24 v12, {PITCH}, v12
    v_and_b32 v13, 3, v0
    v_lshlrev_b32 v13, 3, v13
    v_add_u32 v{V_VB}, v12, v13''')
    e(f'v_add_u32 v{V_KA}, {2*SLOT}, v{V_KB}\nv_add_u32 v{V_VA}, {2*SLOT}, v{V_VB}')
    e(f'v_mov_b32 v{V_L}, 0\nv_mov_b32 v{V_L+1}, 0')
    e(f's_mov_b32 s45, {THRESH}\ns_mov_b32 s31, 7')
    for i in range(192, 256): e(f'v_accvgpr_write_b32 a{i}, 0')
    a.mark('zero')
    x1 = vq.need('k1'); x2 = vq.need('q')
    e(f's_waitcnt {x2 or x1}\ns_barrier')
    a.mark('attn0')
    def afr(f): return AFR + 4*(f % 8)
    def qf(step, qt): return Q + 4*(2*step+qt)
    cur = [0]
    def reads(f):
        f0 = f % 64; r = afr(f)
        if f0 < 32:
            sl = (cur[0] + 1 + f // 64) % 4
            step, kt = f0 // 2, f0 % 2
            return [f'ds_read_b128 v[{r}:{r+3}], v{V_KB if sl < 2 else V_KA} offset:{(sl%2)*SLOT + kt*16*PITCH + 16*step}']
        dt = f0 - 32; sl = (cur[0] + f // 64) % 4
        return [f'ds_read_b64_tr_b16 v[{r+2*kt}:{r+2*kt+1}], v{V_VB if sl < 2 else V_VA} offset:{(sl%2)*SLOT + kt*16*PITCH + 32*dt}' for kt in range(2)]
    def nreads(f): return 1 if (f % 64) < 32 else 2
    def mfma(n, Snext, first_c):
        f = n // 2; r = afr(f); qt = n % 2
        if n < 64:
            step, kt = f // 2, f % 2
            d = Snext + 8*qt + 4*kt
            c = first_c(qt) if step == 0 else f'v[{d}:{d+3}]'
            return f'{MF} v[{d}:{d+3}], v[{r}:{r+3}], v[{qf(step,qt)}:{qf(step,qt)+3}], {c}'
        dt = f - 32; o = 8*dt + 4*qt
        return f'{MF} a[{o}:{o+3}], v[{r}:{r+3}], v[{P+4*qt}:{P+4*qt+3}], a[{o}:{o+3}]'
    def maxtree(S):
        ops = []
        for qt in range(2):
            b = S + 8*qt; m = V_MX + qt
            ops.append([f'v_max3_f32 v{m}, v{b}, v{b+1}, v{b+2}', f'v_max3_f32 v{m}, v{m}, v{b+3}, v{b+4}',
                        f'v_max3_f32 v{m}, v{m}, v{b+5}, v{b+6}', f'v_max_f32 v{m}, v{m}, v{b+7}'])
        return [x for pair in zip(*ops) for x in pair]
    def xred(op, regs):
        ts = [V_T0, V_T1]
        for sw in ('32', '16'):
            for r, t in zip(regs, ts): e(f'v_mov_b32 v{t}, v{r}')
            e('s_nop 1')
            for r, t in zip(regs, ts): e(f'v_permlane{sw}_swap_b32 v{t}, v{r}')
            e('s_nop 1')
            for r, t in zip(regs, ts): e(f'{op} v{r}, v{r}, v{t}')
    def qk0(j0):
        S = S_BUF[j0 % 2]
        cur[0] = j0 - 1
        fl = []
        SD = 96
        if j0 == 1:
            for st in range(16):
                for k in range(3):
                    r = 12*st + 4*k
                    def f(st=st, k=k, r=r):
                        if st % 4 == 0 and st and k == 0: e('s_add_u32 s43, s43, 4096\ns_add_u32 s44, s44, 4096')
                        if st % 4 == 0 and k == 1: e('s_add_u32 s47, s43, 16384')
                        so = ['s43', 's47', 's44'][k]
                        e(f'buffer_load_dwordx4 a[{r}:{r+3}], v{V_L16}, {srd(R_WS)}, {so} offen offset:{1024*(st%4)}')
                    fl.append(f)
        else:
            for z in range(0, 192, 3):
                fl.append(lambda z=z: e(f'v_accvgpr_write_b32 a{z}, 0\nv_accvgpr_write_b32 a{z+1}, 0\nv_accvgpr_write_b32 a{z+2}, 0'))
        for f in range(DF): e(reads(f)[0])
        for n in range(64):
            f = n // 2
            if n % 4 == 0: e(f's_waitcnt lgkmcnt({DF-2})')
            e(mfma(n, S, lambda qt: '0'))
            if n % 2 == 1:
                e(reads(f + DF if f + DF < 32 else f + DF + 32)[0])
            if n < len(fl): fl[n]()
        e('s_nop 5\ns_add_u32 s29, s26, 4096')
        for o in maxtree(S): e(o)
        xred('v_max_f32', [V_MX, V_MX+1])
        for qt in range(2):
            for i in range(4): e(f'v_sub_f32 v{NEGM+4*qt+i}, 0, v{V_MX+qt}')
            for i in range(8): e(f'v_sub_f32 v{S+8*qt+i}, v{S+8*qt+i}, v{V_MX+qt}')
        if j0 == 1:
            for st in range(16):
                e(f's_waitcnt vmcnt({45 - 3*st})')
                for jj in range(2):
                    c = '0' if st == 0 else f'v[{SD+4*jj}:{SD+4*jj+3}]'
                    e(f'{MF} v[{SD+4*jj}:{SD+4*jj+3}], a[{12*st+4*jj}:{12*st+4*jj+3}], a[{12*st+8}:{12*st+11}], {c}')
                    if st:
                        for z in range(6): e(f'v_accvgpr_write_b32 a{12*(st-1)+6*jj+z}, 0')
            for z in range(12): e(f'v_accvgpr_write_b32 a{180+z}, 0')
            for k in range(4): e(f'v_cvt_pk_bf16_f32 v{SD+8+k}, v{SD+2*k}, v{SD+2*k+1}')
            e(f'buffer_store_dwordx4 v[{SD+8}:{SD+11}], v{V_L16}, {srd(R_WS)}, s36 offen sc1')
        a.mark('loop0')
        e(f's_add_u32 s41, s41, {FB_REL}\ns_waitcnt lgkmcnt(0)')
    e(f's_cmp_eq_u32 s38, 0\ns_cbranch_scc1 {name}_q0')
    qk0(1)
    e(f's_branch {name}_L1')
    a.label(f'{name}_q0')
    qk0(0)

    V_G=128; V_DW=192; V_U=96
    vt = VQ(e)
    pollB_ld = [f'buffer_load_dwordx4 v[{96+4*i}:{99+4*i}], v{V_L16}, {srd(R_FL)}, s44 offen offset:{1024*i} sc1' for i in range(4)]
    PF = []
    for pl in range(2):
        for tt in range(2):
            r = V_U + 16 + 8*pl + 4*tt
            PF.append((None, f'buffer_load_dwordx4 v[{r}:{r+3}], v{V_L16}, {srd(R_U)}, s{46+tt} offen offset:{1024*(pl+2)} sc1', 'u', -1))
    for p in range(16):
        PF.append(('s_add_u32 s39, s39, 4096' if p % 4 == 0 and p else None, f'buffer_load_dwordx4 v[{V_G+4*p}:{V_G+4*p+3}], v{V_L16}, {srd(R_GL)}, s39 offen offset:{1024*(p%4)} sc1', 'g', p // 2))
    for pl in range(2):
        for tt in range(2):
            r = V_U + 8*pl + 4*tt
            PF.append((None, f'buffer_load_dwordx4 v[{r}:{r+3}], v{V_L16}, {srd(R_U)}, s{46+tt} offen offset:{1024*pl} sc1', 'u', -1))
    for i in range(16):
        PF.append(('s_add_u32 s38, s38, 4096' if i % 4 == 0 and i else None, f'buffer_load_dwordx4 v[{V_DW+4*i}:{V_DW+4*i+3}], v{V_L16}, {srd(R_WS)}, s38 offen offset:{1024*(i%4)}', f'dw{i//4}', 8 + i // 2))
    def body(jm, special=False):
        par = jm % 2; cur[0] = jm
        Scur, Snext = S_BUF[par], S_BUF[1-par]
        sc = [[] for _ in range(128)]; gap = [[] for _ in range(128)]; used = [0]*128
        first = {}
        def put(n, op, cost=1): gap[n].append(op); used[n] += cost
        def fit(lo, cost, hi=127):
            n = lo
            while used[n] + cost > 2 and n < hi: n += 1
            return n
        def rmap(f): return f + 32 if (special and f >= 64) else f
        rdq = {}
        for f in range(64):
            x = rmap(f + DF)
            if x == 64:
                sc[2*f] += ['s_waitcnt vmcnt(8)', 's_nop 0' if nobar else 's_barrier']; used[2*f] += 1
            for i, o in enumerate(reads(x)):
                put(2*f + i, o); rdq.setdefault(2*f + i, []).append(f + DF)
        q = list(range(DF)); wgaps = []
        for n in range(128):
            if (n + 1) % (2*AW) == 0:
                need = (n + 1)//2 + AW - 1
                sc[n].insert(0, f's_waitcnt lgkmcnt({sum(1 for x in q if x > need)})'); wgaps.append(n)
                assert need in q and sum(1 for x in q if x == need) == nreads(rmap(need))
            q += rdq.get(n, [])
        free_odd = [n for n in range(1, 64, 2) if used[n] == 0]
        eg = [n for n in free_odd if n in wgaps]; og = [n for n in free_odd if n not in wgaps]
        dg = []
        if not special:
            dg = [og[(i*len(og))//8] for i in range(8)] if dlate else og[:8]
            for r, n in enumerate(dg):
                sc[n-1].append(f's_add_u32 m0, s35, {65536 + ((jm+3)%4)*SLOT + r*PITCH - (r&3)*1024}')
                if nodma: used[n] += 2
                else: put(n, f'buffer_load_dwordx4 v{V_L16}, {srd(R_XA)}, {"s26" if r < 4 else "s29"} offen offset:{(r&3)*1024} lds', 2)
            sc[70].append('s_add_u32 s26, s26, 32768'); sc[72].append('s_add_u32 s29, s26, 4096')
        else:
            dg = og[1:]
            dg = dg[:len(og) + len(eg) - 16]
        epos = sorted(eg + [n for n in og if n not in dg])[:16]
        assert len(epos) == 16
        for k, n in enumerate(epos):
            op = f'v_exp_f32 v{Scur+k}, v{Scur+k}'
            if n in wgaps: first[n] = op; used[n] += 2
            else: put(n, op, 2)
        adds = [f'v_add_f32 v{V_L+(k//8)}, v{V_L+(k//8)}, v{Scur+k}' for k in range(16)]
        for n in wgaps:
            if n not in first and n != 127:
                first[n] = 's_nop 0'; used[n] += 1
        for k in range(8):
            n = fit(epos[2*k+1]+1, 1); put(n, f'v_cvt_pk_bf16_f32 v{P+k}, v{Scur+2*k}, v{Scur+2*k+1}')
            assert n <= 61, n
        def place(ops, lo):
            n = lo
            for op in ops:
                n = fit(n, 1); put(n, op)
            return n
        place(adds, max(epos)+1)
        n = place(maxtree(Snext) + [f'v_max_f32 v{V_T3}, v{V_MX}, v{V_MX+1}'], 72)
        if special:
            slots = dg + list(range(53, 124, 4))
            for n in slots:
                pr, op, tag, minq = PF.pop(0)
                assert n >= 4*minq + 4
                if pr: sc[n].append(pr)
                gap[n].insert(len(rdq.get(n, [])), (op, tag))
        gap[125].append(f'v_cmp_lt_f32 vcc, s45, v{V_T3}')
        assert n <= 124
        for n in range(128):
            e(mfma(n, Snext, lambda qt: f'v[{NEGM+4*qt}:{NEGM+4*qt+3}]'))
            for o in sc[n]: e(o)
            if n in first: e(first[n])
            for o in gap[n]:
                if isinstance(o, tuple): vt.issue(*o)
                else: e(o)
    def rescale(par):
        Snext = S_BUF[1-par]
        e('s_nop 7\ns_nop 7')
        for qt in range(2): e(f'v_max_f32 v{V_MX+qt}, 0, v{V_MX+qt}')
        xred('v_max_f32', [V_MX, V_MX+1])
        for qt in range(2):
            for i in range(4): e(f'v_sub_f32 v{NEGM+4*qt+i}, v{NEGM+4*qt+i}, v{V_MX+qt}')
            for i in range(8): e(f'v_sub_f32 v{Snext+8*qt+i}, v{Snext+8*qt+i}, v{V_MX+qt}')
            e(f'v_sub_f32 v{V_MX+qt}, 0, v{V_MX+qt}\nv_exp_f32 v{V_MX+qt}, v{V_MX+qt}\ns_nop 0')
            e(f'v_mul_f32 v{V_L+qt}, v{V_L+qt}, v{V_MX+qt}')
    a.label(f'{name}_L0')
    for jm in range(4):
        if jm == 1: a.label(f'{name}_L1')
        if jm == 2: e(f's_cmp_eq_u32 s31, 0\ns_cbranch_scc1 {name}_sp2')
        body(jm)
        e(f's_cbranch_vccnz {name}_R{jm}')
        a.label(f'{name}_B{jm}')
    e(f's_sub_u32 s31, s31, 1\ns_cmp_eq_u32 s31, 6\ns_cbranch_scc1 {name}_fb')
    if pf:
        e(f's_cmp_lg_u32 s31, 0\ns_cbranch_scc1 {name}_L0')
        a.touch_code(f'{name}_sp2', f'{name}_end', 36, 113, 112, 24, 2)
        e(f's_mov_b32 s44, {FB_REL}')
        for l in pollB_ld: e(l)
        e('s_lshl_b32 s48, s34, 2\ns_add_u32 s48, s48, s32\ns_mul_i32 s49, s33, 125\ns_add_u32 s49, s49, s48')
        e('s_lshl_b32 s39, s48, 1\ns_add_u32 s39, s39, s24\ns_sub_u32 s39, s39, 1\ns_and_b32 s39, s39, 0xffff\ns_lshl_b32 s39, s39, 14')
        e(f's_lshl_b32 s38, s24, 14\ns_add_u32 s38, s38, {DW_OFF}')
        if xpf:
            e('s_lshl_b32 s46, s49, 15\ns_lshl_b32 s47, s24, 13\ns_add_u32 s46, s46, s47\nv_lshlrev_b32 v113, 7, v0')
            e(f'buffer_load_dword v112, v113, {srd(R_AUX)}, s46 offen')
        e('s_lshl_b32 s46, s49, 15\ns_lshl_b32 s47, s24, 12\ns_add_u32 s46, s46, s47\ns_add_u32 s47, s46, 16384')
        if wpf:
            e(f's_lshr_b32 s36, s2, 3\ns_lshl_b32 s36, s36, 2\ns_add_u32 s36, s36, s24\ns_lshl_b32 s36, s36, 13\ns_add_u32 s36, s36, {WF_OFF}\nv_lshlrev_b32 v113, 7, v0')
            e(f'buffer_load_dword v112, v113, {srd(R_WS)}, s36 offen sc1')
    e(f's_branch {name}_L0')
    a.label(f'{name}_fb')
    e(f'buffer_store_dword v{V_ONE}, off, {srd(R_FL)}, s41 sc1')
    e(f's_branch {name}_L0')
    for rid in (0, 2, 4):
        a.label(f'{name}_R{rid}'); e(f's_mov_b32 s42, {rid}')
        if rid != 4: e(f's_branch {name}_RB0')
    a.label(f'{name}_RB0'); rescale(0); e(f's_branch {name}_RC')
    for rid in (1, 3):
        a.label(f'{name}_R{rid}'); e(f's_mov_b32 s42, {rid}')
        if rid != 3: e(f's_branch {name}_RB1')
    a.label(f'{name}_RB1'); rescale(1)
    a.label(f'{name}_RC')
    for i in range(0, 256, 2):
        qt = (i // 4) % 2
        e(f'v_accvgpr_read_b32 v{V_T1}, a{i}\nv_accvgpr_read_b32 v{V_T2}, a{i+1}\nv_mul_f32 v{V_T1}, v{V_T1}, v{V_MX+qt}\nv_mul_f32 v{V_T2}, v{V_T2}, v{V_MX+qt}')
        e(f'v_accvgpr_write_b32 a{i}, v{V_T1}\nv_accvgpr_write_b32 a{i+1}, v{V_T2}')
    e('s_nop 3')
    for rid in range(4): e(f's_cmp_eq_u32 s42, {rid}\ns_cbranch_scc1 {name}_B{rid}')
    e(f's_branch {name}_B4')
    a.label(f'{name}_sp2')
    a.mark('sp2')
    poll(pollB_ld, list(range(96, 112)), None)
    for _ in range(8): vt.q.append('old')
    body(2, special=True)
    e(f's_cbranch_vccnz {name}_R4')
    a.label(f'{name}_B4')
    a.mark('b4')
    cur[0] = 3; Scur = S_BUF[1]
    for k in range(16): e(f'v_exp_f32 v{Scur+k}, v{Scur+k}')
    for k in range(8): e(f'v_cvt_pk_bf16_f32 v{P+k}, v{Scur+2*k}, v{Scur+2*k+1}')
    e('s_nop 0')
    UC_L = 0; LL_L = 32768; OC_L = SLOT; GT_L = 2*SLOT; OCD = OC_L - UC_L
    R_LP = R_Q
    V_GW=2; V_CB=3; V_XO=4; V_UCR=5; SEL=16; V_X=64
    wn = [0]; wcap = [0]; acap = [0]
    pslots = []
    for r in range(4): pslots += [V_DW + 16*r + 4*j for j in range(4)] + [V_U + 8*r + 4*j for j in range(2)]
    def wreg(i):
        if 192 <= i < 216: return f'v[{pslots[i-192]}:{pslots[i-192]+3}]'
        if i >= 216: i -= 24
        return f'a[{4*(i%64)}:{4*(i%64)+3}]'
    def wl():
        i = wn[0]
        if i >= 256 or i >= wcap[0] or (i < 64 and i >= acap[0]): return False
        wn[0] += 1
        sg = (i & 127) // 8
        p = 4*(sg % 4) + sg // 4 if i < 128 else sg
        if i % 4 == 0: e(f's_add_u32 s41, s40, {(i>>7)*524288 + p*8192 + ((i%8)//4)*4096}')
        vt.issue(f'buffer_load_dwordx4 {wreg(i)}, v{V_L16 if t16 else V_WP}, {srd(R_WS)}, s41 offen offset:{2048*((i%4)//2) + (1024 if t16 else 512)*(i%2)}' + (' sc1' if i >= 128 else ''), f'w{i}')
        return True
    wcap[0] = 64
    lq = LQ(e)
    pubn = [0]
    def pub_ops(T, lqq=None):
        fidx = pubn[0]; pubn[0] += 1
        u, qt = fidx // 2, fidx % 2; o = T + 8 + 4*(fidx % 2); ops = []
        for j in range(8): ops.append(lambda j=j: e(f'v_accvgpr_read_b32 v{T+j}, a{16*u + 8*(j//4) + 4*qt + j%4}'))
        for j in range(4): ops.append(lambda j=j: e(f'v_cvt_pk_bf16_f32 v{o+j}, v{T+2*j}, v{T+2*j+1}'))
        def st():
            if fidx % 4 == 0 and fidx: e('s_add_u32 s29, s29, 4096')
            vt.issue(f'buffer_store_dwordx4 v[{o}:{o+3}], v{V_L16}, {srd(R_OP)}, s29 offen offset:{(fidx%4)*1024} sc1', 'ps')
            e('s_mov_b64 exec, s[30:31]')
            lq.issue(f'ds_write_b128 v{V_L16}, v[{o}:{o+3}] offset:{OC_L + 1024*fidx}', 'pw')
            e('s_mov_b64 exec, -1')
            if qt == 1: acap[0] = 4*(u+1)
        ops += [st]
        return ops
    SC = []
    def S_(t): SC.extend(t.split('\n'))
    S_(f's_add_u32 s{R_LP}, s4, {LP_OFF}|s_addc_u32 s{R_LP+1}, s5, 0\ns_mov_b32 s{R_LP+2}, {LP_SZ}')
    S_('s_lshl_b32 s25, s30, 2\ns_add_u32 s36, s25, s24\ns_add_u32 s25, s25, s32')
    S_('s_cmp_eq_u32 s24, s32|s_cselect_b64 s[30:31], -1, 0|s_cselect_b32 s37, 0x4000, 0\ns_add_u32 s36, s36, s37')
    S_(f's_mul_i32 s37, s32, {NS}\ns_add_u32 s37, s37, s36\ns_lshl_b32 s35, s37, 8\ns_lshl_b32 s29, s37, 15')
    S_(f's_lshl_b32 s40, s24, 17\ns_add_u32 s40, s40, {WF_OFF}')
    S_(f's_lshl_b32 s36, s36, 6\ns_lshl_b32 s37, s32, 2\ns_add_u32 s36, s36, s37\ns_add_u32 s36, s36, {FC_REL}')
    S_(f's_mov_b32 s42, 0x3f803f80\ns_mov_b32 s43, 0xffff0000\ns_mov_b32 s44, {f2u(1/512)}\ns_lshl_b32 s39, s24, 13')
    for k in range(3):
        S_(f's_add_u32 s37, s32, {k+1}\ns_and_b32 s37, s37, 3\ns_mul_i32 s37, s37, {NS}\ns_add_u32 s37, s37, s25\ns_lshl_b32 s{26+k}, s37, 8\ns_lshl_b32 s{45+k}, s37, 15\ns_add_u32 s{45+k}, s{45+k}, s39')
    S_(f's_lshl_b32 s37, s25, 6\ns_add_u32 s37, s37, {FC_REL}\ns_lshl_b32 s50, s49, 15\ns_add_u32 s51, s50, 16384')
    VC = [f'v_add_f32 v{V_L+(k%2)}, v{V_L+(k%2)}, v{Scur+8*(k%2)+k//2}' for k in range(16)]
    def V_(t): VC.extend(t.split('\n'))
    m, G, t3, t0, t1, t2 = 24, 25, 26, 27, 28, 29
    V_(f'v_and_b32 v{m}, 15, v0\nv_lshrrev_b32 v{G}, 4, v0\nv_lshrrev_b32 v{t3}, 1, v{G}')
    for sw in ('32', '16'):
        V_(f'v_mov_b32 v{V_T0}, v{V_L}\nv_mov_b32 v{V_T1}, v{V_L+1}|s_nop 1|v_permlane{sw}_swap_b32 v{V_T0}, v{V_L}\nv_permlane{sw}_swap_b32 v{V_T1}, v{V_L+1}|s_nop 1|v_add_f32 v{V_L}, v{V_L}, v{V_T0}\nv_add_f32 v{V_L+1}, v{V_L+1}, v{V_T1}')
    V_(f'v_and_b32 v{V_T0}, 16, v0\nv_cmp_eq_u32 vcc, 0, v{V_T0}\nv_lshlrev_b32 v{V_T1}, 4, v{m}\nv_lshl_add_u32 v{V_T1}, v{G}, 2, v{V_T1}')
    V_(f'v_cndmask_b32 v{V_MX}, v{NEGM+4}, v{NEGM}, vcc\nv_cndmask_b32 v{V_MX+1}, v{V_L+1}, v{V_L}, vcc\nv_cmp_gt_u32 vcc, 32, v0|s_nop 1|v_cndmask_b32 v{V_MX}, v{V_MX+1}, v{V_MX}, vcc')
    V_(f'v_lshrrev_b32 v{t0}, 3, v{m}\nv_cmp_eq_u32 vcc, v{t0}, v{t3}\nv_bfe_u32 v{t0}, v{m}, 1, 2|s_nop 0|v_cndmask_b32 v{t0}, 8, v{t0}, vcc')
    V_(f'v_and_b32 v{t1}, 1, v{m}\nv_cmp_eq_u32 vcc, 1, v{t1}')
    for par in range(2):
        bsel = 0x0302 if par else 0x0100
        V_(f'v_mov_b32 v{t1}, {0x0c0c0000 | bsel}\nv_mov_b32 v{t2}, {(bsel << 16) | 0x0c0c}\nv_cndmask_b32 v{30+par}, v{t1}, v{t2}, vcc')
    V_(f'v_mov_b32 v{t1}, 0x0c0c0c0c')
    for r in range(4):
        V_(f'v_cmp_eq_u32 vcc, {r}, v{t0}|s_nop 1|v_cndmask_b32 v{SEL+r}, v{t1}, v30, vcc\nv_cndmask_b32 v{SEL+4+r}, v{t1}, v31, vcc')
    V_(f'v_lshl_add_u32 v{V_GW}, s24, 4, v{m}\nv_mul_u32_u24 v{V_GW}, {PITCH}, v{V_GW}\nv_lshl_add_u32 v{V_GW}, v{G}, 4, v{V_GW}\nv_add_u32 v{V_GW}, {GT_L}, v{V_GW}')
    V_(f'v_and_b32 v{V_CB}, 1, v{G}\nv_lshlrev_b32 v{V_CB}, 4, v{V_CB}\nv_add3_u32 v{V_CB}, v{V_CB}, v{m}, 1\nv_mul_u32_u24 v{V_CB}, {PITCH}, v{V_CB}\nv_lshl_add_u32 v{V_CB}, v{t3}, 4, v{V_CB}\nv_lshl_add_u32 v{V_CB}, s24, 8, v{V_CB}\nv_add_u32 v{V_CB}, {GT_L}, v{V_CB}')
    if t16:
        V_(f'v_lshlrev_b32 v{V_XO}, 10, v{m}\nv_lshl_add_u32 v{V_XO}, v{G}, 4, v{V_XO}\nv_lshl_add_u32 v{V_XO}, s24, 8, v{V_XO}')
        late = [f'v_mov_b32 v{V_UCR}, v{V_L16}']
    else:
        V_(f'v_and_b32 v{V_XO}, 31, v0\nv_lshlrev_b32 v{V_XO}, 10, v{V_XO}\nv_lshl_add_u32 v{V_XO}, v{t3}, 4, v{V_XO}\nv_lshl_add_u32 v{V_XO}, s24, 8, v{V_XO}')
        late = [f'v_and_b32 v{V_UCR}, 1, v{G}', f'v_lshlrev_b32 v{V_UCR}, 10, v{V_UCR}', f'v_lshl_add_u32 v{V_UCR}, v{t3}, 8, v{V_UCR}', f'v_lshl_add_u32 v{V_UCR}, v{m}, 4, v{V_UCR}']
    assert all(p[2].startswith('dw') for p in PF)
    pq = []
    for _ in range(npub[0]): pq += pub_ops(32)
    for f in range(32, 32 + DF): lq.q += [f'v{f}']*2
    waits0 = lq.need('v33'); e(f's_waitcnt {waits0}')
    for n in range(64, 128):
        f = n // 2
        e(mfma(n, 0, None))
        mm = PF.pop(0) if (PF and n % 4 == 1) else None
        if n % 4 == 3 and n < 127: e('s_waitcnt ' + lq.need(f'v{f+2}'))
        elif mm and mm[0]: e(mm[0])
        for _ in range(1 if n % 4 == 3 else 2):
            if SC: e(SC.pop(0).replace('|', '\n'))
        if f + DF < 64: lq.issue(reads(f + DF)[n % 2], f'v{f+DF}')
        if mm: vt.issue(mm[1], mm[2])
        elif not VC and pq and pq[0].__name__ == 'st': pq.pop(0)()
        else:
            for _ in range(vper):
                if VC: e(VC.pop(0).replace('|', '\n'))
                elif pq and pq[0].__name__ != 'st': pq.pop(0)()
    assert not PF and not SC and not VC, (len(SC), len(VC))
    for o in pq: o()
    vt.issue(f'buffer_store_dword v{V_MX}, v{V_T1}, {srd(R_LP)}, s35 offen sc1', 'ps')
    vt.wait('g'); e('s_barrier')
    a.mark('attn1')
    e(f's_mov_b64 exec, s[30:31]\nds_write_b32 v{V_T1}, v{V_MX} offset:{LL_L}\ns_mov_b64 exec, -1'); lq.q.append('ll')
    def flagC():
        vt.wait('ps')
        vt.issue(f'buffer_store_dword v{V_ONE}, off, {srd(R_FL)}, s36 sc1', 'fc')
    for o in late: e(o)
    S = [V_X+8, V_X+10, V_X+9, V_X+11]
    for i in range(4): e(f'v_mov_b32 v{S[i]}, 0')
    n1 = npub[1] * 2 // 5; n2 = npub[1] - n1
    for i in range(64):
        e(f'v_dot2_f32_bf16 v{S[i%2]}, v{V_G+i}, s42, v{S[i%2]}')
        e(f'v_dot2_f32_bf16 v{S[2+i%2]}, v{V_G+i}, v{V_G+i}, v{S[2+i%2]}')
        if (i+1)*n1 // 64 > i*n1 // 64:
            for o in pub_ops(80): o()
            wl()
        if i % 8 == 3: wl()
    e('s_nop 2')
    e(f'v_add_f32 v{S[0]}, v{S[0]}, v{S[1]}\nv_add_f32 v{S[2]}, v{S[2]}, v{S[3]}')
    for sw in ('16', '32'):
        e(f'v_mov_b32 v{S[1]}, v{S[0]}\nv_mov_b32 v{S[3]}, v{S[2]}\ns_nop 1')
        e(f'v_permlane{sw}_swap_b32 v{S[1]}, v{S[0]}\nv_permlane{sw}_swap_b32 v{S[3]}, v{S[2]}\ns_nop 0')
        e(f'v_add_f32 v{S[0]}, v{S[0]}, v{S[1]}\nv_add_f32 v{S[2]}, v{S[2]}, v{S[3]}')
    e(f'v_mul_f32 v{S[0]}, s44, v{S[0]}\nv_mul_f32 v{S[2]}, s44, v{S[2]}\nv_fma_f32 v{S[2]}, -v{S[0]}, v{S[0]}, v{S[2]}\nv_max_f32 v{S[2]}, 0, v{S[2]}')
    e(f'v_add_f32 v{S[2]}, {f2u(1e-5)}, v{S[2]}\nv_rsq_f32 v{S[2]}, v{S[2]}\ns_nop 0\nv_mul_f32 v{S[0]}, -v{S[0]}, v{S[2]}')
    for p in range(16):
        tb = 48 + 8*(p % 2)
        for k in range(4):
            e(f'v_lshlrev_b32 v{tb+2*k}, 16, v{V_G+4*p+k}\nv_and_b32 v{tb+2*k+1}, s43, v{V_G+4*p+k}')
        for j in range(0, 8, 2): e(f'v_pk_fma_f32 v[{tb+j}:{tb+j+1}], v[{tb+j}:{tb+j+1}], v[{S[0]}:{S[0]+1}], v[{S[0]}:{S[0]+1}] op_sel:[0,1,0] op_sel_hi:[1,1,0]')
        for k in range(4): e(f'v_cvt_pk_bf16_f32 v{V_G+4*p+k}, v{tb+2*k}, v{tb+2*k+1}')
        lq.issue(f'ds_write_b128 v{V_GW}, v[{V_G+4*p}:{V_G+4*p+3}] offset:{64*p}', 'gw')
        wl()
        if (p+1)*n2 // 16 > p*n2 // 16:
            for o in pub_ops(80): o()
    e(f'v_add_u32 v{V_GW}, s39, v{V_L16}')
    e('s_waitcnt lgkmcnt(0)\ns_barrier'); lq.drained()
    a.mark('stage')
    ABUF = [8, 12, 24, 28]; CACC = 64; GB = 80; GACC = 128
    V_PA = 3
    pollC_ld = f'buffer_load_dwordx4 v[{V_U}:{V_U+3}], off, {srd(R_FL)}, s37 sc1'
    def fixown():
        for k in range(4): e(f's_cmp_eq_u32 s32, {k}\ns_cselect_b32 s38, 1, 0\nv_or_b32 v{V_U+k}, s38, v{V_U+k}')
    pn = [0]; pcap = [0]
    def pload():
        k = pn[0]
        if k >= pcap[0]: return False
        pn[0] += 1
        i, s = k // 3, k % 3
        if i == 4: e(f's_add_u32 s{45+s}, s{45+s}, 4096')
        r = pslots[k]
        vt.issue(f'buffer_load_dwordx4 v[{r}:{r+3}], v{V_L16}, {srd(R_OP)}, s{45+s} offen offset:{1024*(i%4)} sc1', f'p{i}')
        return True
    HS = 1024 if t16 else 512
    def gm(i, Bbase, first, mid=None):
        e8 = i % 8; d = GACC + 16*(e8 // 2)
        if not t16:
            Bq = Bbase + 4*(e8 % 2)
            e(f'{MB} v[{d}:{d+15}], {wreg(i)}, v[{Bq}:{Bq+3}], ' + ('0' if (first and e8 % 2 == 0) else f'v[{d}:{d+15}]'))
        else:
            for tt in range(2):
                dd = d + 8*tt + 4*(e8 % 2)
                e(f'{MF} v[{dd}:{dd+3}], {wreg(i)}, v[{Bbase+4*tt}:{Bbase+4*tt+3}], ' + ('0' if first else f'v[{dd}:{dd+3}]'))
                if tt == 0 and mid: mid()
    def waits(*ws):
        ws = [w for w in ws if w]
        if ws: e('s_waitcnt ' + ' '.join(ws))
    def stage(rc, rg):
        ring = [32 + 4*j for j in range(8)] + ([GACC + 4*j for j in range(4)] if rg is None else [])
        dfc = len(ring) - 2
        pq = []
        if rc == 0:
            for _ in range(npub[2]): pq += pub_ops(80)
        if rc == 1:
            while pubn[0] < 32: pq += pub_ops(V_DW)
        def crd(n):
            c, ip, tt = 2*rc + n // 32, (n // 2) % 16, n % 2; r = ring[n % len(ring)]
            lq.issue(f'ds_read_b128 v[{r}:{r+3}], v{V_CB} offset:{(ip+16*tt)*PITCH + 32*c}', f'c{rc}_{n}')
        def abuild(k, lo, hi):
            c, ip = 2*rc + k // 16, k % 16
            src = V_DW + 8*c + ip // 2
            for r in range(lo, hi): e(f'v_perm_b32 v{ABUF[k%4]+r}, v{src}, v{src}, v{SEL+4*(ip%2)+r}')
        def brd(j, h):
            p = 4*j + rg; r = GB + 8*(j % 2) + 4*h
            lq.issue(f'ds_read_b128 v[{r}:{r+3}], v{V_UCR} offset:{2048*p + HS*h}', f'b{rg}_{j}')
        if rg is not None: brd(0, 0); brd(0, 1)
        if rc is not None:
            for n in range(dfc): crd(n)
            vt.wait(f'dw{rc}')
            abuild(0, 0, 4); abuild(1, 0, 4)
            waits(lq.need(f'c{rc}_3'))
        def gwait(k):
            if rg is not None and k < 32: waits(vt.need(f'w{32*rg + k}'), lq.need(f'b{rg}_{k//8}'))
        if rc is None: gwait(0)
        for k in range(32):
            if rc is not None:
                for tt in range(2):
                    n = 2*k + tt
                    d = CACC + 8*(k // 16) + 4*tt; r = ring[n % len(ring)]; A = ABUF[k % 4]
                    cc = '0' if k % 16 == 0 else f'v[{d}:{d+3}]'
                    e(f'{MF} v[{d}:{d+3}], v[{A}:{A+3}], v[{r}:{r+3}], {cc}')
                    if tt == 1:
                        gwait(k)
                        if rg is None and k % 2 == 1 and k < 31: waits(lq.need(f'c{rc}_{n+4}'))
                    if n + dfc < 64: crd(n + dfc)
                    if rg is None:
                        if tt == 0: wl()
                        else:
                            while pq and pq[0].__name__ in ('st',): pq.pop(0)()
                    if k + 2 < 32:
                        if rg is None: abuild(k+2, 2*tt, 2*tt+2)
                        else: abuild(k+2, tt, tt+1)
                    if rg is None:
                        for _ in range(2 + tt):
                            if pq and pq[0].__name__ not in ('st',): pq.pop(0)()
            if rg is not None:
                j, e8 = k // 8, k % 8; i = 32*rg + k
                gm(i, GB + 8*(j % 2), rg == 0 and j == 0, (lambda: abuild(k+2, 2, 4)) if (rc is not None and k + 2 < 32) else None)
                if rc is None: gwait(k+1)
                elif k % 2 == 1 and k < 31: waits(lq.need(f'c{rc}_{2*k+5}'))
                if e8 in (1, 2) and j < 3: brd(j+1, e8-1)
                wcap[0] = i + 1 + 64
                if rc is not None:
                    gk = 32*rg + k
                    if gk == fC: flagC()
                    elif gk == pC: vt.issue(pollC_ld, 'pc')
                    elif gk == pC + pD:
                        vt.wait('pc'); poll([pollC_ld], [V_U+j for j in range(4)], fixown); pcap[0] = 6*rc
                    if pq and pq[0].__name__ == 'st': pq.pop(0)()
                    else: wl()
                    if k % 2 == 0 or pcap[0]:
                        if not pload(): wl()
                    for _ in range(5):
                        if pq and pq[0].__name__ != 'st': pq.pop(0)()
                    if k + 2 < 32 and not t16: abuild(k+2, 2, 4)
                elif k % 2 == 1:
                    if not pload(): wl()
        for o in pq: o()
        if rc is not None:
            vt.wait('u')
            e('s_nop 7')
            for tt in range(2):
                ur = V_U + 8*rc + 4*tt; tb = [8, 24][tt]
                for q in range(4):
                    e(f'v_lshlrev_b32 v{tb+2*q}, 16, v{ur+q}\nv_and_b32 v{tb+2*q+1}, s43, v{ur+q}')
                for j in range(0, 8, 2):
                    x = CACC + 8*(j//4) + 4*tt + j%4
                    e(f'v_pk_mul_f32 v[{tb+j}:{tb+j+1}], v[{tb+j}:{tb+j+1}], v[{x}:{x+1}]')
                for q in range(4): e(f'v_cvt_pk_bf16_f32 v{ur+q}, v{tb+2*q}, v{tb+2*q+1}')
                e(f'ds_write_b128 v{V_GW}, v[{ur}:{ur+3}] offset:{2048*rc + 1024*tt}')
                wl()
            e('s_waitcnt lgkmcnt(0)\ns_barrier'); lq.drained()
    stage(0, None)
    a.mark('c0')
    stage(1, 0)
    assert pubn[0] == 32
    e(f's_cmp_lt_u32 s48, 125\ns_cbranch_scc1 {name}_cont')
    e('s_waitcnt vmcnt(0)')
    e(f'buffer_store_dword v{V_ONE}, off, {srd(R_FL)}, s36 sc1')
    a.endpgm(kidx)
    a.label(f'{name}_cont')
    a.mark('c1')
    if pcap[0]: pcap[0] = 12
    stage(2, 1)
    a.mark('c2')
    if pcap[0]: pcap[0] = 18
    stage(3, 2)
    a.mark('c3')
    assert pcap[0]
    pcap[0] = 24
    LM = 32
    e(f'v_and_b32 v{V_PA}, 0xf0, v{V_L16}')
    for k in range(3): vt.issue(f'buffer_load_dwordx4 v[{LM+4*k}:{LM+4*k+3}], v{V_PA}, {srd(R_LP)}, s{26+k} offen sc1', 'L')
    e(f'v_add_u32 v{V_PA}, {LL_L}, v{V_PA}')
    lq.issue(f'ds_read_b128 v[{LM+12}:{LM+15}], v{V_PA}', 'ol')
    OWN = [48, 52, 56, 60, 64, 68, 72, 76]
    for i in range(8): lq.issue(f'ds_read_b128 v[{OWN[i]}:{OWN[i]+3}], v{V_GW} offset:{OCD + 1024*i}', 'own')
    stage(None, 3)
    a.mark('gemm1')
    vt.wait('L')
    V_LS = 8
    for qt in range(2):
        L = [LM + 4*s + qt for s in range(4)]; l = [LM + 4*s + 2 + qt for s in range(4)]; t = 16 + qt
        e(f'v_min3_f32 v{t}, v{L[0]}, v{L[1]}, v{L[2]}\nv_min_f32 v{t}, v{t}, v{L[3]}')
        for x in L: e(f'v_sub_f32 v{x}, v{t}, v{x}')
        for x in L: e(f'v_exp_f32 v{x}, v{x}')
        e(f's_nop 0\nv_mul_f32 v{t}, v{L[0]}, v{l[0]}')
        for k in range(1, 4): e(f'v_fmac_f32 v{t}, v{L[k]}, v{l[k]}')
        e(f'v_rcp_f32 v{t}, v{t}\ns_nop 0')
        for s_, x in enumerate(L): e(f'v_mul_f32 v{V_LS+2*s_+qt}, v{x}, v{t}')
        wl()
    for i in range(8):
        vt.wait(f'p{i}')
        qt = i % 2; tb = 16; ac = 24
        for s in range(4):
            src = OWN[i] if s == 3 else pslots[3*i + s]
            for k in range(4):
                e(f'v_lshlrev_b32 v{tb+2*k}, 16, v{src+k}\nv_and_b32 v{tb+2*k+1}, s43, v{src+k}')
            wv = V_LS + 2*s
            for j in range(0, 8, 2):
                if s == 0: e(f'v_pk_mul_f32 v[{ac+j}:{ac+j+1}], v[{tb+j}:{tb+j+1}], v[{wv}:{wv+1}] op_sel:[0,{qt}] op_sel_hi:[1,{qt}]')
                else: e(f'v_pk_fma_f32 v[{ac+j}:{ac+j+1}], v[{tb+j}:{tb+j+1}], v[{wv}:{wv+1}], v[{ac+j}:{ac+j+1}] op_sel:[0,{qt},0] op_sel_hi:[1,{qt},1]')
            if s == 3: wcap[0] = 192 + 3*i + 3
            wl()
        o = OWN[i]
        for k in range(4): e(f'v_cvt_pk_bf16_f32 v{o+k}, v{ac+2*k}, v{ac+2*k+1}')
        e(f'ds_write_b128 v{V_GW}, v[{o}:{o+3}] offset:{OCD + 1024*i}')
    while wl(): pass
    e('s_waitcnt lgkmcnt(0)\ns_barrier')
    a.mark('comb')
    V_X = 64
    xo = lambda k: f's{50 + k%2} offen offset:{64*(k//2)}' if t16 else f's50 offen offset:{32*k}'
    xq = [(lambda k=k: vt.issue(f'buffer_load_dwordx4 v[{V_X+4*k}:{V_X+4*k+3}], v{V_XO}, {srd(R_AUX)}, {xo(k)}', 'x')) for k in range(8)]
    def brd2(p, h):
        r = 32 + 8*(p % 4) + 4*h
        e(f'ds_read_b128 v[{r}:{r+3}], v{V_UCR} offset:{OCD + 2048*p + HS*h}')
    for p in range(2):
        for h in range(2): brd2(p, h)
    waits(vt.need('w128'), 'lgkmcnt(2)')
    for i in range(128, 256):
        p, e8 = (i - 128) // 8, i % 8
        gm(i, 32 + 8*(p % 4), False)
        if i < 255: waits(vt.need(f'w{i+1}'), f'lgkmcnt({2 if p < 14 else 0})' if e8 == 7 else None)
        wcap[0] = i + 1 + 88
        if e8 in (1, 3) and p + 2 < 16: brd2(p+2, e8 // 2)
        if i % 2 == 0 and not wl() and xq: xq.pop(0)()
    assert not xq
    a.mark('gemm2')
    vt.wait('x')
    e('s_nop 7\ns_nop 7')
    for k in range(8):
        xr = V_X + 4*k; tb = 16 + 8*(k % 2)
        for q in range(4):
            e(f'v_lshlrev_b32 v{tb+2*q}, 16, v{xr+q}\nv_and_b32 v{tb+2*q+1}, s43, v{xr+q}')
        for j in range(0, 8, 2):
            x = GACC + 8*k + j
            e(f'v_pk_add_f32 v[{tb+j}:{tb+j+1}], v[{tb+j}:{tb+j+1}], v[{x}:{x+1}]')
        for q in range(4): e(f'v_cvt_pk_bf16_f32 v{xr+q}, v{tb+2*q}, v{tb+2*q+1}')
        e(f'buffer_store_dwordx4 v[{xr}:{xr+3}], v{V_XO}, {srd(R_OUT)}, {xo(k)}')
    a.endpgm(kidx)
    for sp in slow: sp()
    a.label(f'{name}_end')
    e('s_endpgm')
    a.end(name, 512, 102, 256)
    a.launch(name, 256, 256, 4*SLOT)
```

```python
import sys
sys.path.insert(0,'dev')
from asmlib import Asm
from layout import *
MF='v_mfma_f32_16x16x32_bf16'
import struct
def f2u(x): return struct.unpack('<I', struct.pack('<f', x))[0]
QSCALE = 512**-0.5 * 1.4426950408889634
PITCH = 1040
BREG = 64*PITCH

def k0_kernel(a, name, kidx=0, touch=True, noln=False, now=False, xnt='', wnt='', snt=''):
    e = a.e
    a.begin(name)
    e(f's_cmp_ge_u32 s2, 256\ns_cbranch_scc1 {name}_end')
    a.stamp_begin()
    e('s_load_dwordx16 s[36:51], s[0:1], 0')
    e('s_load_dwordx2 s[52:53], s[0:1], 64')
    e('s_load_dwordx2 s[4:5], s[0:1], 88')
    e('v_lshrrev_b32 v9, 6, v0\nv_and_b32 v0, 63, v0\ns_nop 0\nv_readfirstlane_b32 s24, v9')
    if touch: a.touch_code(name, 'main_kernel_end', 64, 10, 95, 24, 2)
    e('v_lshlrev_b32 v1, 4, v0')
    e('v_and_b32 v2, 15, v0\nv_lshrrev_b32 v3, 4, v0')
    e('''v_lshrrev_b32 v4, 3, v0
    v_and_b32 v5, 7, v0
    v_and_b32 v6, 2, v4
    v_lshlrev_b32 v6, 1, v6
    v_xor_b32 v5, v5, v6
    v_lshlrev_b32 v5, 4, v5''')
    e('s_and_b32 s54, s24, 1\ns_bfe_u32 s55, s24, 0x10001\ns_lshr_b32 s56, s24, 2')
    e('s_waitcnt lgkmcnt(0)')
    a.stamp_mid(3)
    a.srd(8, 36, 0 if noln else XA_SZ); a.srd(20, 4, 0 if noln else XA_SZ, XA_OFF)
    e('s_lshl_b32 s60, s2, 3\ns_add_u32 s60, s60, s24\ns_lshl_b32 s60, s60, 12')
    for r in range(4): e(f'buffer_load_dwordx4 v[{16+4*r}:{19+4*r}], v1, s[8:11], s60 offen offset:{1024*r}{xnt}')
    e(f's_mul_i32 s29, s24, {8*PITCH}')
    def rows_dma(srd, off0, off1, ldsadd):
        for i in range(8):
            e(f's_add_u32 m0, s29, {ldsadd + i*PITCH - (i%4)*1024}\ns_nop 0')
            e(f'buffer_load_dwordx4 v1, s[{srd}:{srd+3}], s{off0 if i < 4 else off1} offen offset:{(i%4)*1024}{wnt} lds')
    e(f's_cmp_ge_u32 s2, 64\ns_cbranch_scc1 {name}_notM')
    e('s_and_b32 s25, s2, 7\ns_lshr_b32 s26, s2, 3')
    a.srd(12, 38, 0 if now else 524288); a.srd(16, 40, 0 if now else 524288)
    e('s_lshl_b32 s27, s54, 8\ns_lshr_b32 s28, s24, 1\ns_lshl_b32 s28, s28, 2\ns_add_u32 s27, s27, s28\ns_lshl_b32 s27, s27, 10')
    e('s_lshl_b32 s30, s25, 14\ns_add_u32 s30, s30, s27\ns_add_u32 s31, s30, 131072')
    e('s_lshl_b32 s32, s26, 14\ns_add_u32 s32, s32, s27\ns_add_u32 s33, s32, 131072')
    rows_dma(12, 30, 31, 0)
    rows_dma(16, 32, 33, BREG)
    e('s_mov_b32 s61, 0')
    e(f's_branch {name}_ln')
    a.label(f'{name}_notM')
    e(f's_cmp_ge_u32 s2, 192\ns_cbranch_scc1 {name}_notW')
    e('s_lshr_b32 s25, s2, 7\ns_and_b32 s26, s2, 7\ns_bfe_u32 s27, s2, 0x30003')
    a.srd(16, 52, 0 if now else 1024*1024)
    e('s_cmp_eq_u32 s25, 0\ns_cselect_b32 s12, s44, s50\ns_cselect_b32 s13, s45, s51\ns_mov_b32 s14, ' + ('0' if now else '524288') + '\ns_mov_b32 s15, 0x20000')
    e('s_lshl_b32 s30, s56, 5\ns_lshl_b32 s31, s55, 2\ns_add_u32 s30, s30, s31\ns_lshl_b32 s31, s54, 4\ns_add_u32 s30, s30, s31\ns_lshl_b32 s31, s24, 3')
    e('s_cmp_eq_u32 s25, 0\ns_cselect_b32 s30, s30, s31\ns_cselect_b32 s31, 8, 4\ns_lshl_b32 s32, s27, 6\ns_add_u32 s30, s30, s32\ns_add_u32 s31, s31, s30')
    e('s_lshl_b32 s30, s30, 10\ns_lshl_b32 s31, s31, 10')
    rows_dma(12, 30, 31, 0)
    e('v_lshl_add_u32 v7, v4, 10, v5')
    e('s_lshl_b32 s28, s25, 19\ns_lshl_b32 s32, s26, 7\ns_add_u32 s28, s28, s32\ns_lshl_b32 s32, s24, 16\ns_add_u32 s28, s28, s32\ns_lshl_b32 s32, s24, 13')
    for i in range(8):
        e(f's_add_u32 m0, s32, {BREG + i*1024}\ns_nop 0\nbuffer_load_dwordx4 v7, s[16:19], s28 offen{wnt} lds\ns_add_u32 s28, s28, 8192')
    e('s_mov_b32 s61, 1')
    e(f's_branch {name}_ln')
    a.label(f'{name}_notW')
    e('s_sub_u32 s25, s2, 192\ns_and_b32 s26, s25, 3\ns_lshr_b32 s25, s25, 2')
    a.srd(12, 46, 1024*1024)
    e('v_lshl_add_u32 v7, v4, 11, v5')
    e('s_lshr_b32 s28, s24, 1\ns_lshl_b32 s28, s28, 18\ns_lshl_b32 s30, s26, 16\ns_add_u32 s28, s28, s30\ns_lshl_b32 s30, s54, 15\ns_add_u32 s28, s28, s30\ns_lshl_b32 s30, s25, 7\ns_add_u32 s28, s28, s30\ns_lshl_b32 s30, s24, 11')
    for i in range(2):
        e(f's_add_u32 m0, s30, {i*1024}\ns_nop 0\nbuffer_load_dwordx4 v7, s[12:15], s28 offen{wnt} lds\ns_add_u32 s28, s28, 16384')
    a.srd(16, 48, 31*1024)
    e('s_sub_u32 s33, s2, 252\ns_lshl_b32 s33, s33, 3\ns_add_u32 s33, s33, s24\ns_cmp_ge_u32 s2, 252\ns_cselect_b32 s33, s33, 0x8000\ns_lshl_b32 s34, s33, 5')
    e('v_and_b32 v8, 1, v3\nv_lshlrev_b32 v8, 14, v8\nv_lshl_add_u32 v8, v2, 1, v8')
    for ip in range(13):
        e(f'buffer_load_ushort v{80+ip}, v8, s[16:19], s34 offen offset:{1024*(ip%4)}')
        if ip % 4 == 3: e('s_add_u32 s34, s34, 4096')
    a.srd(68, 42, 524288)
    e('s_sub_u32 s58, s2, 192\ns_lshl_b32 s58, s58, 3\ns_add_u32 s58, s58, s24\ns_lshr_b32 s59, s58, 4\ns_lshl_b32 s59, s59, 14\ns_and_b32 s57, s58, 15\ns_lshl_b32 s57, s57, 6\ns_add_u32 s59, s59, s57')
    e('v_lshlrev_b32 v13, 10, v2\nv_lshl_add_u32 v13, v3, 4, v13')
    e('buffer_load_dwordx4 v[76:79], v13, s[68:71], s59 offen')
    e('s_mov_b32 s61, 2')
    a.label(f'{name}_ln')
    e(f's_mov_b32 s62, 0xffff0000\ns_mov_b32 s63, {f2u(1/512)}\nv_mov_b32 v10, {f2u(1e-5)}')
    e('s_waitcnt vmcnt(16)')
    a.stamp_mid(0)
    def allsum(regs, tmps):
        for sh in (8, 4, 2, 1):
            for x in regs: e(f'v_add_f32_dpp v{x}, v{x}, v{x} row_ror:{sh} row_mask:0xf bank_mask:0xf')
        for sw in ('16', '32'):
            for x, t in zip(regs, tmps): e(f'v_mov_b32 v{t}, v{x}')
            e('s_nop 0')
            for x, t in zip(regs, tmps): e(f'v_permlane{sw}_swap_b32 v{t}, v{x}')
            e('s_nop 0')
            for x, t in zip(regs, tmps): e(f'v_add_f32 v{x}, v{x}, v{t}')
    X = lambda r, j: 32 + 8*r + j
    S = [64, 65, 66, 67]; Tm = [68, 69, 70, 71]
    for r in range(4):
        src = 16 + 4*r
        for k in range(4):
            e(f'v_lshlrev_b32 v{X(r,2*k)}, 16, v{src+k}\nv_and_b32 v{X(r,2*k+1)}, s62, v{src+k}')
    for r in range(4): e(f'v_add_f32 v{S[r]}, v{X(r,0)}, v{X(r,1)}')
    for j in range(2, 8):
        for r in range(4): e(f'v_add_f32 v{S[r]}, v{S[r]}, v{X(r,j)}')
    allsum(S, Tm)
    for r in range(4): e(f'v_mul_f32 v{S[r]}, s63, v{S[r]}')
    for j in range(8):
        for r in range(4): e(f'v_sub_f32 v{X(r,j)}, v{X(r,j)}, v{S[r]}')
    for r in range(4): e(f'v_mul_f32 v{S[r]}, v{X(r,0)}, v{X(r,0)}')
    for j in range(1, 8):
        for r in range(4): e(f'v_fmac_f32 v{S[r]}, v{X(r,j)}, v{X(r,j)}')
    allsum(S, Tm)
    for r in range(4): e(f'v_fma_f32 v{S[r]}, v{S[r]}, s63, v10')
    for r in range(4): e(f'v_rsq_f32 v{S[r]}, v{S[r]}')
    e('s_nop 0')
    for j in range(8):
        for r in range(4): e(f'v_mul_f32 v{X(r,j)}, v{X(r,j)}, v{S[r]}')
    for r in range(4):
        for k in range(4): e(f'v_cvt_pk_bf16_f32 v{16+4*r+k}, v{X(r,2*k)}, v{X(r,2*k+1)}')
    for r in range(4):
        e(f'buffer_store_dwordx4 v[{16+4*r}:{19+4*r}], v1, s[20:23], s60 offen offset:{1024*r}{snt}')
    a.srd(20, 4, FLAG_SZ, FLAG_OFF)
    e('s_lshl_b32 s57, s24, 8\ns_add_u32 s57, s57, s2\ns_lshl_b32 s57, s57, 10')
    for k in range(4): e(f'v_mov_b32 v{72+k}, 0')
    e('buffer_store_dwordx4 v[72:75], v1, s[20:23], s57 offen')
    a.stamp_mid(1)
    e('s_waitcnt vmcnt(5)\ns_barrier')
    a.stamp_mid(2)
    a.srd(20, 4, WS_SZ)
    e(f's_cmp_eq_u32 s61, 2\ns_cbranch_scc1 {name}_up2')
    e(f'v_mul_u32_u24 v6, {PITCH}, v2\nv_lshl_add_u32 v6, v3, 8, v6')
    e(f's_mul_i32 s30, s54, {32*PITCH}\nv_add_u32 v7, s30, v6')
    def gemm(bread, nb):
        def rd(st):
            r = 32 + 12*(st % 4)
            for jj in range(2): e(f'ds_read_b128 v[{r+4*jj}:{r+4*jj+3}], v7 offset:{jj*16*PITCH + 16*st}')
            bread(st, r+8)
        for st in range(3): rd(st)
        for st in range(16):
            e(f's_waitcnt lgkmcnt({(2+nb)*min(2,15-st)})')
            r = 32 + 12*(st % 4)
            for jj in range(2):
                d = 16 + 4*jj
                c = '0' if st == 0 else f'v[{d}:{d+3}]'
                e(f'{MF} v[{d}:{d+3}], v[{r+4*jj}:{r+4*jj+3}], v[{r+8}:{r+11}], {c}')
            if st + 3 < 16: rd(st+3)
        e('s_nop 7')
    e(f's_cmp_eq_u32 s61, 1\ns_cbranch_scc1 {name}_w2')
    e(f's_lshl_b32 s30, s55, 1\ns_add_u32 s30, s30, s56\ns_mul_i32 s30, s30, {16*PITCH}\ns_add_u32 s30, s30, {BREG}\nv_add_u32 v8, s30, v6')
    gemm(lambda st, r: e(f'ds_read_b128 v[{r}:{r+3}], v8 offset:{16*st}'), 1)
    e(f's_mov_b32 s33, {f2u(QSCALE)}')
    for i in range(8): e(f'v_mul_f32 v{16+i}, s33, v{16+i}')
    for k in range(4): e(f'v_cvt_pk_bf16_f32 v{24+k}, v{16+2*k}, v{16+2*k+1}')
    e(f's_lshl_b32 s28, s26, 1\ns_add_u32 s28, s28, s55\ns_lshl_b32 s28, s28, 15\ns_lshl_b32 s30, s25, 1\ns_add_u32 s30, s30, s54\ns_lshl_b32 s30, s30, 11\ns_add_u32 s28, s28, s30\ns_lshl_b32 s30, s56, 10\ns_add_u32 s28, s28, s30\ns_add_u32 s28, s28, {WA_OFF}')
    e('buffer_store_dwordx4 v[24:27], v1, s[20:23], s28 offen')
    a.endpgm(kidx)
    a.label(f'{name}_w2')
    e('''v_bfe_u32 v9, v0, 2, 2
    v_lshl_add_u32 v8, v3, 7, v9
    v_lshlrev_b32 v8, 7, v8
    v_and_b32 v11, 3, v0
    v_and_b32 v9, 2, v9
    v_lshlrev_b32 v9, 1, v9
    v_or_b32 v11, v11, v9''')
    e(f's_lshl_b32 s30, s55, 2\nv_xor_b32 v11, s30, v11\nv_lshl_add_u32 v8, v11, 4, v8\ns_lshl_b32 s30, s56, 3\ns_add_u32 s30, s30, {BREG}\nv_add_u32 v8, s30, v8')
    def wb(st, r):
        for x in range(2): e(f'ds_read_b64_tr_b16 v[{r+2*x}:{r+2*x+1}], v8 offset:{(8*st+4*x)*128}')
    gemm(wb, 2)
    for k in range(4): e(f'v_cvt_pk_bf16_f32 v{24+k}, v{16+2*k}, v{16+2*k+1}')
    e('s_lshl_b32 s35, s26, 2\ns_lshl_b32 s33, s55, 1\ns_add_u32 s35, s35, s33\ns_add_u32 s35, s35, s56\ns_lshl_b32 s30, s27, 1\ns_add_u32 s30, s30, s54')
    e(f's_lshl_b32 s28, s35, 14\ns_lshl_b32 s29, s30, 10\ns_add_u32 s28, s28, s29\ns_add_u32 s28, s28, {W1_OFF}')
    e(f's_lshr_b32 s29, s35, 3\ns_lshl_b32 s29, s29, 4\ns_add_u32 s29, s29, s30\ns_lshl_b32 s29, s29, 13\ns_and_b32 s33, s35, 7\ns_lshl_b32 s33, s33, 10\ns_add_u32 s29, s29, s33\ns_add_u32 s29, s29, {WF_OFF}')
    e('s_cmp_eq_u32 s25, 0\ns_cselect_b32 s28, s28, s29')
    e('buffer_store_dwordx4 v[24:27], v1, s[20:23], s28 offen')
    a.endpgm(kidx)
    a.label(f'{name}_up2')
    for ip in range(13, 16):
        e(f'buffer_load_ushort v{80+ip}, v8, s[16:19], s34 offen offset:{1024*(ip%4)}')
    e(f's_lshl_b32 s58, s58, 10\ns_add_u32 s58, s58, {WV_OFF}')
    e('buffer_store_dwordx4 v[76:79], v1, s[20:23], s58 offen')
    e('''v_bfe_u32 v6, v0, 2, 2
    v_lshl_add_u32 v7, v3, 5, v6
    v_lshlrev_b32 v7, 7, v7
    v_and_b32 v9, 3, v0
    v_and_b32 v6, 2, v6
    v_lshlrev_b32 v6, 5, v6''')
    e('s_cmp_lt_u32 s25, 8\ns_cselect_b32 s30, 3, 4\ns_cselect_b32 s31, 32, 8')
    e('v_lshlrev_b32 v9, s30, v9\nv_add_u32 v7, v7, v9\ns_and_b32 s35, s24, 3\ns_lshl_b32 s32, s35, 10\nv_add_u32 v7, s32, v7')
    e('s_lshl_b32 s32, s56, 6\nv_xor_b32 v6, s32, v6\nv_add_u32 v11, v7, v6\nv_add_u32 v12, s31, v11')
    for f in range(2):
        for x in range(2): e(f'ds_read_b64_tr_b16 v[{16+4*f+2*x}:{16+4*f+2*x+1}], v{11+f} offset:{512*x}')
    e(f's_lshl_b32 s28, s25, 1\ns_add_u32 s28, s28, s56\ns_lshl_b32 s28, s28, 15\ns_add_u32 s28, s28, {WA_OFF + 524288}\ns_lshl_b32 s29, s26, 2\ns_add_u32 s29, s29, s35\ns_lshl_b32 s29, s29, 11\ns_add_u32 s28, s28, s29')
    e('s_waitcnt lgkmcnt(0)')
    for f in range(2):
        e(f'buffer_store_dwordx4 v[{16+4*f}:{19+4*f}], v1, s[20:23], s28 offen offset:{1024*f}')
    a.srd(20, 4, DW_SZ, DW_OFF)
    e('s_lshl_b32 s28, s33, 11\ns_waitcnt vmcnt(3)')
    for q in range(8): e(f'v_lshl_or_b32 v{32+q}, v{81+2*q}, 16, v{80+2*q}')
    e('buffer_store_dwordx4 v[32:35], v1, s[20:23], s28 offen\nbuffer_store_dwordx4 v[36:39], v1, s[20:23], s28 offen offset:1024')
    a.endpgm(kidx)
    a.label(f'{name}_end')
    e('s_endpgm')
    a.end(name, 96, 102)
    a.launch(name, 256, 512, 128*PITCH)

if __name__ == '__main__':
    a = Asm(); a.diag = True; k0_kernel(a, 'prep_kernel')
    open('k0.s','w').write(a.text())
```

```python
T = 4000; B = 2; D = 512; ROWS = 8000
XA_OFF   = 0
XA_SZ    = ROWS * 1024
QF_OFF   = 0x0080_0000
QF_SZ    = 250 * 32768
OP_OFF   = 0x0100_0000
NS = 259
OP_SZ    = 4 * NS * 32768
LP_OFF   = 0x0320_0000
LP_SZ    = 4 * NS * 256
UF_OFF   = 0x0380_0000
GF_OFF   = 0x0400_0000
UG_SZ    = 500 * 16384
WA_OFF   = 0x0480_0000
WA_SZ    = 3 * 16 * 32768
W1_OFF   = 0x04A0_0000
W1_SZ    = 32 * 16 * 1024
WF_OFF   = 0x04E0_0000
WF_SZ    = 2 * 4 * 16 * 8 * 1024
DW_OFF   = 0x04C0_0000
DW_SZ    = 32 * 2048
FLAG_OFF = 0x04D0_0000
STAMP_OFF = 0x0F00_0000
WS_SZ = 268435456
FA_REL = 0; FB_REL = 4096; FC_REL = 8192; FX_REL = 24576; FP_REL = 28672; FU_REL = 32768; EP_REL = 36864; FLAG_SZ = 36864 + 64
WV_OFF = 0x04A8_0000
EX_OFF = 0x0500_0000
EX_SZ = 2*256*32768
```

```python
import sys
sys.path.insert(0,'dev')
from asmlib import Asm
from k0 import k0_kernel
from fused import fused_kernel
HDR = open('standalone__conformer_family_branchformer__speech.s.ref').read().split('; Override launch')[0].rstrip()
def build(diag, marks=(), k0=dict(snt=' sc0 sc1',xnt=' sc0 sc1 nt',wnt=' sc1'), **kw):
    a = Asm(); a.diag = diag; a.marks = list(marks); a.dual = len(marks) <= 4 and diag
    k0_kernel(a, 'prep_kernel', 0, **k0); fused_kernel(a, 'main_kernel', 1, **kw)
    return a.text(HDR)
M0=['x0','u3','attn0','attn1','stage','c3','comb','gemm2']
MA=['x0','u1','u3','u5','u7','u9','u11','attn0']
MB=['attn1','stage','c0','c1','c2','c3','gemm1','comb']
MC=['b4','attn1','c1','c3','gemm1','comb','gemm2']
ML=['attn0','loop0','sp2','b4','attn1']
if __name__ == '__main__':
    open('full_diag.s','w').write(build(True, M0))
    open('full_diagA.s','w').write(build(True, MA))
    open('full_diagB.s','w').write(build(True, MB))
    open('standalone__conformer_family_branchformer__speech.s','w').write(build(False))
    for spec in sys.argv[1:]:
        nm, marks, kw = spec.split('|')
        if marks: open(f'x_diag_{nm}.s','w').write(build(True, eval(marks), **eval(f'dict({kw})')))
        else: open(f'y_{nm}.s','w').write(build(False, **eval(f'dict({kw})')))
```

```python
import re
class Asm:
    def __init__(self):
        self.lines = []
        self.kernels = []
        self.launches = []
        self.uid = 0
    def e(self, s=''):
        for l in s.split('\n'):
            m = re.search(r'offset:(\d+)', l)
            if m:
                lim = 4095 if l.strip().startswith('buffer') else 65535
                assert int(m.group(1)) <= lim, l
            if l.strip().startswith('buffer_store_dword v7, off'):
                self.lines += ['s_mov_b64 exec, 1', l.strip(), 's_mov_b64 exec, -1']
                continue
            self.lines.append(l.strip())
    def label(self, name):
        self.lines.append(name + ':')
    def newlabel(self, p='L'):
        self.uid += 1
        return f'{p}_{self.uid}'
    def begin(self, name):
        self.lines += ['.text', f'.globl {name}', '.p2align 8', f'.type {name},@function', f'{name}:']
    def end(self, name, vgpr, sgpr=102, accum=None):
        if accum is None: accum = min(256, (vgpr + 3) // 4 * 4)
        self.kernels.append((name, vgpr, sgpr, accum))
    def launch(self, name, grid, block, lds):
        self.launches.append(f'; @launch kernel={name} grid=({grid},1,1) block=({block},1,1) lds={lds}')
    def text(self, header=''):
        out = [header] if header else []
        out += self.launches
        out.append('.amdgcn_target "amdgcn-amd-amdhsa--gfx950"')
        from align import align
        body, self.mis = align(self.lines, self.pad) if self.do_align else (self.lines, -1)
        out += body
        out.append('.section .rodata,"a"')
        for name, v, s, a in self.kernels:
            out += ['.p2align 6', f'.amdhsa_kernel {name}',
                    f'  .amdhsa_next_free_vgpr {v}', f'  .amdhsa_next_free_sgpr {s}', f'  .amdhsa_accum_offset {a}',
                    '  .amdhsa_group_segment_fixed_size 0', '  .amdhsa_kernarg_size 96', '  .amdhsa_user_sgpr_count 2',
                    '  .amdhsa_user_sgpr_kernarg_segment_ptr 1', '  .amdhsa_system_sgpr_workgroup_id_x 1',
                    '.end_amdhsa_kernel']
        return '\n'.join(out) + '\n'
    def srd(self, d, base, nbytes, off=0):
        if off:
            self.e(f's_add_u32 s{d}, s{base}, {off & 0xffffffff}')
            self.e(f's_addc_u32 s{d+1}, s{base+1}, {off >> 32}')
        else:
            self.e(f's_mov_b32 s{d}, s{base}')
            self.e(f's_mov_b32 s{d+1}, s{base+1}')
        self.e(f's_mov_b32 s{d+2}, {nbytes}')
        self.e(f's_mov_b32 s{d+3}, 0x00020000')

    diag = False
    def stamp_begin(self):
        if self.diag:
            self.e('s_memrealtime s[96:97]\ns_memtime s[98:99]\ns_mov_b32 s95, s2\nv_lshrrev_b32 v1, 6, v0\ns_nop 1\nv_readfirstlane_b32 s94, v1\ns_waitcnt lgkmcnt(0)')
    def stamp_mid(self, i):
        if self.diag:
            if self.dual: self.e(f's_memtime s[{76+4*i}:{77+4*i}]\ns_memrealtime s[{78+4*i}:{79+4*i}]')
            else: self.e(f's_memtime s[{76+2*i}:{77+2*i}]')
    def touch_code(self, lo, hi, sreg, vtmp, vdst, wave_sreg, n, lane='v0', issue=None):
        e = self.e
        here = self.newlabel('pc')
        e(f's_getpc_b64 s[{sreg}:{sreg+1}]')
        self.label(here)
        e(f's_add_u32 s{sreg}, s{sreg}, {lo}-{here}\ns_addc_u32 s{sreg+1}, s{sreg+1}, ({lo}-{here})>>32')
        e(f's_mul_i32 s{sreg+2}, s{wave_sreg}, {n*8192}')
        e(f'v_lshlrev_b32 v{vtmp}, 7, {lane}\nv_add_u32 v{vtmp}, s{sreg+2}, v{vtmp}')
        for k in range(n):
            e(f'v_min_u32 v{vtmp+1}, {hi}-{lo}-4, v{vtmp}')
            op = f'global_load_dword v{vdst}, v{vtmp+1}, s[{sreg}:{sreg+1}]'
            if issue: issue(op)
            else: e(op)
            if k + 1 < n: e(f'v_add_u32 v{vtmp}, 8192, v{vtmp}')
    marks = []
    dual = False
    dbg = False
    amp = None
    do_align = True
    pad = False
    def mark(self, nm):
        if nm in self.marks: self.stamp_mid(self.marks.index(nm))
    def endpgm(self, kidx):
        if self.diag:
            from layout import STAMP_OFF
            e = self.e
            e('s_waitcnt vmcnt(0) lgkmcnt(0)\ns_memrealtime s[92:93]\ns_memtime s[100:101]\ns_load_dwordx2 s[6:7], s[0:1], 88\ns_waitcnt lgkmcnt(0)')
            if self.amp is not None:
                a_, b_ = [{'s': 96, 'e': 92}.get(x, None) if isinstance(x, str) else 78 + 4*x for x in self.amp]
                lb = self.newlabel('amp')
                e(f's_sub_u32 s10, s{b_}, s{a_}\ns_min_u32 s10, s10, 20000')
                self.label(lb)
                e(f's_memrealtime s[12:13]\ns_waitcnt lgkmcnt(0)\ns_sub_u32 s12, s12, s92\ns_cmp_lt_u32 s12, s10\ns_cbranch_scc1 {lb}')
            self.srd(8, 6, 1<<20, STAMP_OFF + kidx*(1<<20))
            e('s_mov_b64 exec, -1')
            e('v_mov_b32 v8, s96\nv_mov_b32 v9, s92\ns_sub_u32 s100, s100, s98\nv_mov_b32 v10, s100\nv_mov_b32 v11, 0')
            for i in range(8):
                e(f's_sub_u32 s{76+2*i}, s{76+2*i}, s{96 if (self.dual and i%2) else 98}\nv_mov_b32 v{12+i}, s{76+2*i}')
            if self.dbg:
                lb = self.newlabel('dbg')
                e(f's_cmp_lg_u32 s95, 8\ns_cbranch_scc1 {lb}\ns_cmp_lg_u32 s94, 0\ns_cbranch_scc1 {lb}')
                e(f's_load_dwordx2 s[12:13], s[0:1], 80\ns_waitcnt lgkmcnt(0)\ns_mov_b32 s14, 256\ns_mov_b32 s15, 0x20000')
                if kidx:
                    self.srd(16, 6, 1<<20, STAMP_OFF)
                    e('s_mov_b32 s20, 4096\nbuffer_load_dwordx4 v[20:23], off, s[16:19], s20\ns_waitcnt vmcnt(0)\nbuffer_store_dwordx4 v[20:23], off, s[12:15], 0')
                    e('buffer_store_dwordx4 v[8:11], off, s[12:15], 0 offset:16\nbuffer_store_dwordx4 v[12:15], off, s[12:15], 0 offset:32\nbuffer_store_dwordx4 v[16:19], off, s[12:15], 0 offset:48')
                self.label(lb)
            e('v_mov_b32 v4, 0\ns_lshl_b32 s95, s95, 3\ns_add_u32 s95, s95, s94\ns_lshl_b32 s95, s95, 6')
            e('buffer_store_dwordx4 v[8:11], v4, s[8:11], s95 offen\nbuffer_store_dwordx4 v[12:15], v4, s[8:11], s95 offen offset:16\nbuffer_store_dwordx4 v[16:19], v4, s[8:11], s95 offen offset:32')
        self.e('s_endpgm')
```

```python
import sys
sys.path.insert(0,'dev')
from asmlib import Asm
from layout import *
import struct
def f2u(x): return struct.unpack('<I', struct.pack('<f', x))[0]
MF='v_mfma_f32_16x16x32_bf16'
PITCH = 1040; SLOT = 32*PITCH
C0 = -2*0.7978845608028654*1.4426950408889634
C1 = C0*0.044715
THRESH = 0x41f00000
SPIN_MAX = 1 << 20

class VQ:
    def __init__(s, e, lim=63): s.e = e; s.q = []; s.done = 0; s.lim = lim
    def issue(s, op, tag):
        if len(s.q) - s.done >= s.lim:
            s.e(f's_waitcnt vmcnt({s.lim-1})'); s.done = len(s.q) - (s.lim-1)
        s.e(op); s.q.append(tag)
    def need(s, tag):
        i = max(k for k, t in enumerate(s.q) if t == tag)
        if i < s.done: return None
        s.done = i + 1
        return f'vmcnt({len(s.q) - 1 - i})'
    def wait(s, tag, extra=''):
        w = s.need(tag)
        if w or extra: s.e(('s_waitcnt ' + (w or '') + ' ' + extra).strip())
    def drain(s):
        s.e('s_waitcnt vmcnt(0)'); s.done = len(s.q)

class LQ:
    def __init__(s, e): s.e = e; s.q = []; s.done = 0
    def issue(s, op, tag):
        if len(s.q) - s.done >= 15:
            s.e('s_waitcnt lgkmcnt(12)'); s.done = len(s.q) - 12
        s.e(op); s.q.append(tag)
    def need(s, tag):
        i = max(k for k, t in enumerate(s.q) if t == tag)
        if i < s.done: return None
        s.done = i + 1
        return f'lgkmcnt({len(s.q) - 1 - i})'
    def drained(s): s.done = len(s.q)

R_XA=8; R_WS=12; R_AUX=16; R_OUT=20; R_Q=52; R_U=56; R_G=60; R_GL=64; R_OP=68; R_FL=72
def srd(r): return f's[{r}:{r+3}]'
V_L16=1
FSC=' sc0 sc1'
XSC=''
WSC=' sc1'
SSC=' sc0 sc1'


QSCALE = 512**-0.5 * 1.4426950408889634
def prep_phase(a, name, poll, kind0, n_early, fx_st, pearly, xmap, tmode):
    e = a.e; BREG = 64*PITCH; V_TAG = 7
    e(f'v_and_b32 v2, 15, v0\nv_lshrrev_b32 v3, 4, v0')
    e('s_lshl_b32 s64, s34, 2\ns_add_u32 s64, s64, s32\ns_cmp_lt_u32 s64, 125\ns_cselect_b32 s65, 0, 0x70000000\ns_mul_i32 s66, s33, 125\ns_add_u32 s64, s64, s66\ns_lshl_b32 s64, s64, 2\ns_add_u32 s64, s64, s24\ns_lshl_b32 s64, s64, 13\ns_add_u32 s64, s64, s65\ns_add_u32 s65, s64, 4096')
    e(f's_mov_b32 s{R_AUX+2}, {XA_SZ}\ns_mov_b32 s{R_AUX+3}, 0x20000')
    e('s_waitcnt lgkmcnt(0)')
    for r in range(8): e(f'buffer_load_dwordx4 v[{16+4*r}:{19+4*r}], v1, {srd(R_AUX)}, s{64+r//4} offen offset:{1024*(r%4)}{XSC}')
    e(f's_add_u32 s6, s4, {FLAG_OFF + EP_REL}\ns_addc_u32 s7, s5, 0\ns_load_dword s71, s[6:7], 0')
    e("""v_lshrrev_b32 v4, 3, v0
    v_and_b32 v5, 7, v0
    v_and_b32 v6, 2, v4
    v_lshlrev_b32 v6, 1, v6
    v_xor_b32 v5, v5, v6
    v_lshlrev_b32 v5, 4, v5""")
    e('s_and_b32 s66, s24, 1\ns_lshr_b32 s67, s24, 1')
    if xmap:
        e('s_lshr_b32 s25, s2, 5\ns_and_b32 s26, s2, 1\ns_lshl_b32 s26, s26, 2\ns_add_u32 s26, s26, s32\ns_bfe_u32 s68, s2, 0x20001\ns_lshl_b32 s68, s68, 6')
    else:
        e('s_and_b32 s25, s2, 3\ns_bfe_u32 s26, s2, 0x10003\ns_lshl_b32 s26, s26, 2\ns_add_u32 s25, s25, s26')
        e('s_bfe_u32 s26, s2, 0x10002\ns_bfe_u32 s27, s2, 0x20004\ns_lshl_b32 s27, s27, 1\ns_add_u32 s26, s26, s27\ns_and_b32 s68, s2, 0xc0')
    e('s_lshl_b32 s27, s26, 3\ns_add_u32 s68, s68, s27\ns_add_u32 s68, s68, s25\ns_mov_b32 s31, s68')
    e(f's_mul_i32 s29, s24, {8*PITCH}')
    nt_ = 0
    if tmode == 1:
        e('s_lshl_b32 s27, s32, 2\ns_add_u32 s27, s27, s24\ns_and_b32 s27, s27, 7')
        a.touch_code(name, f'{name}_R0', 60, 10, 120, 27, 1); nt_ = 1
    def rows_dma(R, b, hi, vis, ldsadd):
        ops = []
        for vi in range(2):
            for i in range(8):
                t = f's_add_u32 m0, s29, {ldsadd + vi*32*PITCH + i*PITCH - (i%4)*1024}\n'
                t += f's_add_u32 s28, s{b}, {hi}' if i == 0 else (f's_add_u32 s{b}, s{b}, {vis}' if (i == 4 and vi == 0) else 's_nop 0')
                ops.append(t + f'\nbuffer_load_dwordx4 v1, {srd(R)}, s{b if i < 4 else 28} offen offset:{(i%4)*1024}{WSC} lds')
        return ops
    X = lambda r, j: 48 + 8*r + j
    S = [112 + r for r in range(8)]
    P2 = lambda x: f'v[{x}:{x+1}]'
    sp = lambda r: (f's[{40+(r&~1)}:{41+(r&~1)}]', r & 1)
    p0 = f'buffer_load_dword v14, v15, {srd(R_FL)}, 0 offen{FSC}'
    pX = f'buffer_load_dword v4, v5, {srd(R_FL)}, 0 offen{FSC}'
    flagX = f'buffer_store_dword v{V_TAG}, off, {srd(R_FL)}, s51{FSC}'
    def ln(ops, first_store=None, hook=None, n_early=n_early):
        for o in ops[:n_early]: e(o)
        rest = ops[n_early:]
        a.srd(R_XA, 4, XA_SZ, XA_OFF); a.srd(R_WS, 4, WS_SZ); a.srd(R_FL, 4, FLAG_SZ, FLAG_OFF)
        e(f's_lshl_b32 s48, s32, 2\ns_add_u32 s48, s48, s24\ns_lshr_b32 s47, s48, 1\ns_lshl_b32 s48, s48, 15\ns_add_u32 s48, s48, {WA_OFF + kind0*524288}')
        e(f's_lshl_b32 s50, s47, 7\ns_add_u32 s50, s50, {FP_REL}\ns_lshl_b32 s47, s47, 7\ns_add_u32 s47, s47, {FU_REL}\ns_lshl_b32 s39, s30, 6\ns_add_u32 s39, s39, {FX_REL}')
        e('v_mov_b32 v15, s47\nv_add_u32 v14, 1024, v15\nv_cmp_gt_u32 vcc, 32, v0\nv_lshlrev_b32 v4, 2, v2\nv_add_u32 v5, s39, v4\nv_cndmask_b32 v15, v15, v14, vcc\nv_add_u32 v15, v4, v15')
        e(f's_lshl_b32 s51, s32, 4\ns_add_u32 s51, s51, s39\ns_lshl_b32 s39, s24, 2\ns_add_u32 s51, s51, s39')
        e(f's_lshl_b32 s68, s68, 4\ns_add_u32 s68, s68, s39\ns_add_u32 s68, s68, {FP_REL}')
        e(f's_mov_b32 s36, 0xffff0000\ns_mov_b32 s37, {f2u(1/512)}\ns_mov_b32 s38, 0x3f803f80\nv_mov_b32 v10, {f2u(1e-5)}')
        e(f's_waitcnt lgkmcnt(0)\ns_mul_i32 s71, s71, 0x9E3779B1\ns_add_u32 s71, s71, 0x7F4A7C15\nv_mov_b32 v{V_TAG}, s71')
        if hook: hook()
        else: e(f's_waitcnt vmcnt({min(n_early, len(ops)) + nt_})')
        a.mark('p_x')
        L = []
        v = lambda t: L.extend(t.split('\n'))
        def red4():
            v('s_nop 1')
            for r in (0, 2, 4, 6): v(f'v_permlane32_swap_b32 v{S[r]}, v{S[r+1]}')
            for r in (0, 2, 4, 6): v(f'v_add_f32 v{S[r]}, v{S[r]}, v{S[r+1]}')
            v('s_nop 0')
            for r in (0, 4): v(f'v_permlane16_swap_b32 v{S[r]}, v{S[r+2]}')
            for r in (0, 4): v(f'v_add_f32 v{S[r]}, v{S[r]}, v{S[r+2]}')
            for sh in (8, 4, 2, 1):
                v('s_nop 0')
                for r in (0, 4): v(f'v_add_f32_dpp v{S[r]}, v{S[r]}, v{S[r]} row_ror:{sh} row_mask:0xf bank_mask:0xf')
        def bcast():
            v('s_nop 0')
            for r in range(8): v(f'v_readlane_b32 s{40+r}, v{S[4*(r//4)]}, {16*[0,2,1,3][r%4]}')
        for k in range(4):
            for r in range(8): v(f'v_dot2_f32_bf16 v{S[r]}, v{16+4*r+k}, s38, ' + ('0' if k == 0 else f'v{S[r]}'))
        for r in range(4):
            for k in range(4): v(f'v_lshlrev_b32 v{X(r,2*k)}, 16, v{16+4*r+k}\nv_and_b32 v{X(r,2*k+1)}, s36, v{16+4*r+k}')
        red4()
        for r in (0, 4): v(f'v_mul_f32 v{S[r]}, s37, v{S[r]}')
        bcast()
        for r in range(4, 8):
            for k in range(4): v(f'v_lshlrev_b32 v{X(r,2*k)}, 16, v{16+4*r+k}\nv_and_b32 v{X(r,2*k+1)}, s36, v{16+4*r+k}')
        for r in range(8):
            sr, o = sp(r)
            for j in range(0, 8, 2): v(f'v_pk_add_f32 {P2(X(r,j))}, {P2(X(r,j))}, {sr} op_sel:[0,{o}] op_sel_hi:[1,{o}] neg_lo:[0,1] neg_hi:[0,1]')
        for j in range(0, 8, 2):
            for r in range(8):
                t = 16 + 2*r
                v(f'v_pk_mul_f32 {P2(t)}, {P2(X(r,j))}, {P2(X(r,j))}' if j == 0 else f'v_pk_fma_f32 {P2(t)}, {P2(X(r,j))}, {P2(X(r,j))}, {P2(t)}')
        for r in range(8): v(f'v_add_f32 v{S[r]}, v{16+2*r}, v{17+2*r}')
        red4()
        for r in (0, 4): v(f'v_fma_f32 v{S[r]}, v{S[r]}, s37, v10')
        for r in (0, 4): v(f'v_rsq_f32 v{S[r]}, v{S[r]}')
        bcast()
        v('s_nop 0')
        for r in range(8):
            sr, o = sp(r)
            for j in range(0, 8, 2): v(f'v_pk_mul_f32 {P2(X(r,j))}, {P2(X(r,j))}, {sr} op_sel:[0,{o}] op_sel_hi:[1,{o}]')
            for k in range(4): v(f'v_cvt_pk_bf16_f32 v{16+4*r+k}, v{X(r,2*k)}, v{X(r,2*k+1)}')
            v(f'buffer_store_dwordx4 v[{16+4*r}:{19+4*r}], v1, {srd(R_XA)}, s{64+r//4} offen offset:{1024*(r%4)}{SSC}')
        nin = 0
        for n, o in enumerate(L):
            if o.startswith('buffer_store') and first_store and first_store[0]: e(first_store.pop())
            e(o)
            if (n+1)*nin // 240 > n*nin // 240 and n < 240: e(rest.pop(0))
        a.mark('p_ln')
        nl = len(rest)
        for o in rest: e(o)
        return nl
    def w0(i):
        if i % 4 == 0: e(f's_add_u32 s49, s48, {(i//4)*4096}')
        e(f'buffer_load_dwordx4 a[{4*i}:{4*i+3}], v1, {srd(R_WS)}, s49 offen offset:{(i%4)*1024} sc1')
    def gemm(bread, nb, nl):
        assert nl
        e(f'v_mul_u32_u24 v6, {PITCH}, v2\nv_lshl_add_u32 v6, v3, 8, v6\ns_mul_i32 s27, s66, {32*PITCH}\nv_add_u32 v9, s27, v6')
        bread(None, None, None)
        e(p0)
        e(f's_waitcnt vmcnt({nl+1})\n' + flagX + '\ns_waitcnt vmcnt(1)\ns_barrier')
        a.mark('p_d')
        def rd(st):
            r = 64 + 16*(st % 3)
            for jj in range(2): e(f'ds_read_b128 v[{r+4*jj}:{r+4*jj+3}], v9 offset:{jj*16*PITCH + 16*st}')
            for vi in range(2): bread(st, vi, r+8+4*vi)
        for st in range(2): rd(st)
        poll([p0], [14], None)
        wi = 0
        for st in range(16):
            e(f's_waitcnt lgkmcnt({(2+2*nb) if st < 15 else 0})')
            r = 64 + 16*(st % 3)
            for vi in range(2):
                for jj in range(2):
                    d = 48 + 8*vi + 4*jj
                    e(f'{MF} v[{d}:{d+3}], v[{r+4*jj}:{r+4*jj+3}], v[{r+8+4*vi}:{r+11+4*vi}], ' + ('0' if st == 0 else f'v[{d}:{d+3}]'))
                    if vi == 0 and jj == 0 and st + 2 < 16: rd(st+2)
                    if vi == 1 and (jj == 0 or st < 4) and wi < 16: w0(wi); wi += 1
                    if vi == 1 and jj == 0 and st == 12: e(pX)
        e('s_barrier')
        return wi
    e(f's_cmp_ge_u32 s31, 64\ns_cbranch_scc1 {name}_notM')
    a.srd(52, 36, 524288); a.srd(56, 38, 524288)
    e('s_lshl_b32 s27, s66, 8\ns_lshl_b32 s28, s67, 2\ns_add_u32 s27, s27, s28\ns_lshl_b32 s27, s27, 10')
    e('s_lshl_b32 s69, s25, 14\ns_add_u32 s69, s69, s27\ns_lshl_b32 s70, s26, 14\ns_add_u32 s70, s70, s27')
    nl = ln(rows_dma(52, 69, 131072, 8192, 0) + rows_dma(56, 70, 131072, 8192, BREG))
    def mb(st, vi, r):
        if st is None: e(f's_mul_i32 s27, s67, {32*PITCH}\ns_add_u32 s27, s27, {BREG}\nv_add_u32 v8, s27, v6')
        else: e(f'ds_read_b128 v[{r}:{r+3}], v8 offset:{vi*16*PITCH + 16*st}')
    nw = gemm(mb, 1, nl)
    e(f's_lshl_b32 s28, s26, 1\ns_add_u32 s28, s28, s67\ns_lshl_b32 s28, s28, 15\ns_lshl_b32 s27, s25, 1\ns_add_u32 s27, s27, s66\ns_lshl_b32 s27, s27, 11\ns_add_u32 s28, s28, s27\ns_add_u32 s28, s28, {WA_OFF}\ns_add_u32 s29, s28, 1024')
    e(f's_mov_b32 s27, {f2u(QSCALE)}')
    for i in range(16): e(f'v_mul_f32 v{48+i}, s27, v{48+i}')
    e(f's_branch {name}_pst')
    a.label(f'{name}_notM')
    e(f's_cmp_ge_u32 s31, 192\ns_cbranch_scc1 {name}_notW')
    e('s_lshr_b32 s35, s31, 7')
    a.srd(56, 50, 1024*1024)
    e('s_cmp_eq_u32 s35, 0\ns_cselect_b32 s52, s42, s48\ns_cselect_b32 s53, s43, s49\ns_mov_b32 s54, 524288\ns_mov_b32 s55, 0x20000')
    e('s_lshl_b32 s69, s67, 2\ns_lshl_b32 s70, s66, 4\ns_add_u32 s69, s69, s70\ns_lshl_b32 s70, s24, 3')
    e('s_cmp_eq_u32 s35, 0\ns_cselect_b32 s69, s69, s70\ns_cselect_b32 s70, 8, 4\ns_lshl_b32 s27, s26, 6\ns_add_u32 s69, s69, s27\ns_lshl_b32 s69, s69, 10\ns_lshl_b32 s70, s70, 10')
    e('v_lshl_add_u32 v8, v4, 10, v5')
    e('s_lshl_b32 s60, s35, 19\ns_lshl_b32 s27, s25, 7\ns_add_u32 s60, s60, s27\ns_lshl_b32 s27, s24, 17\ns_add_u32 s60, s60, s27\ns_lshl_b32 s27, s24, 14')
    ln(rows_dma(52, 69, 's70', 32768, 0) + [f's_add_u32 m0, s27, {BREG + i*1024}\n' + ('s_nop 0' if i == 0 else 's_add_u32 s60, s60, 8192') + f'\nbuffer_load_dwordx4 v8, {srd(56)}, s60 offen{WSC} lds' for i in range(16)])
    def wb(st, vi, r):
        if st is None:
            e("""v_bfe_u32 v11, v0, 2, 2
            v_lshl_add_u32 v8, v3, 7, v11
            v_lshlrev_b32 v8, 7, v8
            v_and_b32 v12, 3, v0
            v_and_b32 v11, 2, v11
            v_lshlrev_b32 v11, 1, v11
            v_or_b32 v12, v12, v11""")
            e(f's_lshl_b32 s27, s67, 2\nv_xor_b32 v12, s27, v12\nv_lshl_add_u32 v8, v12, 4, v8\nv_add_u32 v8, {BREG}, v8')
            return
        for x in range(2): e(f'ds_read_b64_tr_b16 v[{r+2*x}:{r+2*x+1}], v8 offset:{(8*st+4*x)*128 + 8*vi}')
    gemm(wb, 2, nl)
    e('s_lshl_b32 s69, s25, 2\ns_lshl_b32 s27, s67, 1\ns_add_u32 s69, s69, s27\ns_lshl_b32 s70, s26, 1\ns_add_u32 s70, s70, s66')
    e(f's_lshl_b32 s28, s69, 14\ns_lshl_b32 s29, s70, 10\ns_add_u32 s28, s28, s29\ns_add_u32 s28, s28, {W1_OFF}')
    e(f's_lshr_b32 s29, s69, 3\ns_lshl_b32 s29, s29, 4\ns_add_u32 s29, s29, s70\ns_lshl_b32 s29, s29, 13\ns_and_b32 s27, s69, 7\ns_lshl_b32 s27, s27, 10\ns_add_u32 s29, s29, s27\ns_add_u32 s29, s29, {WF_OFF}')
    e('s_cmp_eq_u32 s35, 0\ns_cselect_b32 s28, s28, s29\ns_cselect_b32 s29, 16, 1\ns_lshl_b32 s29, s29, 10\ns_add_u32 s29, s29, s28')
    a.label(f'{name}_pst')
    for vi in range(2):
        for k in range(4): e(f'v_cvt_pk_bf16_f32 v{176+4*vi+k}, v{48+8*vi+2*k}, v{49+8*vi+2*k}')
    for vi in range(2): e(f'buffer_store_dwordx4 v[{176+4*vi}:{179+4*vi}], v1, {srd(R_WS)}, s{28+vi} offen sc1')
    e(f's_branch {name}_pd')
    a.label(f'{name}_notW')
    e('s_sub_u32 s25, s31, 192\ns_and_b32 s26, s25, 3\ns_lshl_b32 s69, s25, 3\ns_lshr_b32 s25, s25, 2')
    a.srd(52, 44, 1024*1024); a.srd(56, 46, 31*1024); a.srd(60, 40, 524288)
    e('v_lshl_add_u32 v8, v4, 11, v5')
    e('s_lshl_b32 s28, s24, 18\ns_lshl_b32 s27, s26, 16\ns_add_u32 s28, s28, s27\ns_lshl_b32 s27, s25, 7\ns_add_u32 s28, s28, s27\ns_lshl_b32 s27, s24, 12')
    ops = [f's_add_u32 m0, s27, {i*1024}\n' + ('s_nop 0' if i == 0 else 's_add_u32 s28, s28, 16384') + f'\nbuffer_load_dwordx4 v8, {srd(52)}, s28 offen{WSC} lds' for i in range(4)]
    e('s_lshl_b32 s35, s24, 1\ns_add_u32 s69, s69, s35\ns_lshr_b32 s35, s69, 4\ns_lshl_b32 s35, s35, 14\ns_and_b32 s29, s69, 15\ns_lshl_b32 s29, s29, 6\ns_add_u32 s35, s35, s29')
    e('v_lshlrev_b32 v9, 10, v2\nv_lshl_add_u32 v9, v3, 4, v9')
    ops += [f'buffer_load_dwordx4 v[{128+4*k}:{131+4*k}], v9, {srd(60)}, s35 offen offset:{64*k}' for k in range(2)]
    e('s_sub_u32 s70, s31, 248\ns_lshl_b32 s70, s70, 2\ns_add_u32 s70, s70, s24\ns_cmp_ge_u32 s31, 248\ns_cselect_b32 s70, s70, 0x8000\ns_lshl_b32 s29, s70, 5')
    e('v_and_b32 v11, 1, v3\nv_lshlrev_b32 v11, 14, v11\nv_lshl_add_u32 v11, v2, 1, v11')
    ops += [('s_add_u32 s29, s29, 4096\n' if ip % 4 == 0 and ip else '') + f'buffer_load_ushort v{136+ip}, v11, {srd(56)}, s29 offen offset:{1024*(ip%4)}' for ip in range(16)]
    def uphook():
        e("""v_bfe_u32 v6, v0, 2, 2
        v_lshl_add_u32 v8, v3, 5, v6
        v_lshlrev_b32 v8, 7, v8
        v_and_b32 v9, 3, v0
        v_and_b32 v6, 2, v6
        v_lshlrev_b32 v6, 5, v6""")
        e('s_cmp_lt_u32 s25, 8\ns_cselect_b32 s27, 3, 4\ns_cselect_b32 s28, 32, 8')
        e('v_lshlrev_b32 v9, s27, v9\nv_add_u32 v8, v8, v9\ns_lshl_b32 s27, s24, 10\nv_add_u32 v8, s27, v8')
        e('v_add_u32 v9, v8, v6\nv_add_u32 v11, s28, v9\nv_xor_b32 v6, 64, v6\nv_add_u32 v12, v8, v6\nv_add_u32 v13, s28, v12')
        e(f's_lshl_b32 s28, s25, 16\ns_add_u32 s28, s28, {WA_OFF + 524288}\ns_lshl_b32 s29, s26, 2\ns_add_u32 s29, s29, s24\ns_lshl_b32 s35, s29, 2\ns_lshl_b32 s29, s29, 11\ns_add_u32 s28, s28, s29\ns_add_u32 s29, s28, 32768')
        e(f's_lshl_b32 s27, s25, 7\ns_add_u32 s35, s35, s27\ns_add_u32 s35, s35, {FU_REL}')
        e('s_waitcnt vmcnt(18)\ns_barrier')
        for f in range(4):
            for x in range(2): e(f'ds_read_b64_tr_b16 v[{160+4*f+2*x}:{161+4*f+2*x}], v{[9,11,12,13][f]} offset:{512*x}')
        e('s_waitcnt lgkmcnt(0)')
        for f in range(4): e(f'buffer_store_dwordx4 v[{160+4*f}:{163+4*f}], v1, {srd(R_WS)}, s{28+f//2} offen offset:{1024*(f%2)} sc1')
    ln(ops, [f's_waitcnt vmcnt(0)\nbuffer_store_dword v{V_TAG}, off, {srd(R_FL)}, s35{FSC}'], uphook, 99)
    a.mark('p_d')
    for q in range(8): e(f'v_lshl_or_b32 v{64+q}, v{137+2*q}, 16, v{136+2*q}')
    e(f's_lshl_b32 s69, s69, 10\ns_add_u32 s69, s69, {WV_OFF}')
    for k in range(2): e(f'buffer_store_dwordx4 v[{128+4*k}:{131+4*k}], v1, {srd(R_WS)}, s69 offen offset:{1024*k} sc1')
    a.srd(56, 4, DW_SZ, DW_OFF)
    e('s_lshl_b32 s70, s70, 11')
    for k in range(2): e(f'buffer_store_dwordx4 v[{64+4*k}:{67+4*k}], v1, {srd(56)}, s70 offen offset:{1024*k} sc1')
    e(f's_barrier\ns_waitcnt vmcnt(0)\n' + flagX + f'\nbuffer_store_dword v{V_TAG}, off, {srd(R_FL)}, s68{FSC}')
    e(p0); e('s_waitcnt vmcnt(0)'); poll([p0], [14], None)
    for i in range(nw): w0(i)
    e(pX)
    e('s_mov_b32 s68, 0x100000')
    for _ in range(2): e(f'buffer_store_dword v{V_TAG}, off, {srd(R_FL)}, s68{FSC}')
    a.label(f'{name}_pd')
    e('s_mov_b32 s6, s68\ns_mov_b32 s7, s50')
    a.mark('p_e')
    return nw, pX

def fused_kernel(a, name, kidx=1, merge=False, pm0=2, tmode=1, l2pf=0, side3=False, nside=20, ksc=' sc1', n_early=24, slp=4, fx_st=15, pearly=False, xmap=False, order=(0,2,1), DF=7, W=2, AW=2, dlate=False, nodma=False, f16=True, t16=True, xpf=True, pre=0, vper=3, npub=(4,12,7), fA=-4, pA=32, fB=50, pB=74, pD=8, pp=2, wp5=99, osc='', xearly=True, dbgp=False, qlag=False, nost=(), fsc=' sc1', xm=False, nobar=False, flagA_unit=None, pollA_unit=None, flagC_n=8, pf=True, dcost=1, psc=' sc1', FDF=12, nopl=False, nopub=False, wpf=False, plsc=' sc1'):
    e = a.e
    a.begin(name)
    e(f's_cmp_ge_u32 s2, 256\ns_cbranch_scc1 {name}_end')
    a.stamp_begin()
    e(f's_load_dwordx2 s[4:5], s[0:1], 88\ns_load_dwordx2 s[{R_AUX}:{R_AUX+1}], s[0:1], 0\ns_load_dwordx2 s[{R_OUT}:{R_OUT+1}], s[0:1], 72')
    if merge: e('s_load_dwordx16 s[36:51], s[0:1], 8')
    HS1 = ' sc1' if merge else ''
    e('s_and_b32 s30, s2, 7\ns_lshr_b32 s31, s2, 3\ns_and_b32 s32, s31, 3\ns_lshr_b32 s31, s31, 2\ns_lshl_b32 s30, s30, 3\ns_add_u32 s30, s30, s31')
    e('s_lshr_b32 s33, s30, 5\ns_and_b32 s34, s30, 31')
    e('v_lshrrev_b32 v9, 6, v0\nv_and_b32 v0, 63, v0\ns_nop 0\nv_readfirstlane_b32 s24, v9')
    vq = VQ(e)
    if pf and not (merge and tmode): a.touch_code(name, f'{name}_R0', 60, 10, 120, 24, 2, issue=lambda op: vq.issue(op, 'tc'))
    e(f'v_lshlrev_b32 v{V_L16}, 4, v0')
    slow = []
    def poll(loads, regs, back_tag):
        lbl = a.newlabel(name + '_sp'); back = a.newlabel(name + '_bk')
        def chk():
            if back_tag: back_tag()
            if len(regs) == 1: e(f'v_cmp_ne_u32 vcc, v7, v{regs[0]}')
            else:
                e(f'v_xor_b32 v{regs[0]}, v{regs[0]}, v7')
                for r in regs[1:]: e(f'v_bitop3_b32 v{regs[0]}, v{r}, v7, v{regs[0]} bitop3:0xbe')
                e(f'v_cmp_ne_u32 vcc, 0, v{regs[0]}')
        chk()
        e(f's_cbranch_vccnz {lbl}')
        a.label(back)
        def sp():
            a.label(lbl)
            e(f's_mov_b32 s3, {SPIN_MAX}')
            l2 = a.newlabel(name + '_sl'); a.label(l2)
            e(f's_sleep {slp}')
            for l in loads: e(l)
            e('s_waitcnt vmcnt(0)')
            chk()
            e(f's_cbranch_vccz {back}')
            e(f's_sub_u32 s3, s3, 1\ns_cmp_lg_u32 s3, 0\ns_cbranch_scc1 {l2}\ns_branch {back}')
        slow.append(sp)

    if merge:
        nw0, pX = prep_phase(a, name, poll, order[0], n_early, fx_st, pearly, xmap, tmode)
        vq.q = [f'w0_{i}' for i in range(nw0)] + ['px'] + ['pst']*2; vq.done = 0
    e('s_mul_i32 s25, s33, 4000\ns_lshl_b32 s39, s34, 7\ns_add_u32 s25, s25, s39\ns_lshl_b32 s39, s24, 3\ns_add_u32 s25, s25, s39\ns_lshl_b32 s25, s25, 10')
    e(f's_mul_i32 s35, s24, {8*PITCH}\ns_sub_u32 s35, s35, 65536')
    e(f's_cmp_gt_u32 s32, 0\ns_cselect_b32 s38, 1, 0\ns_cselect_b32 s39, {SLOT}, 0\ns_add_u32 s27, s35, s39')
    e(f's_cmp_gt_u32 s32, 0\ns_cselect_b32 s28, 0, {3*SLOT}\ns_add_u32 s28, s28, s35')
    e('s_lshl_b32 s45, s32, 2\ns_add_u32 s45, s45, s24')
    e(f's_lshl_b32 s46, s45, 15\ns_add_u32 s46, s46, {WA_OFF}')
    if not merge:
        e('s_waitcnt lgkmcnt(0)')
        a.srd(R_XA, 4, XA_SZ, XA_OFF); a.srd(R_WS, 4, WS_SZ)
    MB='v_mfma_f32_32x32x16_bf16'
    V_B0=2; V_B2=3; V_C0=12; V_C1=13; V_WP=6; V_ONE=7; V_FA=8; V_PL=9; V_B3=10; V_SQ=11; V_SU=12
    TMP=16; FR=32; Q=128
    ACCB = lambda unit: [128, 144][unit % 2] if (unit < 2 or (order[0] and unit in (4, 5))) else [96, 112][unit % 2]
    def fr(f): return FR + 4*(f % 16)
    def dma_ops(base, slot, src, src2, tag):
        ops = []
        for r in range(8):
            pre = f's_add_u32 m0, {base}, {65536 + slot*SLOT + r*PITCH - (r&3)*1024}'
            if r == 0: pre += f'\ns_add_u32 {src2}, {src}, 4096'
            if r == 4: pre += f'\ns_add_u32 {src}, {src}, 32768'
            so = src if r < 4 else src2
            ops.append((pre, lambda r=r, so=so: vq.issue(f'buffer_load_dwordx4 v{V_L16}, {srd(R_XA)}, {so} offen offset:{(r&3)*1024}{HS1} lds', tag)))
        return ops
    xops = lambda t: dma_ops('s27', t, 's25', 's29', f'x{t}') if t < 3 else dma_ops('s28', 0, 's25', 's29', 'x3')
    kops = lambda t: dma_ops('s27', t, 's26', 's29', f'k{t}')
    def wop(ps, i):
        r = (ps % 2)*128 + 4*i; ks, h = i // 2, i % 2
        pre = f's_add_u32 s47, s46, {order[ps]*524288 + (ks//2)*4096}' if i % 4 == 0 else None
        return (pre, lambda: vq.issue(f'buffer_load_dwordx4 a[{r}:{r+3}], v{V_L16 if f16 else V_WP}, {srd(R_WS)}, s47 offen offset:{(ks%2)*2048 + (1024 if f16 else 512)*h}{HS1}', f'w{ps}_{i}'))
    def now(ops):
        for pre, f in ops:
            if pre: e(pre); e('s_nop 0') if 'm0' in pre.split('\n')[-1] else None
            f()
    if merge:
        assert order == (2, 0, 1) and f16 and nw0 == 16
        vq.wait('px'); poll([pX], [4], None)
        a.mark('p_f')
    now(xops(0)); now(xops(1))
    e(f"""v_and_b32 v13, 3, v0
    v_and_b32 v14, 4, v0
    v_add_u32 v13, v13, v14
    v_bfe_u32 v14, v0, 4, 1
    v_lshl_add_u32 v13, v14, 3, v13
    v_lshlrev_b32 v13, 4, v13
    v_bfe_u32 v15, v0, 3, 1
    v_lshl_add_u32 v13, v15, 10, v13
    v_lshrrev_b32 v15, 5, v0
    v_lshl_add_u32 v{V_WP}, v15, 8, v13""")
    now([wop(0, i) for i in range(16 if merge else 0, 16)])
    a.srd(R_FL, 4, FLAG_SZ, FLAG_OFF)
    e(f's_mul_i32 s37, s33, 4096000\ns_add_u32 s37, s37, {GF_OFF}')
    e(f's_add_u32 s{R_GL}, s4, s37\ns_addc_u32 s{R_GL+1}, s5, 0\ns_mov_b32 s{R_GL+2}, 4096000\ns_mov_b32 s{R_GL+3}, 0x20000')
    e(f's_mov_b32 s{R_AUX+2}, {XA_SZ}\ns_mov_b32 s{R_AUX+3}, 0x20000\ns_mov_b32 s{R_OUT+2}, {XA_SZ}\ns_mov_b32 s{R_OUT+3}, 0x20000')
    a.srd(R_OP, 4, OP_SZ, OP_OFF)
    if side3: e('s_mul_i32 s40, s30, 3\ns_add_u32 s40, s40, s32\ns_sub_u32 s40, s40, 1\ns_mul_i32 s40, s40, 3\ns_add_u32 s40, s40, s24\ns_cmp_eq_u32 s24, 3\ns_cselect_b32 s40, 0x200, s40')
    else: e('s_lshl_b32 s40, s30, 1\ns_add_u32 s40, s40, s32\ns_sub_u32 s40, s40, 1\ns_lshl_b32 s40, s40, 2\ns_add_u32 s40, s40, s24')
    e('s_and_b32 s41, s40, 31\ns_lshr_b32 s42, s40, 5')
    e(f'v_and_b32 v13, 15, v0\nv_lshlrev_b32 v{V_FA}, 2, v13\nv_lshlrev_b32 v13, 4, v13\nv_lshl_add_u32 v13, v15, 8, v13')
    e(f'v_lshl_add_u32 v{V_SQ}, v14, 10, v13\nv_lshl_add_u32 v{V_SU}, v14, 14, v13')
    if f16: e(f'v_and_b32 v13, 15, v0\nv_mul_u32_u24 v13, {PITCH}, v13\nv_lshrrev_b32 v15, 4, v0\nv_lshl_add_u32 v13, v15, 8, v13')
    else: e(f'v_and_b32 v13, 31, v0\nv_mul_u32_u24 v13, {PITCH}, v13\nv_lshl_add_u32 v13, v15, 8, v13')
    e(f's_mul_i32 s39, s38, {SLOT}\nv_add_u32 v{V_B0}, s39, v13\nv_add_u32 v{V_B2}, {2*SLOT}, v{V_B0}\ns_sub_u32 s39, s28, s35\nv_add_u32 v{V_B3}, s39, v13')
    e(('s_cmp_ge_u32 s40, 0x200' if side3 else 's_cmp_eq_u32 s32, 3') + '\ns_cselect_b32 s37, 0x50000000, 0')
    e(f's_lshl_b32 s43, s42, 15\ns_add_u32 s43, s43, {WV_OFF}\ns_add_u32 s43, s43, s37\ns_lshl_b32 s44, s41, 14\ns_add_u32 s44, s44, {W1_OFF}\ns_add_u32 s44, s44, s37')
    e(f'v_mov_b32 v{V_C0}, {f2u(C0)}\nv_mov_b32 v{V_C1}, {f2u(C1)}')
    if not merge: e(f'v_mov_b32 v{V_ONE}, 1')
    e(f's_lshr_b32 s36, s41, 3\ns_lshl_b32 s36, s36, 4\ns_add_u32 s36, s36, s42\ns_lshl_b32 s36, s36, 13\ns_add_u32 s36, s36, s37\ns_and_b32 s37, s41, 7\ns_lshl_b32 s37, s37, 10\ns_add_u32 s36, s36, s37\ns_add_u32 s36, s36, {WF_OFF + 524288}')
    e('s_mul_i32 s48, s33, 250\ns_lshl_b32 s49, s34, 3\ns_add_u32 s48, s48, s49\ns_lshl_b32 s48, s48, 14')
    e('s_lshl_b32 s49, s45, 10\ns_add_u32 s50, s48, s49\ns_lshl_b32 s49, s45, 11\ns_add_u32 s51, s48, s49')
    e('s_lshl_b32 s49, s24, 15\ns_add_u32 s48, s48, s49')
    e('s_add_u32 s49, s33, 1\ns_mul_i32 s49, s49, 4096000')
    for off, d in ((QF_OFF, R_Q), (UF_OFF, R_U), (GF_OFF, R_G)):
        e(f's_add_u32 s{d}, s4, {off}\ns_addc_u32 s{d+1}, s5, 0\ns_mov_b32 s{d+2}, s49\ns_mov_b32 s{d+3}, 0x20000')
    e('s_lshl_b32 s40, s30, 6\ns_lshl_b32 s41, s45, 2\ns_add_u32 s41, s41, s40')
    e('s_mul_i32 s26, s32, 992\ns_mul_i32 s39, s33, 4000\ns_add_u32 s26, s26, s39\ns_lshl_b32 s39, s38, 5\ns_add_u32 s26, s26, s39\ns_lshl_b32 s39, s24, 3\ns_add_u32 s26, s26, s39\ns_lshl_b32 s26, s26, 10')
    seq = [(u, i) for i in range(32) for u in range(2)] + [(u, i) for u in range(2, 12) for i in range(32)]
    def fread(n):
        u, i = seq[n]; t = u % 4; r = fr(n)
        b, o = [(V_B0, 0), (V_B0, SLOT), (V_B2, 0), (V_B3, 0)][t]
        return f'ds_read_b128 v[{r}:{r+3}], v{b} offset:{o + (16*PITCH if f16 else 512)*(i%2) + 16*(i//2)}'
    def epi_ops(unit, pk=False, TMP=16):
        ps, t = unit // 4, unit % 4
        kind = order[ps]; ops = []
        def v(s, c=1): ops.append(('v', s, c))
        for b in range(2):
            x = [ACCB(unit) + 8*b + j for j in range(8)]; o = (160 if unit == (4 if order[0] else 1) else TMP + 8) + 4*b
            if kind and not pk:
                for h in range(2):
                    xs = x[4*h:4*h+4]; tt = [TMP + 4*h + j for j in range(4)]
                    for j in range(4): v(f'v_mul_f32 v{tt[j]}, v{xs[j]}, v{xs[j]}')
                    for j in range(4): v(f'v_fma_f32 v{tt[j]}, v{tt[j]}, v{V_C1}, v{V_C0}')
                    for j in range(4): v(f'v_mul_f32 v{tt[j]}, v{tt[j]}, v{xs[j]}')
                    for j in range(4): v(f'v_exp_f32 v{tt[j]}, v{tt[j]}', 2)
                    for j in range(4): v(f'v_add_f32 v{tt[j]}, 1.0, v{tt[j]}')
                    for j in range(4): v(f'v_rcp_f32 v{tt[j]}, v{tt[j]}', 2)
                    for j in range(4): v(f'v_mul_f32 v{xs[j]}, v{xs[j]}, v{tt[j]}')
            elif kind:
                P2 = lambda r: f'v[{r}:{r+1}]'
                for j in range(0, 8, 2): v(f'v_pk_mul_f32 {P2(TMP+j)}, {P2(x[j])}, {P2(x[j])}')
                for j in range(0, 8, 2): v(f'v_pk_fma_f32 {P2(TMP+j)}, {P2(TMP+j)}, {P2(V_C0)}, {P2(V_C0)} op_sel:[0,1,0] op_sel_hi:[1,1,0]')
                for j in range(0, 8, 2): v(f'v_pk_mul_f32 {P2(TMP+j)}, {P2(TMP+j)}, {P2(x[j])}')
                for j in range(8): v(f'v_exp_f32 v{TMP+j}, v{TMP+j}', 2)
                for j in range(0, 8, 2): v(f'v_pk_add_f32 {P2(TMP+j)}, {P2(TMP+j)}, 1.0 op_sel_hi:[1,0]')
                for j in range(8): v(f'v_rcp_f32 v{TMP+j}, v{TMP+j}', 2)
                for j in range(0, 8, 2): v(f'v_pk_mul_f32 {P2(x[j])}, {P2(x[j])}, {P2(TMP+j)}')
            for k in range(4): v(f'v_cvt_pk_bf16_f32 v{o+k}, v{x[2*k]}, v{x[2*k+1]}')
            R = [R_Q, R_U, R_G][kind]
            pre = f's_add_u32 s49, s{50 if kind else 51}, {t*32768 + (b*(16384 if kind else 1024) if f16 else 0)}'
            ops.append(('m', (pre, lambda o=o, b=b, R=R: vq.issue(f'buffer_store_dwordx4 v[{o}:{o+3}], v{V_L16 if f16 else (V_SU if kind else V_SQ)}, {srd(R)}, {"s37" if kind in nost else "s49"} offen offset:{0 if f16 else 512*b}{fsc if kind else " sc1"}', f'st{kind}')), 3))
        return ops
    pollA_ld = f'buffer_load_dword v{V_PL}, v{V_FA}, {srd(R_FL)}, s40 offen offset:{FA_REL}{FSC}'
    def qop(i):
        pre = 's_add_u32 s48, s48, 4096' if i % 4 == 0 and i else None
        return (pre, lambda: vq.issue(f'buffer_load_dwordx4 v[{Q+4*i}:{Q+4*i+3}], v{V_L16}, {srd(R_Q)}, s48 offen offset:{(i%4)*1024} sc1', f'q{i}'))
    bar = ('s_barrier', lambda: None)
    mem = {u: [] for u in range(1, 12)}
    mem[1] = [x for pr in zip([wop(0, i) for i in range(16, 24)], xops(2)) for x in pr] + [wop(0, i) for i in range(24, 32)] + xops(3) + [wop(1, i) for i in range(4)]
    mem[2] = [wop(1, i) for i in range(4, 16)]
    mem[3] = [wop(1, i) for i in range(16, 32)]
    mem[4] = [wop(2, i) for i in range(12)]
    mem[5] = [(None, lambda: (vq.wait('st0'), vq.issue(f'buffer_store_dword v{V_ONE}, off, {srd(R_FL)}, s41 offset:{FA_REL}{FSC}', 'fl')))] + [wop(2, i) for i in range(12, 22)]
    mem[6] = [wop(2, i) for i in range(22, 32)] + [(None, lambda: vq.issue(pollA_ld, 'pa'))]
    mem[7] = [(None, lambda: None)]*3 + [(None, lambda: (vq.wait('pa'), poll([pollA_ld], [V_PL], None)))] + [qop(i) for i in range(8)]
    mem[8] = [qop(i) for i in range(8, 20)]
    mem[9] = [bar] + kops(0) + [qop(i) for i in range(20, 24)]
    mem[10] = [bar] + kops(1) + [qop(i) for i in range(24, 28)]
    mem[11] = [bar] + kops(2) + [qop(i) for i in range(28, 32)]
    if nost: e('s_mov_b32 s37, 0x70000000')
    EP = {2: [0, 1]}
    for b in range(3, 12): EP[b] = [b-1]
    if qlag and not order[0]: EP.update({2: [0], 3: [1, 2]})
    if order[0]:
        flagA = (None, lambda: (vq.wait('st0'), vq.issue(f'buffer_store_dword v{V_ONE}, off, {srd(R_FL)}, s41 offset:{FA_REL}{FSC}', 'fl')))
        nop = (None, lambda: None)
        EP.update({2: [0], 3: [1], 4: [2], 5: [3, 4]})
        mem[4] = [wop(2, i) for i in range(6)]
        mem[5] = [wop(2, i) for i in range(6, 10)]
        mem[6] = [wop(2, i) for i in range(10, 22)]
        mem[7] = [wop(2, i) for i in range(22, 32)]
        mem[8] = [nop]*7 + [flagA]
        mem[9] = [bar] + kops(0) + [nop, (None, lambda: vq.issue(pollA_ld, 'pa')), nop]
        mem[10] = [bar] + kops(1)[:4] + [(None, lambda: (vq.wait('pa'), poll([pollA_ld], [V_PL], None)))] + kops(1)[4:] + [qop(i) for i in range(12)]
        mem[11] = [qop(i) for i in range(12, 32)]
        if merge:
            e('v_and_b32 v15, 31, v0\nv_lshlrev_b32 v15, 2, v15')
            pM = f'buffer_load_dword v{V_PL}, v15, {srd(R_FL)}, s7 offen{FSC}'
            mem[1] = [(None, lambda: (vq.wait('pst'), vq.issue(f'buffer_store_dword v{V_ONE}, off, {srd(R_FL)}, s6{FSC}', 'fl')))] + mem[1][:32]
            mem[2] = [nop]*pm0 + [(None, lambda: vq.issue(pM, 'pm'))] + [nop]*5 + [(None, lambda: (vq.wait('pm'), poll([pM], [V_PL], None)))] + [wop(1, i) for i in range(10 - pm0)]
            mem[3] = [wop(1, i) for i in range(10 - pm0, 28)]
            mem[4] = [wop(1, i) for i in range(28, 32)] + [nop]*8 + [wop(2, i) for i in range(4)]
            mem[5] = [wop(2, i) for i in range(4, 10)]
            pG = [f'buffer_load_dwordx4 v[{192+4*i}:{195+4*i}], v{V_L16}, {srd(R_FL)}, s6 offen offset:{1024*i}{FSC}' for i in range(4)]
            mem[8] = [(f's_mov_b32 s6, {FP_REL}' if i == 0 else None, lambda i=i: vq.issue(pG[i], 'pg')) for i in range(4)] + [nop]*3 + [flagA, (None, lambda: (vq.wait('pg'), poll(pG, list(range(192, 208)), None)))]
    vq.wait('x1'); e('s_barrier')
    a.mark('x0')
    FW = 2
    for f in range(FDF): e(fread(f))
    def wait_for(n):
        if n >= len(seq): return
        u, i = seq[n]; w = []
        if n % FW == 0: w.append(f'lgkmcnt({max(0, min(n - 1 + FDF, len(seq)) - (n + FW))})')
        if u % 4 == 0:
            x = vq.need(f'w{u//4}_{i|1 if f16 else i}')
            if x: w.append(x)
        if w: e('s_waitcnt ' + ' '.join(w))
    n = 0
    wait_for(0)
    for blk in range(1, 12):
        N = 64 if blk == 1 else 32
        ep = [] if blk == 1 else [x for u_ in EP[blk] for x in epi_ops(u_)]
        if blk == 11:
            ep += [('v', x.strip(), 1) for x in f"""v_and_b32 v14, 7, v0
            v_lshlrev_b32 v14, 1, v14
            v_bfe_u32 v15, v0, 3, 1
            v_add_u32 v14, v14, v15
            v_mul_u32_u24 v14, {PITCH}, v14
            v_lshrrev_b32 v15, 4, v0
            v_lshl_add_u32 v2, v15, 8, v14
            v_bfe_u32 v14, v0, 2, 3
            v_lshlrev_b32 v14, 1, v14
            v_lshrrev_b32 v15, 5, v0
            v_add_u32 v14, v14, v15
            v_mul_u32_u24 v14, {PITCH}, v14
            v_and_b32 v15, 3, v0
            v_lshl_add_u32 v3, v15, 3, v14
            v_add_u32 v4, {2*SLOT}, v2
            v_add_u32 v5, {2*SLOT}, v3
            v_mov_b32 v8, 0
            v_mov_b32 v9, 0""".split('\n')]
        mq = list(mem[blk]); nm = len(mq); pend = []; nxt = None; lastst = -99
        nst = sum(1 for x in ep if x[0] == 'm'); stgap = (N - 6) // max(nst, 1)
        tot = sum(c for k, o, c in ep if k == 'v'); acc = 0.0; start = 2; issued = 0
        for g in range(N):
            u, i = seq[n]; d = ACCB(u); wr = ((u//4) % 2)*128 + 4*i
            c = '0' if i == 0 else f'v[{d}:{d+15}]'
            def small(jh):
                dd = d + 8*(i%2) + 4*jh; w2 = ((u//4) % 2)*128 + 4*((i & ~1) + jh)
                e(f'{MF} v[{dd}:{dd+3}], a[{w2}:{w2+3}], v[{fr(n)}:{fr(n)+3}], ' + ('0' if i < 2 else f'v[{dd}:{dd+3}]'))
            m = nxt; nxt = None
            if f16:
                small(0)
                if m: m[1]()
                elif g >= start:
                    b2 = 0
                    while ep and ep[0][0] == 'v' and b2 + ep[0][2] <= 2:
                        k, o, c2 = ep.pop(0); e(o); acc -= c2; b2 += c2
                small(1)
            else: e(f'{MB} v[{d}:{d+15}], a[{wr}:{wr+3}], v[{fr(n)}:{fr(n)+3}], {c}')
            wait_for(n + 1)
            if g < N - 1:
                if pend and g >= lastst + stgap: nxt = pend.pop(0); lastst = g
                elif mq and issued * (N - 2) <= g * nm: nxt = mq.pop(0); issued += 1
            if nxt and nxt[0]: e(nxt[0])
            if n + FDF < len(seq):
                un, inn = seq[n + FDF]
                if inn == 0 and un in (2, 3):
                    assert vq.q.count(f'x{un}') == 8
                    vq.wait(f'x{un}'); e('s_barrier')
                e(fread(n + FDF))
            if not f16 and nxt:
                if n + FDF >= len(seq): e('s_nop 0')
                nxt[1](); m = nxt; nxt = None
            if g >= start:
                acc += tot / (N - 2 - start) - (2 if m else 0) + (2.0 * (nm + 2) / N)
                while ep and (ep[0][0] == 'm' or acc >= ep[0][2] - 0.5):
                    k, o, c2 = ep.pop(0)
                    if k == 'v': e(o); acc -= c2
                    else: pend.append(o)
            n += 1
        for k, o, c2 in ep:
            if k == 'v': e(o)
            else: pend.append(o)
        now(pend + mq)
        a.mark(f'u{blk}')
    assert f16 and order[0]
    V_KB=2; V_VB=3; V_KA=4; V_VA=5; V_L=8; V_MX=10; V_T0=12; V_T1=13; V_T2=14; V_T3=15
    S_BUF=[16,32]; NEGM=48; P=56; AFR=64
    e(f's_mov_b32 s45, {THRESH}\ns_mov_b32 s31, 7')
    vq.wait('k1'); e('s_barrier')
    a.mark('attn0')
    def afr(f): return AFR + 4*(f % 8)
    def qf(step, qt): return Q + 4*(2*step+qt)
    cur = [0]
    def reads(f):
        f0 = f % 64; r = afr(f)
        if f0 < 32:
            sl = (cur[0] + 1 + f // 64) % 4
            step, kt = f0 // 2, f0 % 2
            return [f'ds_read_b128 v[{r}:{r+3}], v{V_KB if sl < 2 else V_KA} offset:{(sl%2)*SLOT + kt*16*PITCH + 16*step}']
        dt = f0 - 32; sl = (cur[0] + f // 64) % 4
        return [f'ds_read_b64_tr_b16 v[{r+2*kt}:{r+2*kt+1}], v{V_VB if sl < 2 else V_VA} offset:{(sl%2)*SLOT + kt*16*PITCH + 32*dt}' for kt in range(2)]
    def nreads(f): return 1 if (f % 64) < 32 else 2
    def mfma(n, Snext, first_c, zero=False):
        f = n // 2; r = afr(f); qt = n % 2
        if n < 64:
            step, kt = f // 2, f % 2
            d = Snext + 8*qt + 4*kt
            c = first_c(qt) if step == 0 else f'v[{d}:{d+3}]'
            return f'{MF} v[{d}:{d+3}], v[{r}:{r+3}], v[{qf(step,qt)}:{qf(step,qt)+3}], {c}'
        dt = f - 32; o = 8*dt + 4*qt
        return f'{MF} a[{o}:{o+3}], v[{r}:{r+3}], v[{P+4*qt}:{P+4*qt+3}], ' + ('0' if zero else f'a[{o}:{o+3}]')
    def maxtree(S):
        ops = []
        for qt in range(2):
            b = S + 8*qt; m = V_MX + qt
            ops.append([f'v_max3_f32 v{m}, v{b}, v{b+1}, v{b+2}', f'v_max3_f32 v{m}, v{m}, v{b+3}, v{b+4}',
                        f'v_max3_f32 v{m}, v{m}, v{b+5}, v{b+6}', f'v_max_f32 v{m}, v{m}, v{b+7}'])
        return [x for pair in zip(*ops) for x in pair]
    def xred(op, regs):
        ts = [V_T0, V_T1]
        for sw in ('32', '16'):
            for r, t in zip(regs, ts): e(f'v_mov_b32 v{t}, v{r}')
            e('s_nop 1')
            for r, t in zip(regs, ts): e(f'v_permlane{sw}_swap_b32 v{t}, v{r}')
            e('s_nop 1')
            for r, t in zip(regs, ts): e(f'{op} v{r}, v{r}, v{t}')
    SD = 96
    def side_ops():
        ops = []
        for st in range(16):
            for k in range(3):
                r = 12*st + 4*k; pre = None
                if st % 4 == 0 and st and k == 0: pre = 's_add_u32 s43, s43, 4096'
                if st % 4 == 0 and k == 1: pre = 's_add_u32 s47, s43, 16384'
                if st % 4 == 0 and st and k == 2: pre = 's_add_u32 s44, s44, 4096'
                so = ['s43', 's47', 's44'][k]
                ops.append((pre, f'buffer_load_dwordx4 a[{r}:{r+3}], v{V_L16}, {srd(R_WS)}, {so} offen offset:{1024*(st%4)}{HS1}', f'sd{st}'))
        return ops
    vq0 = (list(vq.q), vq.done)
    def qk0(j0):
        vq.q, vq.done = list(vq0[0]), vq0[1]
        S = S_BUF[j0 % 2]
        cur[0] = j0 - 1
        ep = epi_ops(11, TMP=96)
        mq = kops(2)
        sd = side_ops() if j0 == 1 else []
        mq += [(p, (lambda o=o, t=t: vq.issue(o, t))) for p, o, t in sd[:nside]]
        for f in range(DF): e(reads(f)[0])
        def w(n):
            ws = [f'lgkmcnt({DF-3})' if n else f'lgkmcnt({DF-2})', vq.need(f'q{2*(n//4)+1}')]
            e('s_waitcnt ' + ' '.join(x for x in ws if x))
        w(0); nxt = None; nm = len(mq); issued = 0
        for n in range(64):
            f = n // 2
            e(mfma(n, S, lambda qt: '0'))
            budget = 3
            if n % 2 == 1:
                if n % 4 == 3 and n < 63: w(n + 1)
                if ep and ep[0][0] == 'm': nxt = ep.pop(0)[1]
                elif mq and issued * 30 <= f * nm: nxt = mq.pop(0); issued += 1
                if nxt and nxt[0]: e(nxt[0])
                e(reads(f + DF if f + DF < 32 else f + DF + 32)[0])
            elif nxt: nxt[1](); nxt = None; budget = 0
            while ep and ep[0][0] == 'v' and budget >= ep[0][2]:
                k, o, c2 = ep.pop(0); e(o); budget -= c2
        if nxt: nxt[1]()
        for k, o, c2 in ep:
            if k == 'v': e(o)
            else: now([o])
        now(mq)
        e('s_nop 5\ns_add_u32 s29, s26, 4096')
        for o in maxtree(S): e(o)
        xred('v_max_f32', [V_MX, V_MX+1])
        for qt in range(2):
            for i in range(4): e(f'v_sub_f32 v{NEGM+4*qt+i}, 0, v{V_MX+qt}')
            for i in range(8): e(f'v_sub_f32 v{S+8*qt+i}, v{S+8*qt+i}, v{V_MX+qt}')
        a.mark('loop0')
        e(f's_add_u32 s41, s41, {FB_REL}\ns_waitcnt lgkmcnt(0)')
        return sd[nside:]

    V_G=128; V_DW=192; V_U=96
    vt = VQ(e)
    pollB_ld = [f'buffer_load_dwordx4 v[{96+4*i}:{99+4*i}], v{V_L16}, {srd(R_FL)}, s44 offen offset:{1024*i}{FSC}' for i in range(4)]
    PF = []
    for pl in range(2):
        for tt in range(2):
            r = V_U + 16 + 8*pl + 4*tt
            PF.append((None, f'buffer_load_dwordx4 v[{r}:{r+3}], v{V_L16}, {srd(R_U)}, s{46+tt} offen offset:{1024*(pl+2)} sc1', 'u', -1))
    for p in range(16):
        PF.append(('s_add_u32 s39, s39, 4096' if p % 4 == 0 and p else None, f'buffer_load_dwordx4 v[{V_G+4*p}:{V_G+4*p+3}], v{V_L16}, {srd(R_GL)}, s39 offen offset:{1024*(p%4)} sc1', 'g', p // 2))
    for pl in range(2):
        for tt in range(2):
            r = V_U + 8*pl + 4*tt
            PF.append((None, f'buffer_load_dwordx4 v[{r}:{r+3}], v{V_L16}, {srd(R_U)}, s{46+tt} offen offset:{1024*pl} sc1', 'u', -1))
    for i in range(16):
        PF.append(('s_add_u32 s38, s38, 4096' if i % 4 == 0 and i else None, f'buffer_load_dwordx4 v[{V_DW+4*i}:{V_DW+4*i+3}], v{V_L16}, {srd(R_WS)}, s38 offen offset:{1024*(i%4)}{HS1}', f'dw{i//4}', 8 + i // 2))
    def body(jm, special=False, first=None):
        par = jm % 2; cur[0] = jm
        Scur, Snext = S_BUF[par], S_BUF[1-par]
        sc = [[] for _ in range(128)]; gap = [[] for _ in range(128)]; used = [0]*128
        peel = first; first = {}
        def put(n, op, cost=1): gap[n].append(op); used[n] += cost
        def fit(lo, cost, hi=127):
            n = lo
            while used[n] + cost > 2 and n < hi: n += 1
            return n
        def rmap(f): return f + 32 if (special and f >= 64) else f
        rdq = {}
        for f in range(64):
            x = rmap(f + DF)
            if x == 64:
                sc[2*f] += ['s_waitcnt vmcnt(8)', 's_nop 0' if nobar else 's_barrier']; used[2*f] += 1
            for i, o in enumerate(reads(x)):
                put(2*f + i, o); rdq.setdefault(2*f + i, []).append(f + DF)
        q = list(range(DF)); wgaps = []
        for n in range(128):
            if (n + 1) % (2*AW) == 0:
                need = (n + 1)//2 + AW - 1
                sc[n].insert(0, f's_waitcnt lgkmcnt({sum(1 for x in q if x > need)})'); wgaps.append(n)
                assert need in q and sum(1 for x in q if x == need) == nreads(rmap(need))
            q += rdq.get(n, [])
        free_odd = [n for n in range(1, 64, 2) if used[n] == 0]
        eg = [n for n in free_odd if n in wgaps]; og = [n for n in free_odd if n not in wgaps]
        dg = []
        if not special:
            dg = [og[(i*len(og))//8] for i in range(8)] if dlate else og[:8]
            for r, n in enumerate(dg):
                sc[n-1].append(f's_add_u32 m0, s35, {65536 + ((jm+3)%4)*SLOT + r*PITCH - (r&3)*1024}')
                if nodma: used[n] += 2
                else: put(n, f'buffer_load_dwordx4 v{V_L16}, {srd(R_XA)}, {"s26" if r < 4 else "s29"} offen offset:{(r&3)*1024}{ksc} lds', 2)
            sc[70].append('s_add_u32 s26, s26, 32768')
            if jm == 0:
                sc[72].append('s_cmp_eq_u32 s31, 0'); sc[73].append(f's_cselect_b64 s[{R_XA}:{R_XA+1}], s[{R_AUX}:{R_AUX+1}], s[{R_XA}:{R_XA+1}]'); sc[74].append('s_cselect_b32 s26, s28, s26'); sc[74].append('s_nop 0')
            sc[76].append('s_add_u32 s29, s26, 4096')
        else:
            dg = og[1:]
            dg = dg[:len(og) + len(eg) - 16]
        epos = sorted(eg + [n for n in og if n not in dg])[:16]
        assert len(epos) == 16
        for k, n in enumerate(epos):
            op = f'v_exp_f32 v{Scur+k}, v{Scur+k}'
            if n in wgaps: first[n] = op; used[n] += 2
            else: put(n, op, 2)
        adds = [f'v_add_f32 v{V_L+(k//8)}, v{V_L+(k//8)}, v{Scur+k}' for k in range(16)]
        for n in wgaps:
            if n not in first and n != 127:
                first[n] = 's_nop 0'; used[n] += 1
        for k in range(8):
            n = fit(epos[2*k+1]+1, 1); put(n, f'v_cvt_pk_bf16_f32 v{P+k}, v{Scur+2*k}, v{Scur+2*k+1}')
            assert n <= 61, n
        def place(ops, lo):
            n = lo
            for op in ops:
                n = fit(n, 1); put(n, op)
            return n
        place(adds, max(epos)+1)
        n = place(maxtree(Snext) + [f'v_max_f32 v{V_T3}, v{V_MX}, v{V_MX+1}'], 72)
        if special:
            slots = dg + list(range(53, 124, 4))
            for n in slots:
                pr, op, tag, minq = PF.pop(0)
                assert n >= 4*minq + 4
                if pr: sc[n].append(pr)
                gap[n].insert(len(rdq.get(n, [])), (op, tag))
        if peel:
            for i, (pr, op, tag) in enumerate(peel):
                n_ = 2*((i*22)//len(peel))
                if pr: sc[n_].append(pr)
                gap[n_].insert(1, (op, tag))
        gap[125].append(f'v_cmp_lt_f32 vcc, s45, v{V_T3}')
        assert n <= 124
        for n in range(128):
            if peel and n == 64:
                for st in range(16):
                    vq.wait(f'sd{st}')
                    for jj in range(2):
                        e(f'{MF} v[{SD+4*jj}:{SD+4*jj+3}], a[{12*st+4*jj}:{12*st+4*jj+3}], a[{12*st+8}:{12*st+11}], ' + ('0' if st == 0 else f'v[{SD+4*jj}:{SD+4*jj+3}]'))
            e(mfma(n, Snext, lambda qt: f'v[{NEGM+4*qt}:{NEGM+4*qt+3}]', zero=peel is not None))
            for o in sc[n]: e(o)
            if n in first: e(first[n])
            for o in gap[n]:
                if isinstance(o, tuple): (vq if peel else vt).issue(*o)
                elif peel and o.startswith('buffer'): vq.issue(o, 'dma')
                else: e(o)
            if peel and 90 <= n < 94: e(f'v_cvt_pk_bf16_f32 v{SD+8+n-90}, v{SD+2*(n-90)}, v{SD+2*(n-90)+1}')
            if peel and n == 117: e(f'buffer_store_dwordx4 v[{SD+8}:{SD+11}], v{V_L16}, {srd(R_WS)}, s36 offen sc1')
    def rescale(par):
        Snext = S_BUF[1-par]
        e('s_nop 7\ns_nop 7')
        for qt in range(2): e(f'v_max_f32 v{V_MX+qt}, 0, v{V_MX+qt}')
        xred('v_max_f32', [V_MX, V_MX+1])
        for qt in range(2):
            for i in range(4): e(f'v_sub_f32 v{NEGM+4*qt+i}, v{NEGM+4*qt+i}, v{V_MX+qt}')
            for i in range(8): e(f'v_sub_f32 v{Snext+8*qt+i}, v{Snext+8*qt+i}, v{V_MX+qt}')
            e(f'v_sub_f32 v{V_MX+qt}, 0, v{V_MX+qt}\nv_exp_f32 v{V_MX+qt}, v{V_MX+qt}\ns_nop 0')
            e(f'v_mul_f32 v{V_L+qt}, v{V_L+qt}, v{V_MX+qt}')
    e(f's_cmp_eq_u32 s38, 0\ns_cbranch_scc1 {name}_q0')
    rest = qk0(1)
    body(1, first=rest)
    e(f's_cbranch_vccnz {name}_R1\ns_branch {name}_B1')
    a.label(f'{name}_q0')
    qk0(0)
    body(0, first=[])
    e(f's_cbranch_vccnz {name}_R0\ns_branch {name}_B0')
    a.label(f'{name}_L0')
    for jm in range(4):
        if jm == 1: a.label(f'{name}_L1')
        if jm == 2: e(f's_cmp_eq_u32 s31, 0\ns_cbranch_scc1 {name}_sp2')
        body(jm)
        e(f's_cbranch_vccnz {name}_R{jm}')
        a.label(f'{name}_B{jm}')
    e(f's_sub_u32 s31, s31, 1\ns_cmp_eq_u32 s31, 5\ns_cbranch_scc1 {name}_L0\ns_cmp_eq_u32 s31, 6\ns_cbranch_scc1 {name}_fb')
    for k in (4, 3, 2, 1): e(f's_cmp_eq_u32 s31, {k}\ns_cbranch_scc1 {name}_st{k}')
    a.touch_code(f'{name}_sp2', f'{name}_end', 50, 113, 112, 24, 2)
    e(f's_branch {name}_L0')
    a.label(f'{name}_st4')
    e(f's_mov_b32 s44, {FB_REL}')
    for l in pollB_ld: e(l)
    e('s_lshl_b32 s48, s34, 2\ns_add_u32 s48, s48, s32\ns_mul_i32 s49, s33, 125\ns_add_u32 s49, s49, s48')
    e('s_lshl_b32 s39, s48, 1\ns_add_u32 s39, s39, s24\ns_sub_u32 s39, s39, 1\ns_and_b32 s39, s39, 0xffff\ns_lshl_b32 s39, s39, 14')
    e(f's_lshl_b32 s38, s24, 14\ns_add_u32 s38, s38, {DW_OFF}')
    e('s_lshl_b32 s28, s49, 15\ns_lshl_b32 s47, s24, 13\ns_add_u32 s28, s28, s47')
    e('s_lshl_b32 s46, s49, 15\ns_lshl_b32 s47, s24, 12\ns_add_u32 s46, s46, s47\ns_add_u32 s47, s46, 16384')
    e(f'v_lshlrev_b32 v113, 7, v0\ns_branch {name}_L0')
    a.label(f'{name}_st3')
    poll(pollB_ld, list(range(96, 112)), None)
    if l2pf == 1: e(f'buffer_load_dword v112, v113, {srd(R_AUX)}, s28 offen')
    e(f's_branch {name}_L0')
    a.label(f'{name}_st2')
    if l2pf: e(f's_mul_i32 s36, s33, 4096000\ns_sub_u32 s36, s28, s36\nbuffer_load_dword v112, v113, {srd(R_GL)}, s36 offen sc1')
    e(f's_branch {name}_L0')
    a.label(f'{name}_st1')
    if l2pf: e(f'buffer_load_dword v112, v113, {srd(R_U)}, s28 offen sc1')
    e(f's_branch {name}_L0')
    a.label(f'{name}_fb')
    e(f'buffer_store_dword v{V_ONE}, off, {srd(R_FL)}, s41{FSC}')
    e(f's_branch {name}_L0')
    for rid in (0, 2, 4):
        a.label(f'{name}_R{rid}'); e(f's_mov_b32 s42, {rid}')
        if rid != 4: e(f's_branch {name}_RB0')
    a.label(f'{name}_RB0'); rescale(0); e(f's_branch {name}_RC')
    for rid in (1, 3):
        a.label(f'{name}_R{rid}'); e(f's_mov_b32 s42, {rid}')
        if rid != 3: e(f's_branch {name}_RB1')
    a.label(f'{name}_RB1'); rescale(1)
    a.label(f'{name}_RC')
    for i in range(0, 256, 2):
        qt = (i // 4) % 2
        e(f'v_accvgpr_read_b32 v{V_T1}, a{i}\nv_accvgpr_read_b32 v{V_T2}, a{i+1}\nv_mul_f32 v{V_T1}, v{V_T1}, v{V_MX+qt}\nv_mul_f32 v{V_T2}, v{V_T2}, v{V_MX+qt}')
        e(f'v_accvgpr_write_b32 a{i}, v{V_T1}\nv_accvgpr_write_b32 a{i+1}, v{V_T2}')
    e('s_nop 3')
    for rid in range(4): e(f's_cmp_eq_u32 s42, {rid}\ns_cbranch_scc1 {name}_B{rid}')
    e(f's_branch {name}_B4')
    a.label(f'{name}_sp2')
    a.mark('sp2')
    for _ in range(8): vt.q.append('old')
    body(2, special=True)
    e(f's_cbranch_vccnz {name}_R4')
    a.label(f'{name}_B4')
    a.mark('b4')
    cur[0] = 3; Scur = S_BUF[1]
    for k in range(16): e(f'v_exp_f32 v{Scur+k}, v{Scur+k}')
    for k in range(8): e(f'v_cvt_pk_bf16_f32 v{P+k}, v{Scur+2*k}, v{Scur+2*k+1}')
    e('s_nop 0')
    OC_L = SLOT; LL_L = OC_L + 32768; GT_L = 2*SLOT; UC_L = 4*SLOT; OCD = OC_L
    R_LP = R_Q
    V_GW=2; V_CB=3; V_XO=4; V_UCR=5; SEL=16; V_X=64
    wn = [0]
    pslots = []
    for r in range(4): pslots += [V_DW + 16*r + 4*j for j in range(4)] + [V_U + 8*r + 4*j for j in range(2)]
    free = []; wmap = {}
    def wreg(i): return wmap[i]
    def wl():
        i = wn[0]
        if i >= 256 or not free: return False
        wmap[i] = free.pop(0)
        wn[0] += 1
        sg = (i & 127) // 8
        p = 4*(sg % 4) + sg // 4 if i < 128 else sg
        if i >= 224:
            k = i - 224
            if i % 2 == 0: e(f's_add_u32 s41, s40, {524288 + (12 + (k%8)//2)*8192 + (k//8)*2048}')
            vt.issue(f'buffer_load_dwordx4 {wreg(i)}, v{V_L16 if t16 else V_WP}, {srd(R_WS)}, s41 offen offset:{(1024 if t16 else 512)*(i%2)} sc1', f'w{i}')
            return True
        if i % 4 == 0: e(f's_add_u32 s41, s40, {(i>>7)*524288 + p*8192 + ((i%8)//4)*4096}')
        vt.issue(f'buffer_load_dwordx4 {wreg(i)}, v{V_L16 if t16 else V_WP}, {srd(R_WS)}, s41 offen offset:{2048*((i%4)//2) + (1024 if t16 else 512)*(i%2)}' + (' sc1' if i >= 128 else HS1), f'w{i}')
        return True
    lq = LQ(e)
    pubn = [0]
    def pub_ops(T, lqq=None):
        fidx = pubn[0]; pubn[0] += 1
        u, qt = fidx // 2, fidx % 2; o = T + 8 + 4*(fidx % 2); ops = []
        for j in range(8): ops.append(lambda j=j: e(f'v_accvgpr_read_b32 v{T+j}, a{16*u + 8*(j//4) + 4*qt + j%4}'))
        for j in range(4): ops.append(lambda j=j: e(f'v_cvt_pk_bf16_f32 v{o+j}, v{T+2*j}, v{T+2*j+1}'))
        def st():
            if fidx % 4 == 0 and fidx: e('s_add_u32 s29, s29, 4096')
            if xm: e('s_not_b64 exec, s[30:31]')
            vt.issue(f'buffer_store_dwordx4 v[{o}:{o+3}], v{V_L16}, {srd(R_OP)}, s29 offen offset:{(fidx%4)*1024} sc1', 'ps' if fidx >= 16 else 'psA')
            e('s_mov_b64 exec, s[30:31]')
            lq.issue(f'ds_write_b128 v{V_L16}, v[{o}:{o+3}] offset:{OC_L + 1024*fidx}', 'pw')
            e('s_mov_b64 exec, -1')
            if qt == 1: free.extend(f'a[{16*u+4*j}:{16*u+4*j+3}]' for j in range(4))
        ops += [st]
        return ops
    SC = []
    def S_(t): SC.extend(t.split('\n'))
    S_(f's_add_u32 s{R_LP}, s4, {LP_OFF}|s_addc_u32 s{R_LP+1}, s5, 0\ns_mov_b32 s{R_LP+2}, {LP_SZ}')
    S_('s_lshl_b32 s25, s30, 2\ns_add_u32 s36, s25, s24\ns_add_u32 s25, s25, s32')
    S_('s_cmp_eq_u32 s24, s32|s_cselect_b64 s[30:31], -1, 0|s_cselect_b32 s35, 0x4000, 0')
    S_(f's_mul_i32 s37, s32, {NS}\ns_add_u32 s37, s37, s35\ns_add_u32 s37, s37, s36\ns_lshl_b32 s35, s37, 8\ns_lshl_b32 s29, s37, 15')
    S_(f's_lshl_b32 s40, s24, 17\ns_add_u32 s40, s40, {WF_OFF}')
    S_(f's_lshl_b32 s36, s36, 6\ns_lshl_b32 s37, s32, 2\ns_add_u32 s36, s36, s37\ns_add_u32 s36, s36, {FC_REL}')
    S_(f's_mov_b32 s42, 0x3f803f80\ns_mov_b32 s43, 0xffff0000\ns_mov_b32 s44, {f2u(1/512)}\ns_lshl_b32 s39, s24, 13\ns_lshl_b32 s59, s24, 11')
    for k in range(3):
        S_(f's_add_u32 s37, s32, {k+1}\ns_and_b32 s37, s37, 3\ns_mul_i32 s37, s37, {NS}\ns_add_u32 s37, s37, s25\ns_lshl_b32 s{26+k}, s37, 8\ns_lshl_b32 s{45+k}, s37, 15\ns_add_u32 s{45+k}, s{45+k}, s59')
    S_(f's_lshl_b32 s37, s25, 6\ns_add_u32 s37, s37, {FC_REL}\ns_lshl_b32 s50, s49, 15\ns_add_u32 s51, s50, 16384')
    VC = [f'v_add_f32 v{V_L+(k%2)}, v{V_L+(k%2)}, v{Scur+8*(k%2)+k//2}' for k in range(16)]
    def V_(t): VC.extend(t.split('\n'))
    m, G, t3, t0, t1, t2 = 24, 25, 26, 27, 28, 29
    V_(f'v_and_b32 v{m}, 15, v0\nv_lshrrev_b32 v{G}, 4, v0\nv_lshrrev_b32 v{t3}, 1, v{G}')
    for sw in ('32', '16'):
        V_(f'v_mov_b32 v{V_T0}, v{V_L}\nv_mov_b32 v{V_T1}, v{V_L+1}|s_nop 1|v_permlane{sw}_swap_b32 v{V_T0}, v{V_L}\nv_permlane{sw}_swap_b32 v{V_T1}, v{V_L+1}|s_nop 1|v_add_f32 v{V_L}, v{V_L}, v{V_T0}\nv_add_f32 v{V_L+1}, v{V_L+1}, v{V_T1}')
    V_(f'v_and_b32 v{V_T0}, 16, v0\nv_cmp_eq_u32 vcc, 0, v{V_T0}\nv_lshlrev_b32 v{V_T1}, 4, v{m}\nv_lshl_add_u32 v{V_T1}, v{G}, 2, v{V_T1}')
    V_(f'v_cndmask_b32 v{V_MX}, v{NEGM+4}, v{NEGM}, vcc\nv_cndmask_b32 v{V_MX+1}, v{V_L+1}, v{V_L}, vcc\nv_cmp_gt_u32 vcc, 32, v0|s_nop 1|v_cndmask_b32 v{V_MX}, v{V_MX+1}, v{V_MX}, vcc')
    V_(f'v_lshrrev_b32 v{t0}, 3, v{m}\nv_cmp_eq_u32 vcc, v{t0}, v{t3}\nv_bfe_u32 v{t0}, v{m}, 1, 2|s_nop 0|v_cndmask_b32 v{t0}, 8, v{t0}, vcc')
    V_(f'v_and_b32 v{t1}, 1, v{m}\nv_cmp_eq_u32 vcc, 1, v{t1}')
    for par in range(2):
        bsel = 0x0302 if par else 0x0100
        V_(f'v_mov_b32 v{t1}, {0x0c0c0000 | bsel}\nv_mov_b32 v{t2}, {(bsel << 16) | 0x0c0c}\nv_cndmask_b32 v{30+par}, v{t1}, v{t2}, vcc')
    V_(f'v_mov_b32 v{t1}, 0x0c0c0c0c')
    for r in range(4):
        V_(f'v_cmp_eq_u32 vcc, {r}, v{t0}|s_nop 1|v_cndmask_b32 v{SEL+r}, v{t1}, v30, vcc\nv_cndmask_b32 v{SEL+4+r}, v{t1}, v31, vcc')
    V_(f'v_lshl_add_u32 v{V_GW}, s24, 4, v{m}\nv_mul_u32_u24 v{V_GW}, {PITCH}, v{V_GW}\nv_lshl_add_u32 v{V_GW}, v{G}, 4, v{V_GW}\nv_add_u32 v{V_GW}, {GT_L}, v{V_GW}')
    V_(f'v_and_b32 v{V_CB}, 1, v{G}\nv_lshlrev_b32 v{V_CB}, 4, v{V_CB}\nv_add3_u32 v{V_CB}, v{V_CB}, v{m}, 1\nv_mul_u32_u24 v{V_CB}, {PITCH}, v{V_CB}\nv_lshl_add_u32 v{V_CB}, v{t3}, 4, v{V_CB}\nv_lshl_add_u32 v{V_CB}, s24, 8, v{V_CB}\nv_add_u32 v{V_CB}, {GT_L}, v{V_CB}')
    if t16:
        V_(f'v_lshlrev_b32 v{V_XO}, 10, v{m}\nv_lshl_add_u32 v{V_XO}, v{G}, 4, v{V_XO}\nv_lshl_add_u32 v{V_XO}, s24, 8, v{V_XO}')
        late = [f'v_add_u32 v{V_UCR}, {UC_L}, v{V_L16}', f'v_mul_u32_u24 v6, {PITCH}, v{m}', f'v_lshl_add_u32 v6, v{G}, 4, v6', 'v_lshl_add_u32 v6, s24, 8, v6', f'v_add_u32 v{V_T1}, {LL_L-4096}, v{V_T1}']
    else:
        V_(f'v_and_b32 v{V_XO}, 31, v0\nv_lshlrev_b32 v{V_XO}, 10, v{V_XO}\nv_lshl_add_u32 v{V_XO}, v{t3}, 4, v{V_XO}\nv_lshl_add_u32 v{V_XO}, s24, 8, v{V_XO}')
        late = [f'v_and_b32 v{V_UCR}, 1, v{G}', f'v_lshlrev_b32 v{V_UCR}, 10, v{V_UCR}', f'v_lshl_add_u32 v{V_UCR}, v{t3}, 8, v{V_UCR}', f'v_lshl_add_u32 v{V_UCR}, v{m}, 4, v{V_UCR}']
    assert all(p[2].startswith('dw') for p in PF)
    pq = []
    for _ in range(npub[0]): pq += pub_ops(32)
    for f in range(32, 32 + DF): lq.q += [f'v{f}']*2
    waits0 = lq.need('v33'); e(f's_waitcnt {waits0}')
    for n in range(64, 128):
        f = n // 2
        e(mfma(n, 0, None))
        mm = PF.pop(0) if (PF and n % 4 == 1) else None
        if n % 4 == 3 and n < 127: e('s_waitcnt ' + lq.need(f'v{f+2}'))
        elif mm and mm[0]: e(mm[0])
        for _ in range(1 if n % 4 == 3 else 2):
            if SC: e(SC.pop(0).replace('|', '\n'))
        if f + DF < 64: lq.issue(reads(f + DF)[n % 2], f'v{f+DF}')
        if mm: vt.issue(mm[1], mm[2])
        elif not VC and pq and pq[0].__name__ == 'st': pq.pop(0)()
        else:
            for _ in range(vper):
                if VC: e(VC.pop(0).replace('|', '\n'))
                elif pq and pq[0].__name__ != 'st': pq.pop(0)()
    assert not PF and not SC and not VC, (len(SC), len(VC))
    for o in pq: o()
    vt.issue(f'buffer_store_dword v{V_MX}, v{V_T1}, {srd(R_LP)}, s35 offen sc1', 'psA')
    vt.wait('g'); e('s_barrier')
    a.mark('attn1')
    def flagC(h):
        assert pubn[0] >= 16*(h+1) and vt.q.count('psA') == 17 and (h == 0 or vt.q.count('ps') == 16)
        vt.wait('ps' if h else 'psA')
        vt.issue(f'buffer_store_dword v{V_ONE}, off, {srd(R_FL)}, s36 offset:{16*h}{FSC}', 'fc')
    for o in late: e(o)
    e(f's_mov_b64 exec, s[30:31]\nds_write_b32 v{V_T1}, v{V_MX} offset:4096\ns_mov_b64 exec, -1'); lq.q.append('ll')
    S = [V_X+8, V_X+10, V_X+9, V_X+11]
    for i in range(4): e(f'v_mov_b32 v{S[i]}, 0')
    n1 = npub[1] * 2 // 5; n2 = npub[1] - n1
    for i in range(64):
        e(f'v_dot2_f32_bf16 v{S[i%2]}, v{V_G+i}, s42, v{S[i%2]}')
        e(f'v_dot2_f32_bf16 v{S[2+i%2]}, v{V_G+i}, v{V_G+i}, v{S[2+i%2]}')
        if (i+1)*n1 // 64 > i*n1 // 64:
            for o in pub_ops(80): o()
            wl()
        if i % 8 == 3: wl()
    e('s_nop 2')
    e(f'v_add_f32 v{S[0]}, v{S[0]}, v{S[1]}\nv_add_f32 v{S[2]}, v{S[2]}, v{S[3]}')
    for sw in ('16', '32'):
        e(f'v_mov_b32 v{S[1]}, v{S[0]}\nv_mov_b32 v{S[3]}, v{S[2]}\ns_nop 1')
        e(f'v_permlane{sw}_swap_b32 v{S[1]}, v{S[0]}\nv_permlane{sw}_swap_b32 v{S[3]}, v{S[2]}\ns_nop 0')
        e(f'v_add_f32 v{S[0]}, v{S[0]}, v{S[1]}\nv_add_f32 v{S[2]}, v{S[2]}, v{S[3]}')
    e(f'v_mul_f32 v{S[0]}, s44, v{S[0]}\nv_mul_f32 v{S[2]}, s44, v{S[2]}\nv_fma_f32 v{S[2]}, -v{S[0]}, v{S[0]}, v{S[2]}\nv_max_f32 v{S[2]}, 0, v{S[2]}')
    e(f'v_add_f32 v{S[2]}, {f2u(1e-5)}, v{S[2]}\nv_rsq_f32 v{S[2]}, v{S[2]}\ns_nop 0\nv_mul_f32 v{S[0]}, -v{S[0]}, v{S[2]}')
    for p in range(16):
        tb = 48 + 8*(p % 2)
        for k in range(4):
            e(f'v_lshlrev_b32 v{tb+2*k}, 16, v{V_G+4*p+k}\nv_and_b32 v{tb+2*k+1}, s43, v{V_G+4*p+k}')
        for j in range(0, 8, 2): e(f'v_pk_fma_f32 v[{tb+j}:{tb+j+1}], v[{tb+j}:{tb+j+1}], v[{S[0]}:{S[0]+1}], v[{S[0]}:{S[0]+1}] op_sel:[0,1,0] op_sel_hi:[1,1,0]')
        for k in range(4): e(f'v_cvt_pk_bf16_f32 v{V_G+4*p+k}, v{tb+2*k}, v{tb+2*k+1}')
        lq.issue(f'ds_write_b128 v{V_GW}, v[{V_G+4*p}:{V_G+4*p+3}] offset:{64*p}', 'gw')
        wl()
        if (p+1)*n2 // 16 > p*n2 // 16:
            for o in pub_ops(80): o()
    e(f'v_add_u32 v{V_GW}, s59, v{V_UCR}')
    e('s_waitcnt lgkmcnt(0)\ns_barrier'); lq.drained()
    a.mark('stage')
    ABUF = [8, 12, 24, 28]; CACC = 64; GB = 80; GACC = 128
    V_PA = 3
    pn = [0]; pok = [0]; prnd = [0]; plim = [15]
    def pload():
        k = pn[0]
        if k >= min(pok[0], 6*prnd[0], plim[0]): return False
        pn[0] += 1
        i, s = k // 3, k % 3
        if i % 2 == 0 and i: e(f's_add_u32 s{45+s}, s{45+s}, 8192')
        r = pslots[k]
        vt.issue(f'buffer_load_dwordx4 v[{r}:{r+3}], v{V_L16}, {srd(R_OP)}, s{45+s} offen offset:{1024*(i%2)} sc1', f'p{i}')
        return True
    pst = {}
    def events(t):
        for h, (ft, pt) in enumerate(((fA, pA), (fB, pB))):
            if t == ft: flagC(h); return True
            if t == pt:
                ix = min(6*prnd[0], plim[0]) - 1; r = pslots[ix]; assert pn[0] <= ix
                pst[h] = (f'buffer_load_dwordx4 v[{r}:{r+3}], off, {srd(R_FL)}, s37 offset:{16*h}{FSC}', r, pok[0])
                pok[0] = min(pok[0], ix)
                vt.issue(pst[h][0], f'pc{h}'); return True
            if t == pt + pD:
                vt.wait(f'pc{h}'); poll([pst[h][0]], [pst[h][1]+j for j in range(4)], None); pok[0] = 12*(h+1); return True
        return False
    HS = 1024 if t16 else 512
    def gm(i, Bbase, first, mid=None):
        e8 = i % 8 if i < 224 else 2*((i-224)//8) + i % 2
        d = GACC + 16*(e8 // 2)
        if not t16:
            Bq = Bbase + 4*(e8 % 2)
            e(f'{MB} v[{d}:{d+15}], {wreg(i)}, v[{Bq}:{Bq+3}], ' + ('0' if (first and e8 % 2 == 0) else f'v[{d}:{d+15}]'))
        else:
            for tt in range(2):
                dd = d + 8*tt + 4*(e8 % 2)
                e(f'{MF} v[{dd}:{dd+3}], {wreg(i)}, v[{Bbase+4*tt}:{Bbase+4*tt+3}], ' + ('0' if first else f'v[{dd}:{dd+3}]'))
                if tt == 0 and mid: mid()
    def waits(*ws):
        ws = [w for w in ws if w]
        if ws: e('s_waitcnt ' + ' '.join(ws))
    def stage(rc, rg):
        ring = [32 + 4*j for j in range(8)] + ([GACC + 4*j for j in range(4)] if rg is None else [])
        dfc = len(ring) - 2
        pq = []
        if rc == 0:
            for _ in range(npub[2]): pq += pub_ops(80)
        if rc == 1:
            while pubn[0] < 32: pq += pub_ops(V_DW)
        def crd(n):
            c, ip, tt = 2*rc + n // 32, (n // 2) % 16, n % 2; r = ring[n % len(ring)]
            lq.issue(f'ds_read_b128 v[{r}:{r+3}], v{V_CB} offset:{(ip+16*tt)*PITCH + 32*c}', f'c{rc}_{n}')
        def abuild(k, lo, hi):
            c, ip = 2*rc + k // 16, k % 16
            src = V_DW + 8*c + ip // 2
            for r in range(lo, hi): e(f'v_perm_b32 v{ABUF[k%4]+r}, v{src}, v{src}, v{SEL+4*(ip%2)+r}')
        def brd(j, h):
            r = GB + 8*(j % 2) + 4*h
            lq.issue(f'ds_read_b128 v[{r}:{r+3}], v{V_UCR} offset:{8192*(rg%2) + 2048*j + HS*h}', f'b{rg}_{j}')
        if rg is not None: brd(0, 0); brd(0, 1)
        if rc is not None:
            for n in range(dfc): crd(n)
            vt.wait(f'dw{rc}')
            abuild(0, 0, 4); abuild(1, 0, 4)
            waits(lq.need(f'c{rc}_3'))
        def gwait(k):
            if rg is not None and k < 32: waits(vt.need(f'w{32*rg + k}'), lq.need(f'b{rg}_{k//8}'))
        if rc is None: gwait(0)
        for k in range(32):
            if rc is not None:
                for tt in range(2):
                    n = 2*k + tt
                    d = CACC + 8*(k // 16) + 4*tt; r = ring[n % len(ring)]; A = ABUF[k % 4]
                    cc = '0' if k % 16 == 0 else f'v[{d}:{d+3}]'
                    e(f'{MF} v[{d}:{d+3}], v[{A}:{A+3}], v[{r}:{r+3}], {cc}')
                    if tt == 1:
                        gwait(k)
                        if rg is None and k % 2 == 1 and k < 31: waits(lq.need(f'c{rc}_{n+4}'))
                    if n + dfc < 64: crd(n + dfc)
                    if rg is None:
                        if tt == 0:
                            if not events(k - 32): wl()
                        else:
                            while pq and pq[0].__name__ in ('st',): pq.pop(0)()
                    if k + 2 < 32:
                        if rg is None: abuild(k+2, 2*tt, 2*tt+2)
                        else: abuild(k+2, tt, tt+1)
                    if rg is None:
                        for _ in range(3):
                            if pq and pq[0].__name__ not in ('st',): pq.pop(0)()
            if rg is not None:
                j, e8 = k // 8, k % 8; i = 32*rg + k
                gm(i, GB + 8*(j % 2), rg == 0 and j == 0, (lambda: abuild(k+2, 2, 4)) if (rc is not None and k + 2 < 32) else None)
                if rc is None: gwait(k+1)
                elif k % 2 == 1 and k < 31: waits(lq.need(f'c{rc}_{2*k+5}'))
                if e8 in (1, 2) and j < 3: brd(j+1, e8-1)
                free.append(wmap[i])
                if rc is not None:
                    ev = events(32*rg + k)
                    if pq and pq[0].__name__ == 'st': pq.pop(0)()
                    else: wl()
                    if not ev and not (k % pp == 0 and pload()) and k % 2 == 0: wl()
                    for _ in range(5):
                        if pq and pq[0].__name__ != 'st': pq.pop(0)()
                    if k + 2 < 32 and not t16: abuild(k+2, 2, 4)
                elif k % 2 == 1:
                    if not pload(): wl()
        for o in pq: o()
        if rc is not None:
            vt.wait('u')
            e('s_nop 7')
            for tt in range(2):
                ur = V_U + 8*rc + 4*tt; tb = [8, 24][tt]
                for q in range(4):
                    e(f'v_lshlrev_b32 v{tb+2*q}, 16, v{ur+q}\nv_and_b32 v{tb+2*q+1}, s43, v{ur+q}')
                for j in range(0, 8, 2):
                    x = CACC + 8*(j//4) + 4*tt + j%4
                    e(f'v_pk_mul_f32 v[{tb+j}:{tb+j+1}], v[{tb+j}:{tb+j+1}], v[{x}:{x+1}]')
                for q in range(4): e(f'v_cvt_pk_bf16_f32 v{ur+q}, v{tb+2*q}, v{tb+2*q+1}')
                e(f'ds_write_b128 v{V_GW}, v[{ur}:{ur+3}] offset:{8192*(rc%2) + 1024*tt}')
                wl()
            e('s_waitcnt lgkmcnt(0)\ns_barrier'); lq.drained()
            prnd[0] = rc + 1
    stage(0, None)
    a.mark('c0')
    stage(1, 0)
    assert pubn[0] == 32
    e(f's_cmp_lt_u32 s48, 125\ns_cbranch_scc1 {name}_cont')
    e('s_waitcnt vmcnt(0)')
    e(f'buffer_store_dword v{V_ONE}, off, {srd(R_FL)}, s36{FSC}\nbuffer_store_dword v{V_ONE}, off, {srd(R_FL)}, s36 offset:16{FSC}')
    a.endpgm(kidx)
    a.label(f'{name}_cont')
    a.mark('c1')
    stage(2, 1)
    a.mark('c2')
    assert pok[0] >= 12
    e(f'v_and_b32 v0, 0xf0, v{V_L16}')
    LMr = [pslots[15], pslots[16], pslots[17], 32]
    for k in range(3): vt.issue(f'buffer_load_dwordx4 v[{LMr[k]}:{LMr[k]+3}], v0, {srd(R_LP)}, s{26+k} offen sc1', 'L')
    stage(3, 2)
    a.mark('c3'); print('c3 wn', wn[0], 'pn', pn[0], 'free', len(free)) if dbgp else None
    assert pok[0] == 24
    e(f'v_add_u32 v{V_GW}, s59, v{V_L16}')
    e(f'v_add_u32 v0, {LL_L}, v0')
    lq.issue(f'ds_read_b128 v[32:35], v0', 'ol')
    OWN = [48 + 4*i for i in range(8)]
    for i in range(8): lq.issue(f'ds_read_b128 v[{OWN[i]}:{OWN[i]+3}], v{V_GW} offset:{OCD + 8192*(i//2) + 1024*(i%2)}', 'own')
    V_LS = 8
    def wts():
        o = [('f', lambda: waits(vt.need('L'), lq.need('own')))]
        v = lambda t: o.extend(('v', x) for x in t.split('\n'))
        for qt in range(2):
            L = [LMr[s] + qt for s in range(4)]; l = [LMr[s] + 2 + qt for s in range(4)]; t = 16 + qt
            v(f'v_min3_f32 v{t}, v{L[0]}, v{L[1]}, v{L[2]}\nv_min_f32 v{t}, v{t}, v{L[3]}')
            for x in L: v(f'v_sub_f32 v{x}, v{t}, v{x}')
            for x in L: v(f'v_exp_f32 v{x}, v{x}')
            v(f'v_mul_f32 v{t}, v{L[0]}, v{l[0]}')
            for k in range(1, 4): v(f'v_fmac_f32 v{t}, v{L[k]}, v{l[k]}')
            v(f'v_rcp_f32 v{t}, v{t}\ns_nop 0')
            for s_, x in enumerate(L): v(f'v_mul_f32 v{V_LS+2*s_+qt}, v{x}, v{t}')
        o.append(('f', lambda: plim.__setitem__(0, 24)))
        return o
    def comb(i):
        o = [('f', lambda: vt.wait(f'p{i}'))]
        qt = i % 2; tb = 16; ac = 24
        for s in range(4):
            src = OWN[i] if s == 3 else pslots[3*i + s]
            for k in range(4):
                o.append(('v', f'v_lshlrev_b32 v{tb+2*k}, 16, v{src+k}')); o.append(('v', f'v_and_b32 v{tb+2*k+1}, s43, v{src+k}'))
            if s < 3: o.append(('f', lambda src=src: free.append(f'v[{src}:{src+3}]')))
            for j in range(8):
                o.append(('v', f'v_mul_f32 v{ac+j}, v{tb+j}, v{V_LS+qt}' if s == 0 else f'v_fmac_f32 v{ac+j}, v{tb+j}, v{V_LS+2*s+qt}'))
        r = OWN[i]
        for k in range(4): o.append(('v', f'v_cvt_pk_bf16_f32 v{r+k}, v{ac+2*k}, v{ac+2*k+1}'))
        o.append(('d', f'ds_write_b128 v{V_GW}, v[{r}:{r+3}] offset:{OCD + 8192*(i//2) + 1024*(i%2)}'))
        return o
    V_X = 32
    xo = lambda k: f's{50 + k%2} offen offset:{64*(k//2)}' if t16 else f's50 offen offset:{32*k}'
    xq = [f'ds_read_b128 v[{V_X+4*k}:{V_X+4*k+3}], v6 offset:{16*PITCH*(k%2) + 64*(k//2)}' for k in range(8)]
    for st5 in range(4):
        i0 = 96 + 32*st5
        fl = (wts() if st5 == 0 else []) + (comb(2*st5) + comb(2*st5+1) if st5 < 4 else [])
        nv = sum(1 for x in fl if x[0] == 'v'); per = -(-nv // 28)
        def brd(j, h):
            off = 8192 + 2048*j if st5 == 0 else OCD + 2048*(4*(st5-1) + j)
            r = GB + 8*(j % 2) + 4*h
            lq.issue(f'ds_read_b128 v[{r}:{r+3}], v{V_UCR if st5 == 0 else V_L16} offset:{off + HS*h}', f'B{st5}_{j}')
        brd(0, 0); brd(0, 1)
        waits(vt.need(f'w{i0}'), lq.need(f'B{st5}_0'))
        for k in range(32):
            i = i0 + k; j, e8 = k // 8, k % 8
            gm(i, GB + 8*(j % 2), False)
            if k < 31: waits(vt.need(f'w{i+1}'), lq.need(f'B{st5}_{(k+1)//8}'))
            if e8 in (1, 2) and j < 3: brd(j+1, e8-1)
            if st5 == 3 and e8 in (4, 6): lq.issue(xq.pop(0), 'x')
            while fl and fl[0][0] == 'd': lq.issue(fl.pop(0)[1], 'cw')
            free.append(wmap[i])
            if k % wp5 != wp5 - 1:
                if not (k % 2 == 0 and pload()) and not wl(): pload()
            c = 0
            while fl and fl[0][0] != 'd' and c < per:
                kd, o = fl.pop(0)
                if kd == 'f': o()
                else: e(o); c += 1
        for kd, o in fl:
            if kd == 'f': o()
            elif kd == 'd': lq.issue(o, 'cw')
            else: e(o)
        if st5 < 4: e('s_waitcnt lgkmcnt(0)\ns_barrier'); lq.drained()
        a.mark(f'h{st5}'); print('st5', st5, 'wn', wn[0], 'pn', pn[0], 'free', len(free)) if dbgp else None
    assert not xq and pn[0] == 24
    def fin(k, pk):
        xr = V_X + 4*k; tb = 16 + 8*(k % 2); o = []
        for q in range(4): o += [f'v_lshlrev_b32 v{tb+2*q}, 16, v{xr+q}', f'v_and_b32 v{tb+2*q+1}, s43, v{xr+q}']
        if pk: o += [f'v_pk_add_f32 v[{tb+j}:{tb+j+1}], v[{tb+j}:{tb+j+1}], v[{GACC+8*k+j}:{GACC+8*k+j+1}]' for j in range(0, 8, 2)]
        else: o += [f'v_add_f32 v{tb+j}, v{tb+j}, v{GACC+8*k+j}' for j in range(8)]
        o += [f'v_cvt_pk_bf16_f32 v{xr+q}, v{tb+2*q}, v{tb+2*q+1}' for q in range(4)]
        o.append(f'buffer_store_dwordx4 v[{xr}:{xr+3}], v{V_XO}, {srd(R_OUT)}, {xo(k)}{osc}')
        return o
    for j in range(4):
        for h in range(2): lq.issue(f'ds_read_b128 v[{64+8*j+4*h}:{67+8*j+4*h}], v{V_L16} offset:{OCD + 2048*(12+j) + HS*h}', f'F{j}')
    while wl(): pass
    assert wn[0] == 256
    fl = []
    def drain(nmax):
        c = 0
        while fl and c < nmax and not fl[0].startswith('buffer'): e(fl.pop(0)); c += 1
    for k in range(32):
        i = 224 + k; j = (k % 8) // 2
        waits(vt.need(f'w{i}'), lq.need(f'F{j}'))
        gm(i, 64 + 8*j, False, lambda: drain(3))
        if fl and fl[0].startswith('buffer'): vt.issue(fl.pop(0), 'o')
        drain(3 if t16 else 6)
        if k % 8 == 0 and k: fl += fin(2*(k//8) - 2, False) + fin(2*(k//8) - 1, False)
    a.mark('h4')
    for o in fl: e(o)
    e('s_nop 7')
    for k in (6, 7):
        for o in fin(k, True): e(o)
    if merge:
        e(f's_or_b32 s38, s2, s24\ns_cmp_eq_u32 s38, 0\ns_cselect_b32 s38, 0, 0x10000\ns_add_u32 s38, s38, {EP_REL}')
        e(f'buffer_store_dword v{V_ONE}, off, {srd(R_FL)}, s38')
    a.mark('fin')
    a.endpgm(kidx)
    for sp in slow: sp()
    a.label(f'{name}_end')
    e('s_endpgm')
    a.end(name, 512, 102, 256)
    a.launch(name, 256, 256, 4*SLOT + 16384)
```

```python
import sys
sys.path.insert(0,'dev')
from asmlib import Asm
from layout import *
MF='v_mfma_f32_16x16x32_bf16'
import struct
def f2u(x): return struct.unpack('<I', struct.pack('<f', x))[0]
QSCALE = 512**-0.5 * 1.4426950408889634
PITCH = 1040
BREG = 64*PITCH

def k0_kernel(a, name, kidx=0, touch=True, noln=False, now=False, xnt='', wnt='', snt='', tlb=0):
    e = a.e
    a.begin(name)
    e(f's_cmp_ge_u32 s2, 256\ns_cbranch_scc1 {name}_end')
    a.stamp_begin()
    e('s_load_dwordx16 s[36:51], s[0:1], 0')
    e('s_load_dwordx2 s[52:53], s[0:1], 64')
    e('s_load_dwordx2 s[4:5], s[0:1], 88')
    e('v_lshrrev_b32 v9, 6, v0\nv_and_b32 v0, 63, v0\ns_nop 0\nv_readfirstlane_b32 s24, v9')
    if touch: a.touch_code(name, 'main_kernel_end', 64, 10, 95, 24, 2)
    e('v_lshlrev_b32 v1, 4, v0')
    e('v_and_b32 v2, 15, v0\nv_lshrrev_b32 v3, 4, v0')
    e('''v_lshrrev_b32 v4, 3, v0
    v_and_b32 v5, 7, v0
    v_and_b32 v6, 2, v4
    v_lshlrev_b32 v6, 1, v6
    v_xor_b32 v5, v5, v6
    v_lshlrev_b32 v5, 4, v5''')
    e('s_and_b32 s54, s24, 1\ns_bfe_u32 s55, s24, 0x10001\ns_lshr_b32 s56, s24, 2')
    e('s_waitcnt lgkmcnt(0)')
    a.stamp_mid(3)
    a.srd(8, 36, 0 if noln else XA_SZ); a.srd(20, 4, 0 if noln else XA_SZ, XA_OFF)
    e('s_lshl_b32 s60, s2, 3\ns_add_u32 s60, s60, s24\ns_lshl_b32 s60, s60, 12')
    for r in range(4): e(f'buffer_load_dwordx4 v[{16+4*r}:{19+4*r}], v1, s[8:11], s60 offen offset:{1024*r}{xnt}')
    e(f's_mul_i32 s29, s24, {8*PITCH}')
    def rows_dma(srd, off0, off1, ldsadd):
        for i in range(8):
            e(f's_add_u32 m0, s29, {ldsadd + i*PITCH - (i%4)*1024}\ns_nop 0')
            e(f'buffer_load_dwordx4 v1, s[{srd}:{srd+3}], s{off0 if i < 4 else off1} offen offset:{(i%4)*1024}{wnt} lds')
    e(f's_cmp_ge_u32 s2, 64\ns_cbranch_scc1 {name}_notM')
    e('s_and_b32 s25, s2, 7\ns_lshr_b32 s26, s2, 3')
    a.srd(12, 38, 0 if now else 524288); a.srd(16, 40, 0 if now else 524288)
    e('s_lshl_b32 s27, s54, 8\ns_lshr_b32 s28, s24, 1\ns_lshl_b32 s28, s28, 2\ns_add_u32 s27, s27, s28\ns_lshl_b32 s27, s27, 10')
    e('s_lshl_b32 s30, s25, 14\ns_add_u32 s30, s30, s27\ns_add_u32 s31, s30, 131072')
    e('s_lshl_b32 s32, s26, 14\ns_add_u32 s32, s32, s27\ns_add_u32 s33, s32, 131072')
    rows_dma(12, 30, 31, 0)
    rows_dma(16, 32, 33, BREG)
    e('s_mov_b32 s61, 0')
    e(f's_branch {name}_ln')
    a.label(f'{name}_notM')
    e(f's_cmp_ge_u32 s2, 192\ns_cbranch_scc1 {name}_notW')
    e('s_lshr_b32 s25, s2, 7\ns_and_b32 s26, s2, 7\ns_bfe_u32 s27, s2, 0x30003')
    a.srd(16, 52, 0 if now else 1024*1024)
    e('s_cmp_eq_u32 s25, 0\ns_cselect_b32 s12, s44, s50\ns_cselect_b32 s13, s45, s51\ns_mov_b32 s14, ' + ('0' if now else '524288') + '\ns_mov_b32 s15, 0x20000')
    e('s_lshl_b32 s30, s56, 5\ns_lshl_b32 s31, s55, 2\ns_add_u32 s30, s30, s31\ns_lshl_b32 s31, s54, 4\ns_add_u32 s30, s30, s31\ns_lshl_b32 s31, s24, 3')
    e('s_cmp_eq_u32 s25, 0\ns_cselect_b32 s30, s30, s31\ns_cselect_b32 s31, 8, 4\ns_lshl_b32 s32, s27, 6\ns_add_u32 s30, s30, s32\ns_add_u32 s31, s31, s30')
    e('s_lshl_b32 s30, s30, 10\ns_lshl_b32 s31, s31, 10')
    rows_dma(12, 30, 31, 0)
    e('v_lshl_add_u32 v7, v4, 10, v5')
    e('s_lshl_b32 s28, s25, 19\ns_lshl_b32 s32, s26, 7\ns_add_u32 s28, s28, s32\ns_lshl_b32 s32, s24, 16\ns_add_u32 s28, s28, s32\ns_lshl_b32 s32, s24, 13')
    for i in range(8):
        e(f's_add_u32 m0, s32, {BREG + i*1024}\ns_nop 0\nbuffer_load_dwordx4 v7, s[16:19], s28 offen{wnt} lds\ns_add_u32 s28, s28, 8192')
    e('s_mov_b32 s61, 1')
    e(f's_branch {name}_ln')
    a.label(f'{name}_notW')
    e('s_sub_u32 s25, s2, 192\ns_and_b32 s26, s25, 3\ns_lshr_b32 s25, s25, 2')
    a.srd(12, 46, 1024*1024)
    e('v_lshl_add_u32 v7, v4, 11, v5')
    e('s_lshr_b32 s28, s24, 1\ns_lshl_b32 s28, s28, 18\ns_lshl_b32 s30, s26, 16\ns_add_u32 s28, s28, s30\ns_lshl_b32 s30, s54, 15\ns_add_u32 s28, s28, s30\ns_lshl_b32 s30, s25, 7\ns_add_u32 s28, s28, s30\ns_lshl_b32 s30, s24, 11')
    for i in range(2):
        e(f's_add_u32 m0, s30, {i*1024}\ns_nop 0\nbuffer_load_dwordx4 v7, s[12:15], s28 offen{wnt} lds\ns_add_u32 s28, s28, 16384')
    a.srd(16, 48, 31*1024)
    e('s_sub_u32 s33, s2, 252\ns_lshl_b32 s33, s33, 3\ns_add_u32 s33, s33, s24\ns_cmp_ge_u32 s2, 252\ns_cselect_b32 s33, s33, 0x8000\ns_lshl_b32 s34, s33, 5')
    e('v_and_b32 v8, 1, v3\nv_lshlrev_b32 v8, 14, v8\nv_lshl_add_u32 v8, v2, 1, v8')
    for ip in range(13):
        e(f'buffer_load_ushort v{80+ip}, v8, s[16:19], s34 offen offset:{1024*(ip%4)}')
        if ip % 4 == 3: e('s_add_u32 s34, s34, 4096')
    a.srd(68, 42, 524288)
    e('s_sub_u32 s58, s2, 192\ns_lshl_b32 s58, s58, 3\ns_add_u32 s58, s58, s24\ns_lshr_b32 s59, s58, 4\ns_lshl_b32 s59, s59, 14\ns_and_b32 s57, s58, 15\ns_lshl_b32 s57, s57, 6\ns_add_u32 s59, s59, s57')
    e('v_lshlrev_b32 v13, 10, v2\nv_lshl_add_u32 v13, v3, 4, v13')
    e('buffer_load_dwordx4 v[76:79], v13, s[68:71], s59 offen')
    e('s_mov_b32 s61, 2')
    a.label(f'{name}_ln')
    e(f's_mov_b32 s62, 0xffff0000\ns_mov_b32 s63, {f2u(1/512)}\nv_mov_b32 v10, {f2u(1e-5)}')
    e('s_waitcnt vmcnt(16)')
    a.stamp_mid(0)
    def allsum(regs, tmps):
        for sh in (8, 4, 2, 1):
            for x in regs: e(f'v_add_f32_dpp v{x}, v{x}, v{x} row_ror:{sh} row_mask:0xf bank_mask:0xf')
        for sw in ('16', '32'):
            for x, t in zip(regs, tmps): e(f'v_mov_b32 v{t}, v{x}')
            e('s_nop 0')
            for x, t in zip(regs, tmps): e(f'v_permlane{sw}_swap_b32 v{t}, v{x}')
            e('s_nop 0')
            for x, t in zip(regs, tmps): e(f'v_add_f32 v{x}, v{x}, v{t}')
    X = lambda r, j: 32 + 8*r + j
    S = [64, 65, 66, 67]; Tm = [68, 69, 70, 71]
    for r in range(4):
        src = 16 + 4*r
        for k in range(4):
            e(f'v_lshlrev_b32 v{X(r,2*k)}, 16, v{src+k}\nv_and_b32 v{X(r,2*k+1)}, s62, v{src+k}')
    for r in range(4): e(f'v_add_f32 v{S[r]}, v{X(r,0)}, v{X(r,1)}')
    for j in range(2, 8):
        for r in range(4): e(f'v_add_f32 v{S[r]}, v{S[r]}, v{X(r,j)}')
    allsum(S, Tm)
    for r in range(4): e(f'v_mul_f32 v{S[r]}, s63, v{S[r]}')
    for j in range(8):
        for r in range(4): e(f'v_sub_f32 v{X(r,j)}, v{X(r,j)}, v{S[r]}')
    for r in range(4): e(f'v_mul_f32 v{S[r]}, v{X(r,0)}, v{X(r,0)}')
    for j in range(1, 8):
        for r in range(4): e(f'v_fmac_f32 v{S[r]}, v{X(r,j)}, v{X(r,j)}')
    allsum(S, Tm)
    for r in range(4): e(f'v_fma_f32 v{S[r]}, v{S[r]}, s63, v10')
    for r in range(4): e(f'v_rsq_f32 v{S[r]}, v{S[r]}')
    e('s_nop 0')
    for j in range(8):
        for r in range(4): e(f'v_mul_f32 v{X(r,j)}, v{X(r,j)}, v{S[r]}')
    for r in range(4):
        for k in range(4): e(f'v_cvt_pk_bf16_f32 v{16+4*r+k}, v{X(r,2*k)}, v{X(r,2*k+1)}')
    for r in range(4):
        e(f'buffer_store_dwordx4 v[{16+4*r}:{19+4*r}], v1, s[20:23], s60 offen offset:{1024*r}{snt}')
    a.srd(20, 4, FLAG_SZ, FLAG_OFF)
    e('s_lshl_b32 s57, s24, 8\ns_add_u32 s57, s57, s2\ns_lshl_b32 s57, s57, 10')
    for k in range(4): e(f'v_mov_b32 v{72+k}, 0')
    e('buffer_store_dwordx4 v[72:75], v1, s[20:23], s57 offen')
    a.stamp_mid(1)
    e('s_waitcnt vmcnt(5)\ns_barrier')
    a.stamp_mid(2)
    a.srd(20, 4, WS_SZ)
    if tlb:
        e('s_load_dwordx2 s[72:73], s[0:1], 72')
        e(f'v_lshlrev_b32 v14, {tlb}, v0\ns_lshl_b32 s74, s24, {tlb+6}\ns_cmp_lt_u32 s74, 0x5000000\ns_cselect_b32 s74, s74, 0x70000000')
        e('buffer_load_dword v15, v14, s[20:23], s74 offen')
        e(f's_waitcnt lgkmcnt(0)\ns_mov_b32 s74, {XA_SZ}\ns_mov_b32 s75, 0x20000')
        e('buffer_load_dword v15, v14, s[72:75], 0 offen')
    e(f's_cmp_eq_u32 s61, 2\ns_cbranch_scc1 {name}_up2')
    e(f'v_mul_u32_u24 v6, {PITCH}, v2\nv_lshl_add_u32 v6, v3, 8, v6')
    e(f's_mul_i32 s30, s54, {32*PITCH}\nv_add_u32 v7, s30, v6')
    def gemm(bread, nb):
        def rd(st):
            r = 32 + 12*(st % 4)
            for jj in range(2): e(f'ds_read_b128 v[{r+4*jj}:{r+4*jj+3}], v7 offset:{jj*16*PITCH + 16*st}')
            bread(st, r+8)
        for st in range(3): rd(st)
        for st in range(16):
            e(f's_waitcnt lgkmcnt({(2+nb)*min(2,15-st)})')
            r = 32 + 12*(st % 4)
            for jj in range(2):
                d = 16 + 4*jj
                c = '0' if st == 0 else f'v[{d}:{d+3}]'
                e(f'{MF} v[{d}:{d+3}], v[{r+4*jj}:{r+4*jj+3}], v[{r+8}:{r+11}], {c}')
            if st + 3 < 16: rd(st+3)
        e('s_nop 7')
    e(f's_cmp_eq_u32 s61, 1\ns_cbranch_scc1 {name}_w2')
    e(f's_lshl_b32 s30, s55, 1\ns_add_u32 s30, s30, s56\ns_mul_i32 s30, s30, {16*PITCH}\ns_add_u32 s30, s30, {BREG}\nv_add_u32 v8, s30, v6')
    gemm(lambda st, r: e(f'ds_read_b128 v[{r}:{r+3}], v8 offset:{16*st}'), 1)
    e(f's_mov_b32 s33, {f2u(QSCALE)}')
    for i in range(8): e(f'v_mul_f32 v{16+i}, s33, v{16+i}')
    for k in range(4): e(f'v_cvt_pk_bf16_f32 v{24+k}, v{16+2*k}, v{16+2*k+1}')
    e(f's_lshl_b32 s28, s26, 1\ns_add_u32 s28, s28, s55\ns_lshl_b32 s28, s28, 15\ns_lshl_b32 s30, s25, 1\ns_add_u32 s30, s30, s54\ns_lshl_b32 s30, s30, 11\ns_add_u32 s28, s28, s30\ns_lshl_b32 s30, s56, 10\ns_add_u32 s28, s28, s30\ns_add_u32 s28, s28, {WA_OFF}')
    e('buffer_store_dwordx4 v[24:27], v1, s[20:23], s28 offen')
    a.endpgm(kidx)
    a.label(f'{name}_w2')
    e('''v_bfe_u32 v9, v0, 2, 2
    v_lshl_add_u32 v8, v3, 7, v9
    v_lshlrev_b32 v8, 7, v8
    v_and_b32 v11, 3, v0
    v_and_b32 v9, 2, v9
    v_lshlrev_b32 v9, 1, v9
    v_or_b32 v11, v11, v9''')
    e(f's_lshl_b32 s30, s55, 2\nv_xor_b32 v11, s30, v11\nv_lshl_add_u32 v8, v11, 4, v8\ns_lshl_b32 s30, s56, 3\ns_add_u32 s30, s30, {BREG}\nv_add_u32 v8, s30, v8')
    def wb(st, r):
        for x in range(2): e(f'ds_read_b64_tr_b16 v[{r+2*x}:{r+2*x+1}], v8 offset:{(8*st+4*x)*128}')
    gemm(wb, 2)
    for k in range(4): e(f'v_cvt_pk_bf16_f32 v{24+k}, v{16+2*k}, v{16+2*k+1}')
    e('s_lshl_b32 s35, s26, 2\ns_lshl_b32 s33, s55, 1\ns_add_u32 s35, s35, s33\ns_add_u32 s35, s35, s56\ns_lshl_b32 s30, s27, 1\ns_add_u32 s30, s30, s54')
    e(f's_lshl_b32 s28, s35, 14\ns_lshl_b32 s29, s30, 10\ns_add_u32 s28, s28, s29\ns_add_u32 s28, s28, {W1_OFF}')
    e(f's_lshr_b32 s29, s35, 3\ns_lshl_b32 s29, s29, 4\ns_add_u32 s29, s29, s30\ns_lshl_b32 s29, s29, 13\ns_and_b32 s33, s35, 7\ns_lshl_b32 s33, s33, 10\ns_add_u32 s29, s29, s33\ns_add_u32 s29, s29, {WF_OFF}')
    e('s_cmp_eq_u32 s25, 0\ns_cselect_b32 s28, s28, s29')
    e('buffer_store_dwordx4 v[24:27], v1, s[20:23], s28 offen')
    a.endpgm(kidx)
    a.label(f'{name}_up2')
    for ip in range(13, 16):
        e(f'buffer_load_ushort v{80+ip}, v8, s[16:19], s34 offen offset:{1024*(ip%4)}')
    e(f's_lshl_b32 s58, s58, 10\ns_add_u32 s58, s58, {WV_OFF}')
    e('buffer_store_dwordx4 v[76:79], v1, s[20:23], s58 offen')
    e('''v_bfe_u32 v6, v0, 2, 2
    v_lshl_add_u32 v7, v3, 5, v6
    v_lshlrev_b32 v7, 7, v7
    v_and_b32 v9, 3, v0
    v_and_b32 v6, 2, v6
    v_lshlrev_b32 v6, 5, v6''')
    e('s_cmp_lt_u32 s25, 8\ns_cselect_b32 s30, 3, 4\ns_cselect_b32 s31, 32, 8')
    e('v_lshlrev_b32 v9, s30, v9\nv_add_u32 v7, v7, v9\ns_and_b32 s35, s24, 3\ns_lshl_b32 s32, s35, 10\nv_add_u32 v7, s32, v7')
    e('s_lshl_b32 s32, s56, 6\nv_xor_b32 v6, s32, v6\nv_add_u32 v11, v7, v6\nv_add_u32 v12, s31, v11')
    for f in range(2):
        for x in range(2): e(f'ds_read_b64_tr_b16 v[{16+4*f+2*x}:{16+4*f+2*x+1}], v{11+f} offset:{512*x}')
    e(f's_lshl_b32 s28, s25, 1\ns_add_u32 s28, s28, s56\ns_lshl_b32 s28, s28, 15\ns_add_u32 s28, s28, {WA_OFF + 524288}\ns_lshl_b32 s29, s26, 2\ns_add_u32 s29, s29, s35\ns_lshl_b32 s29, s29, 11\ns_add_u32 s28, s28, s29')
    e('s_waitcnt lgkmcnt(0)')
    for f in range(2):
        e(f'buffer_store_dwordx4 v[{16+4*f}:{19+4*f}], v1, s[20:23], s28 offen offset:{1024*f}')
    a.srd(20, 4, DW_SZ, DW_OFF)
    e('s_lshl_b32 s28, s33, 11\ns_waitcnt vmcnt(3)')
    for q in range(8): e(f'v_lshl_or_b32 v{32+q}, v{81+2*q}, 16, v{80+2*q}')
    e('buffer_store_dwordx4 v[32:35], v1, s[20:23], s28 offen\nbuffer_store_dwordx4 v[36:39], v1, s[20:23], s28 offen offset:1024')
    a.endpgm(kidx)
    a.label(f'{name}_end')
    e('s_endpgm')
    a.end(name, 96, 102)
    a.launch(name, 256, 512, 128*PITCH)

if __name__ == '__main__':
    a = Asm(); a.diag = True; k0_kernel(a, 'prep_kernel')
    open('k0.s','w').write(a.text())
```

```python
import sys
sys.path.insert(0,'dev')
from asmlib import Asm
from k0 import k0_kernel
from fused import fused_kernel
HDR = open('standalone__conformer_family_branchformer__speech.s.ref').read().split('; Override launch')[0].rstrip()
def build(diag, marks=(), k0=dict(snt=' sc0 sc1',xnt=' sc0 sc1 nt',wnt=' sc1'), **kw):
    import fused
    fused.FSC = kw.pop('FSC', ' sc1')
    fused.XSC = kw.pop('XSC', ''); fused.WSC = kw.pop('WSC', ''); fused.SSC = kw.pop('SSC', ' sc1')
    a = Asm(); a.diag = diag; a.dbg = kw.pop('dbg', False); a.amp = kw.pop('amp', None); a.marks = list(marks); a.dual = len(marks) <= 4 and diag
    kw.setdefault('merge', True)
    if kw.get('merge'):
        kw.setdefault('order', (2,0,1))
        fused_kernel(a, 'main_kernel', 0, **kw)
    else:
        k0_kernel(a, 'prep_kernel', 0, **k0); fused_kernel(a, 'main_kernel', 1, **kw)
    t = a.text(HDR)
    if kw.get('merge'):
        import re
        t = t.replace('; @launch kernel=main_kernel grid', '; @launch grid')
        t = re.sub(r'\bmain_kernel\b(?!_)', 'standalone__conformer_family_branchformer__speech_kernel', t).replace('main_kernel_', 'L_')
    return t
M0=['x0','u3','attn0','attn1','stage','c3','h0','h4']
MA=['x0','u1','u3','u5','u7','u9','u11','attn0']
MB=['attn1','stage','c0','c1','c2','c3','h0','h4']
MC=['attn1','c3','h0','h1','h2','h3','h4']
ML=['attn0','loop0','sp2','b4','attn1']
MP=['p_x','p_ln','p_d','p_e','p_f','x0','u1','u3']
if __name__ == '__main__':
    open('full_diag.s','w').write(build(True, M0))
    open('full_diagA.s','w').write(build(True, MA))
    open('full_diagB.s','w').write(build(True, MB))
    open('standalone__conformer_family_branchformer__speech.s','w').write(build(False))
    for spec in sys.argv[1:]:
        nm, marks, kw = spec.split('|')
        if marks: open(f'x_diag_{nm}.s','w').write(build(True, eval(marks), **eval(f'dict({kw})')))
        else: open(f'y_{nm}.s','w').write(build(False, **eval(f'dict({kw})')))
```

```python
import re
V32 = ('v_mul_f32','v_add_f32','v_sub_f32','v_max_f32','v_min_f32','v_exp_f32','v_rcp_f32','v_rsq_f32','v_log_f32','v_mov_b32','v_and_b32','v_or_b32','v_xor_b32',
       'v_lshlrev_b32','v_lshrrev_b32','v_add_u32','v_sub_u32','v_fmac_f32','v_cmp_lt_f32','v_cmp_ne_u32','v_cmp_eq_u32','v_cndmask_b32','v_mul_u32_u24','v_min_u32','v_cmp_gt_u32')
INL = set(str(i) for i in range(-16,65)) | {'0.5','1.0','2.0','4.0','-0.5','-1.0','-2.0','-4.0'}
def is_lit(tok):
    tok = tok.strip()
    if re.fullmatch(r'-?(v|s|a)\d+|-?(v|s|a)\[\d+:\d+\]|vcc|exec|m0|off|scc', tok): return False
    if tok in INL: return False
    if re.fullmatch(r'0x[0-9a-fA-F]+', tok): return not (int(tok,16) <= 64)
    return True
def info(line):
    l = line.split(';')[0].strip()
    if not l or l.endswith(':') or l.startswith('.'): return None
    parts = l.split(None, 1); op = parts[0]; args = parts[1].split(',') if len(parts) > 1 else []
    if op.startswith('s_'):
        if op.startswith(('s_load','s_memtime','s_memrealtime')): return (8, False)
        if op.startswith(('s_waitcnt','s_nop','s_barrier','s_branch','s_cbranch','s_endpgm','s_sleep','s_setprio','s_getpc','s_getreg')): return (4, False)
        return (8 if any(is_lit(x) for x in args) else 4, False)
    if op.endswith('_dpp') or op.endswith('_e64'): return (8, False)
    if op in V32:
        if any(is_lit(x) for x in args): return (8, False)
        if any(x.strip().startswith('-') and not x.strip() in INL for x in args): return (8, False)
        return (4, True)
    if op in ('v_readfirstlane_b32','v_permlane32_swap_b32','v_permlane16_swap_b32','v_nop'): return (4, False)
    return (8, False)
def runlen(infos, i):
    n = 0
    while i < len(infos):
        if infos[i] is not None:
            if infos[i][0] == 4: break
            n += 1
        i += 1
    return n
def align(lines, pad=False):
    out = list(lines); off = 0; run = []
    mis = 0; res = []
    infos = [info(l) for l in lines]
    for li, l in enumerate(lines):
        if l.startswith('.p2align'): off = 0; run = []; res.append(l); continue
        inf = info(l)
        if inf is None:
            res.append(l); continue
        sz, wid = inf
        if sz == 4:
            run.append((len(res), off, wid)); off += 4; res.append(l)
        else:
            if off % 8:
                c = [r for r in run if r[2]]
                if c:
                    al = [r for r in c if r[1] % 8 == 0]
                    k = (al or c)[-1][0]
                    p = res[k].split(None, 1)
                    res[k] = p[0] + '_e64 ' + p[1]; off += 4
                elif pad and run and runlen(infos, li) >= pad:
                    res.append('s_nop 0'); off += 4
                else: mis += 1
            run = []; off += 8; res.append(l)
    return res, mis
if __name__ == '__main__':
    import subprocess, sys
    src = open(sys.argv[1]).read().split('\n')
    subprocess.run(['clang','-x','assembler','-target','amdgcn-amd-amdhsa','-mcpu=gfx950','-c',sys.argv[1],'-o','al.o'],check=True)
    d = subprocess.run(['llvm-objdump','-d','--mcpu=gfx950','al.o'],capture_output=True,text=True).stdout.split('\n')
    ins = [(l.split('//')[0].strip(), len(l.split(':')[-1].split())*4, int(l.split('//')[1].split(':')[0],16)) for l in d if '//' in l]
    k = 0; bad = 0; mis = 0
    for l in src:
        if l.startswith('.section'): break
        if l.startswith('.p2align 8'):
            while ins[k][2] % 256: k += 1
        inf = info(l)
        if inf is None: continue
        if inf[0] != ins[k][1]:
            bad += 1
            if bad < 20: print('SIZE MISMATCH', l, '|', ins[k])
        if ins[k][1] == 8 and ins[k][2] % 8: mis += 1
        k += 1
    print('checked', k, 'bad', bad, 'misaligned 8B', mis)
```

```python
import sys
sys.path.insert(0,'dev')
from asmlib import Asm
from layout import *
import struct
def f2u(x): return struct.unpack('<I', struct.pack('<f', x))[0]
MF='v_mfma_f32_16x16x32_bf16'
PITCH = 1040; SLOT = 32*PITCH
C0 = -2*0.7978845608028654*1.4426950408889634
C1 = C0*0.044715
THRESH = 0x41f00000
SPIN_MAX = 1 << 20

class VQ:
    def __init__(s, e, lim=63): s.e = e; s.q = []; s.done = 0; s.lim = lim
    def issue(s, op, tag):
        if len(s.q) - s.done >= s.lim:
            s.e(f's_waitcnt vmcnt({s.lim-1})'); s.done = len(s.q) - (s.lim-1)
        s.e(op); s.q.append(tag)
    def need(s, tag):
        i = max(k for k, t in enumerate(s.q) if t == tag)
        if i < s.done: return None
        s.done = i + 1
        return f'vmcnt({len(s.q) - 1 - i})'
    def wait(s, tag, extra=''):
        w = s.need(tag)
        if w or extra: s.e(('s_waitcnt ' + (w or '') + ' ' + extra).strip())
    def drain(s):
        s.e('s_waitcnt vmcnt(0)'); s.done = len(s.q)

class LQ:
    def __init__(s, e): s.e = e; s.q = []; s.done = 0
    def issue(s, op, tag):
        if len(s.q) - s.done >= 15:
            s.e('s_waitcnt lgkmcnt(12)'); s.done = len(s.q) - 12
        s.e(op); s.q.append(tag)
    def need(s, tag):
        i = max(k for k, t in enumerate(s.q) if t == tag)
        if i < s.done: return None
        s.done = i + 1
        return f'lgkmcnt({len(s.q) - 1 - i})'
    def drained(s): s.done = len(s.q)

R_XA=8; R_WS=12; R_AUX=16; R_OUT=20; R_Q=52; R_U=56; R_G=60; R_GL=64; R_OP=68; R_FL=72
def srd(r): return f's[{r}:{r+3}]'
V_L16=1
FSC=' sc0 sc1'
XSC=''
WSC=' sc1'
SSC=' sc0 sc1'


QSCALE = 512**-0.5 * 1.4426950408889634
def prep_phase(a, name, poll, kind0, n_early, fx_st, pearly, xmap, tmode):
    e = a.e; BREG = 64*PITCH; V_TAG = 7
    e(f'v_and_b32 v2, 15, v0\nv_lshrrev_b32 v3, 4, v0')
    e('s_lshl_b32 s64, s34, 2\ns_add_u32 s64, s64, s32\ns_cmp_lt_u32 s64, 125\ns_cselect_b32 s65, 0, 0x70000000\ns_mul_i32 s66, s33, 125\ns_add_u32 s64, s64, s66\ns_lshl_b32 s64, s64, 2\ns_add_u32 s64, s64, s24\ns_lshl_b32 s64, s64, 13\ns_add_u32 s64, s64, s65\ns_add_u32 s65, s64, 4096')
    e(f's_mov_b32 s{R_AUX+2}, {XA_SZ}\ns_mov_b32 s{R_AUX+3}, 0x20000')
    e('s_waitcnt lgkmcnt(0)')
    for r in range(8): e(f'buffer_load_dwordx4 v[{16+4*r}:{19+4*r}], v1, {srd(R_AUX)}, s{64+r//4} offen offset:{1024*(r%4)}{XSC}')
    e(f's_add_u32 s6, s4, {FLAG_OFF + EP_REL}\ns_addc_u32 s7, s5, 0\ns_load_dword s71, s[6:7], 0')
    e("""v_lshrrev_b32 v4, 3, v0
    v_and_b32 v5, 7, v0
    v_and_b32 v6, 2, v4
    v_lshlrev_b32 v6, 1, v6
    v_xor_b32 v5, v5, v6
    v_lshlrev_b32 v5, 4, v5""")
    e('s_and_b32 s66, s24, 1\ns_lshr_b32 s67, s24, 1')
    if xmap:
        e('s_lshr_b32 s25, s2, 5\ns_and_b32 s26, s2, 1\ns_lshl_b32 s26, s26, 2\ns_add_u32 s26, s26, s32\ns_bfe_u32 s68, s2, 0x20001\ns_lshl_b32 s68, s68, 6')
    else:
        e('s_and_b32 s25, s2, 3\ns_bfe_u32 s26, s2, 0x10003\ns_lshl_b32 s26, s26, 2\ns_add_u32 s25, s25, s26')
        e('s_bfe_u32 s26, s2, 0x10002\ns_bfe_u32 s27, s2, 0x20004\ns_lshl_b32 s27, s27, 1\ns_add_u32 s26, s26, s27\ns_and_b32 s68, s2, 0xc0')
    e('s_lshl_b32 s27, s26, 3\ns_add_u32 s68, s68, s27\ns_add_u32 s68, s68, s25\ns_mov_b32 s31, s68')
    e(f's_mul_i32 s29, s24, {8*PITCH}')
    nt_ = 0
    if tmode == 1:
        e('s_lshl_b32 s27, s32, 2\ns_add_u32 s27, s27, s24')
        a.touch_code(name, f'{name}_R0', 60, 10, 120, 27, 1); nt_ = 1
    def rows_dma(R, b, hi, vis, ldsadd):
        ops = []
        for vi in range(2):
            for i in range(8):
                t = f's_add_u32 m0, s29, {ldsadd + vi*32*PITCH + i*PITCH - (i%4)*1024}\n'
                t += f's_add_u32 s28, s{b}, {hi}' if i == 0 else (f's_add_u32 s{b}, s{b}, {vis}' if (i == 4 and vi == 0) else 's_nop 0')
                ops.append(t + f'\nbuffer_load_dwordx4 v1, {srd(R)}, s{b if i < 4 else 28} offen offset:{(i%4)*1024}{WSC} lds')
        return ops
    X = lambda r, j: 48 + 8*r + j
    S = [112 + r for r in range(8)]
    P2 = lambda x: f'v[{x}:{x+1}]'
    sp = lambda r: (f's[{40+(r&~1)}:{41+(r&~1)}]', r & 1)
    p0 = f'buffer_load_dword v14, v15, {srd(R_FL)}, 0 offen{FSC}'
    pX = f'buffer_load_dword v4, v5, {srd(R_FL)}, 0 offen{FSC}'
    flagX = f'buffer_store_dword v{V_TAG}, off, {srd(R_FL)}, s51{FSC}'
    def ln(ops, first_store=None, hook=None, n_early=n_early):
        for o in ops[:n_early]: e(o)
        rest = ops[n_early:]
        a.srd(R_XA, 4, XA_SZ, XA_OFF); a.srd(R_WS, 4, WS_SZ); a.srd(R_FL, 4, FLAG_SZ, FLAG_OFF)
        e(f's_lshl_b32 s48, s32, 2\ns_add_u32 s48, s48, s24\ns_lshr_b32 s47, s48, 1\ns_lshl_b32 s48, s48, 15\ns_add_u32 s48, s48, {WA_OFF + kind0*524288}')
        e(f's_lshl_b32 s50, s47, 7\ns_add_u32 s50, s50, {FP_REL}\ns_lshl_b32 s47, s47, 7\ns_add_u32 s47, s47, {FU_REL}\ns_lshl_b32 s39, s30, 6\ns_add_u32 s39, s39, {FX_REL}')
        e('v_mov_b32 v15, s47\nv_add_u32 v14, 1024, v15\nv_cmp_gt_u32 vcc, 32, v0\nv_lshlrev_b32 v4, 2, v2\nv_add_u32 v5, s39, v4\nv_cndmask_b32 v15, v15, v14, vcc\nv_add_u32 v15, v4, v15')
        e(f's_lshl_b32 s51, s32, 4\ns_add_u32 s51, s51, s39\ns_lshl_b32 s39, s24, 2\ns_add_u32 s51, s51, s39')
        e(f's_lshl_b32 s68, s68, 4\ns_add_u32 s68, s68, s39\ns_add_u32 s68, s68, {FP_REL}')
        e(f's_mov_b32 s36, 0xffff0000\ns_mov_b32 s37, {f2u(1/512)}\ns_mov_b32 s38, 0x3f803f80\nv_mov_b32 v10, {f2u(1e-5)}')
        e(f's_waitcnt lgkmcnt(0)\ns_mul_i32 s71, s71, 0x9E3779B1\ns_add_u32 s71, s71, 0x7F4A7C15\nv_mov_b32 v{V_TAG}, s71')
        if hook: hook()
        else: e(f's_waitcnt vmcnt({min(n_early, len(ops)) + nt_})')
        a.mark('p_x')
        L = []
        v = lambda t: L.extend(t.split('\n'))
        def red4():
            v('s_nop 1')
            for r in (0, 2, 4, 6): v(f'v_permlane32_swap_b32 v{S[r]}, v{S[r+1]}')
            for r in (0, 2, 4, 6): v(f'v_add_f32 v{S[r]}, v{S[r]}, v{S[r+1]}')
            v('s_nop 0')
            for r in (0, 4): v(f'v_permlane16_swap_b32 v{S[r]}, v{S[r+2]}')
            for r in (0, 4): v(f'v_add_f32 v{S[r]}, v{S[r]}, v{S[r+2]}')
            for sh in (8, 4, 2, 1):
                v('s_nop 0')
                for r in (0, 4): v(f'v_add_f32_dpp v{S[r]}, v{S[r]}, v{S[r]} row_ror:{sh} row_mask:0xf bank_mask:0xf')
        def bcast():
            v('s_nop 0')
            for r in range(8): v(f'v_readlane_b32 s{40+r}, v{S[4*(r//4)]}, {16*[0,2,1,3][r%4]}')
        for k in range(4):
            for r in range(8): v(f'v_dot2_f32_bf16 v{S[r]}, v{16+4*r+k}, s38, ' + ('0' if k == 0 else f'v{S[r]}'))
        for r in range(4):
            for k in range(4): v(f'v_lshlrev_b32 v{X(r,2*k)}, 16, v{16+4*r+k}\nv_and_b32 v{X(r,2*k+1)}, s36, v{16+4*r+k}')
        red4()
        for r in (0, 4): v(f'v_mul_f32 v{S[r]}, s37, v{S[r]}')
        bcast()
        for r in range(4, 8):
            for k in range(4): v(f'v_lshlrev_b32 v{X(r,2*k)}, 16, v{16+4*r+k}\nv_and_b32 v{X(r,2*k+1)}, s36, v{16+4*r+k}')
        for r in range(8):
            sr, o = sp(r)
            for j in range(0, 8, 2): v(f'v_pk_add_f32 {P2(X(r,j))}, {P2(X(r,j))}, {sr} op_sel:[0,{o}] op_sel_hi:[1,{o}] neg_lo:[0,1] neg_hi:[0,1]')
        for j in range(0, 8, 2):
            for r in range(8):
                t = 16 + 2*r
                v(f'v_pk_mul_f32 {P2(t)}, {P2(X(r,j))}, {P2(X(r,j))}' if j == 0 else f'v_pk_fma_f32 {P2(t)}, {P2(X(r,j))}, {P2(X(r,j))}, {P2(t)}')
        for r in range(8): v(f'v_add_f32 v{S[r]}, v{16+2*r}, v{17+2*r}')
        red4()
        for r in (0, 4): v(f'v_fma_f32 v{S[r]}, v{S[r]}, s37, v10')
        for r in (0, 4): v(f'v_rsq_f32 v{S[r]}, v{S[r]}')
        bcast()
        v('s_nop 0')
        for r in range(8):
            sr, o = sp(r)
            for j in range(0, 8, 2): v(f'v_pk_mul_f32 {P2(X(r,j))}, {P2(X(r,j))}, {sr} op_sel:[0,{o}] op_sel_hi:[1,{o}]')
            for k in range(4): v(f'v_cvt_pk_bf16_f32 v{16+4*r+k}, v{X(r,2*k)}, v{X(r,2*k+1)}')
            v(f'buffer_store_dwordx4 v[{16+4*r}:{19+4*r}], v1, {srd(R_XA)}, s{64+r//4} offen offset:{1024*(r%4)}{SSC}')
        nin = 0
        for n, o in enumerate(L):
            if o.startswith('buffer_store') and first_store and first_store[0]: e(first_store.pop())
            e(o)
            if (n+1)*nin // 240 > n*nin // 240 and n < 240: e(rest.pop(0))
        a.mark('p_ln')
        nl = len(rest)
        for o in rest: e(o)
        return nl
    def w0(i):
        if i % 4 == 0: e(f's_add_u32 s49, s48, {(i//4)*4096}')
        e(f'buffer_load_dwordx4 a[{4*i}:{4*i+3}], v1, {srd(R_WS)}, s49 offen offset:{(i%4)*1024} sc1')
    def gemm(bread, nb, nl):
        assert nl
        e(f'v_mul_u32_u24 v6, {PITCH}, v2\nv_lshl_add_u32 v6, v3, 8, v6\ns_mul_i32 s27, s66, {32*PITCH}\nv_add_u32 v9, s27, v6')
        bread(None, None, None)
        e(p0)
        e(f's_waitcnt vmcnt({nl+1})\n' + flagX + '\ns_waitcnt vmcnt(1)\ns_barrier')
        a.mark('p_d')
        def rd(st):
            r = 64 + 16*(st % 3)
            for jj in range(2): e(f'ds_read_b128 v[{r+4*jj}:{r+4*jj+3}], v9 offset:{jj*16*PITCH + 16*st}')
            for vi in range(2): bread(st, vi, r+8+4*vi)
        for st in range(2): rd(st)
        poll([p0], [14], None)
        wi = 0
        for st in range(16):
            e(f's_waitcnt lgkmcnt({(2+2*nb) if st < 15 else 0})')
            r = 64 + 16*(st % 3)
            for vi in range(2):
                for jj in range(2):
                    d = 48 + 8*vi + 4*jj
                    e(f'{MF} v[{d}:{d+3}], v[{r+4*jj}:{r+4*jj+3}], v[{r+8+4*vi}:{r+11+4*vi}], ' + ('0' if st == 0 else f'v[{d}:{d+3}]'))
                    if vi == 0 and jj == 0 and st + 2 < 16: rd(st+2)
                    if vi == 1 and (jj == 0 or st < 4) and wi < 16: w0(wi); wi += 1
                    if vi == 1 and jj == 0 and st == 12: e(pX)
        e('s_barrier')
        return wi
    e(f's_cmp_ge_u32 s31, 64\ns_cbranch_scc1 {name}_notM')
    a.srd(52, 36, 524288); a.srd(56, 38, 524288)
    e('s_lshl_b32 s27, s66, 8\ns_lshl_b32 s28, s67, 2\ns_add_u32 s27, s27, s28\ns_lshl_b32 s27, s27, 10')
    e('s_lshl_b32 s69, s25, 14\ns_add_u32 s69, s69, s27\ns_lshl_b32 s70, s26, 14\ns_add_u32 s70, s70, s27')
    nl = ln(rows_dma(52, 69, 131072, 8192, 0) + rows_dma(56, 70, 131072, 8192, BREG))
    def mb(st, vi, r):
        if st is None: e(f's_mul_i32 s27, s67, {32*PITCH}\ns_add_u32 s27, s27, {BREG}\nv_add_u32 v8, s27, v6')
        else: e(f'ds_read_b128 v[{r}:{r+3}], v8 offset:{vi*16*PITCH + 16*st}')
    nw = gemm(mb, 1, nl)
    e(f's_lshl_b32 s28, s26, 1\ns_add_u32 s28, s28, s67\ns_lshl_b32 s28, s28, 15\ns_lshl_b32 s27, s25, 1\ns_add_u32 s27, s27, s66\ns_lshl_b32 s27, s27, 11\ns_add_u32 s28, s28, s27\ns_add_u32 s28, s28, {WA_OFF}\ns_add_u32 s29, s28, 1024')
    e(f's_mov_b32 s27, {f2u(QSCALE)}')
    for i in range(16): e(f'v_mul_f32 v{48+i}, s27, v{48+i}')
    e(f's_branch {name}_pst')
    a.label(f'{name}_notM')
    e(f's_cmp_ge_u32 s31, 192\ns_cbranch_scc1 {name}_notW')
    e('s_lshr_b32 s35, s31, 7')
    a.srd(56, 50, 1024*1024)
    e('s_cmp_eq_u32 s35, 0\ns_cselect_b32 s52, s42, s48\ns_cselect_b32 s53, s43, s49\ns_mov_b32 s54, 524288\ns_mov_b32 s55, 0x20000')
    e('s_lshl_b32 s69, s67, 2\ns_lshl_b32 s70, s66, 4\ns_add_u32 s69, s69, s70\ns_lshl_b32 s70, s24, 3')
    e('s_cmp_eq_u32 s35, 0\ns_cselect_b32 s69, s69, s70\ns_cselect_b32 s70, 8, 4\ns_lshl_b32 s27, s26, 6\ns_add_u32 s69, s69, s27\ns_lshl_b32 s69, s69, 10\ns_lshl_b32 s70, s70, 10')
    e('v_lshl_add_u32 v8, v4, 10, v5')
    e('s_lshl_b32 s60, s35, 19\ns_lshl_b32 s27, s25, 7\ns_add_u32 s60, s60, s27\ns_lshl_b32 s27, s24, 17\ns_add_u32 s60, s60, s27\ns_lshl_b32 s27, s24, 14')
    ln(rows_dma(52, 69, 's70', 32768, 0) + [f's_add_u32 m0, s27, {BREG + i*1024}\n' + ('s_nop 0' if i == 0 else 's_add_u32 s60, s60, 8192') + f'\nbuffer_load_dwordx4 v8, {srd(56)}, s60 offen{WSC} lds' for i in range(16)])
    def wb(st, vi, r):
        if st is None:
            e("""v_bfe_u32 v11, v0, 2, 2
            v_lshl_add_u32 v8, v3, 7, v11
            v_lshlrev_b32 v8, 7, v8
            v_and_b32 v12, 3, v0
            v_and_b32 v11, 2, v11
            v_lshlrev_b32 v11, 1, v11
            v_or_b32 v12, v12, v11""")
            e(f's_lshl_b32 s27, s67, 2\nv_xor_b32 v12, s27, v12\nv_lshl_add_u32 v8, v12, 4, v8\nv_add_u32 v8, {BREG}, v8')
            return
        for x in range(2): e(f'ds_read_b64_tr_b16 v[{r+2*x}:{r+2*x+1}], v8 offset:{(8*st+4*x)*128 + 8*vi}')
    gemm(wb, 2, nl)
    e('s_lshl_b32 s69, s25, 2\ns_lshl_b32 s27, s67, 1\ns_add_u32 s69, s69, s27\ns_lshl_b32 s70, s26, 1\ns_add_u32 s70, s70, s66')
    e(f's_lshl_b32 s28, s69, 14\ns_lshl_b32 s29, s70, 10\ns_add_u32 s28, s28, s29\ns_add_u32 s28, s28, {W1_OFF}')
    e(f's_lshr_b32 s29, s69, 3\ns_lshl_b32 s29, s29, 4\ns_add_u32 s29, s29, s70\ns_lshl_b32 s29, s29, 13\ns_and_b32 s27, s69, 7\ns_lshl_b32 s27, s27, 10\ns_add_u32 s29, s29, s27\ns_add_u32 s29, s29, {WF_OFF}')
    e('s_cmp_eq_u32 s35, 0\ns_cselect_b32 s28, s28, s29\ns_cselect_b32 s29, 16, 1\ns_lshl_b32 s29, s29, 10\ns_add_u32 s29, s29, s28')
    a.label(f'{name}_pst')
    for vi in range(2):
        for k in range(4): e(f'v_cvt_pk_bf16_f32 v{176+4*vi+k}, v{48+8*vi+2*k}, v{49+8*vi+2*k}')
    for vi in range(2): e(f'buffer_store_dwordx4 v[{176+4*vi}:{179+4*vi}], v1, {srd(R_WS)}, s{28+vi} offen sc1')
    e(f's_branch {name}_pd')
    a.label(f'{name}_notW')
    e('s_sub_u32 s25, s31, 192\ns_and_b32 s26, s25, 3\ns_lshl_b32 s69, s25, 3\ns_lshr_b32 s25, s25, 2')
    a.srd(52, 44, 1024*1024); a.srd(56, 46, 31*1024); a.srd(60, 40, 524288)
    e('v_lshl_add_u32 v8, v4, 11, v5')
    e('s_lshl_b32 s28, s24, 18\ns_lshl_b32 s27, s26, 16\ns_add_u32 s28, s28, s27\ns_lshl_b32 s27, s25, 7\ns_add_u32 s28, s28, s27\ns_lshl_b32 s27, s24, 12')
    ops = [f's_add_u32 m0, s27, {i*1024}\n' + ('s_nop 0' if i == 0 else 's_add_u32 s28, s28, 16384') + f'\nbuffer_load_dwordx4 v8, {srd(52)}, s28 offen{WSC} lds' for i in range(4)]
    e('s_lshl_b32 s35, s24, 1\ns_add_u32 s69, s69, s35\ns_lshr_b32 s35, s69, 4\ns_lshl_b32 s35, s35, 14\ns_and_b32 s29, s69, 15\ns_lshl_b32 s29, s29, 6\ns_add_u32 s35, s35, s29')
    e('v_lshlrev_b32 v9, 10, v2\nv_lshl_add_u32 v9, v3, 4, v9')
    ops += [f'buffer_load_dwordx4 v[{128+4*k}:{131+4*k}], v9, {srd(60)}, s35 offen offset:{64*k}' for k in range(2)]
    e('s_sub_u32 s70, s31, 248\ns_lshl_b32 s70, s70, 2\ns_add_u32 s70, s70, s24\ns_cmp_ge_u32 s31, 248\ns_cselect_b32 s70, s70, 0x8000\ns_lshl_b32 s29, s70, 5')
    e('v_and_b32 v11, 1, v3\nv_lshlrev_b32 v11, 14, v11\nv_lshl_add_u32 v11, v2, 1, v11')
    ops += [('s_add_u32 s29, s29, 4096\n' if ip % 4 == 0 and ip else '') + f'buffer_load_ushort v{136+ip}, v11, {srd(56)}, s29 offen offset:{1024*(ip%4)}' for ip in range(16)]
    def uphook():
        e("""v_bfe_u32 v6, v0, 2, 2
        v_lshl_add_u32 v8, v3, 5, v6
        v_lshlrev_b32 v8, 7, v8
        v_and_b32 v9, 3, v0
        v_and_b32 v6, 2, v6
        v_lshlrev_b32 v6, 5, v6""")
        e('s_cmp_lt_u32 s25, 8\ns_cselect_b32 s27, 3, 4\ns_cselect_b32 s28, 32, 8')
        e('v_lshlrev_b32 v9, s27, v9\nv_add_u32 v8, v8, v9\ns_lshl_b32 s27, s24, 10\nv_add_u32 v8, s27, v8')
        e('v_add_u32 v9, v8, v6\nv_add_u32 v11, s28, v9\nv_xor_b32 v6, 64, v6\nv_add_u32 v12, v8, v6\nv_add_u32 v13, s28, v12')
        e(f's_lshl_b32 s28, s25, 16\ns_add_u32 s28, s28, {WA_OFF + 524288}\ns_lshl_b32 s29, s26, 2\ns_add_u32 s29, s29, s24\ns_lshl_b32 s35, s29, 2\ns_lshl_b32 s29, s29, 11\ns_add_u32 s28, s28, s29\ns_add_u32 s29, s28, 32768')
        e(f's_lshl_b32 s27, s25, 7\ns_add_u32 s35, s35, s27\ns_add_u32 s35, s35, {FU_REL}')
        e('s_waitcnt vmcnt(18)\ns_barrier')
        for f in range(4):
            for x in range(2): e(f'ds_read_b64_tr_b16 v[{160+4*f+2*x}:{161+4*f+2*x}], v{[9,11,12,13][f]} offset:{512*x}')
        e('s_waitcnt lgkmcnt(0)')
        for f in range(4): e(f'buffer_store_dwordx4 v[{160+4*f}:{163+4*f}], v1, {srd(R_WS)}, s{28+f//2} offen offset:{1024*(f%2)} sc1')
    ln(ops, [f's_waitcnt vmcnt(0)\nbuffer_store_dword v{V_TAG}, off, {srd(R_FL)}, s35{FSC}'], uphook, 99)
    a.mark('p_d')
    for q in range(8): e(f'v_lshl_or_b32 v{64+q}, v{137+2*q}, 16, v{136+2*q}')
    e(f's_lshl_b32 s69, s69, 10\ns_add_u32 s69, s69, {WV_OFF}')
    for k in range(2): e(f'buffer_store_dwordx4 v[{128+4*k}:{131+4*k}], v1, {srd(R_WS)}, s69 offen offset:{1024*k} sc1')
    a.srd(56, 4, DW_SZ, DW_OFF)
    e('s_lshl_b32 s70, s70, 11')
    for k in range(2): e(f'buffer_store_dwordx4 v[{64+4*k}:{67+4*k}], v1, {srd(56)}, s70 offen offset:{1024*k} sc1')
    e(f's_barrier\ns_waitcnt vmcnt(0)\n' + flagX + f'\nbuffer_store_dword v{V_TAG}, off, {srd(R_FL)}, s68{FSC}')
    e(p0); e('s_waitcnt vmcnt(0)'); poll([p0], [14], None)
    for i in range(nw): w0(i)
    e(pX)
    e('s_mov_b32 s68, 0x100000')
    for _ in range(2): e(f'buffer_store_dword v{V_TAG}, off, {srd(R_FL)}, s68{FSC}')
    a.label(f'{name}_pd')
    e('s_mov_b32 s6, s68\ns_mov_b32 s7, s50')
    a.mark('p_e')
    return nw, pX

def fused_kernel(a, name, kidx=1, merge=False, stag=False, novalu=False, burst=True, pm0=2, tmode=1, l2pf=0, side3=False, nside=20, ksc=' sc1', n_early=24, slp=4, fx_st=15, pearly=False, xmap=False, order=(0,2,1), DF=7, W=2, AW=2, dlate=False, nodma=False, f16=True, t16=True, xpf=True, pre=0, vper=3, npub=(4,12,7), fA=-4, pA=32, fB=50, pB=74, pD=8, pp=2, wp5=99, osc=' sc1', xearly=True, dbgp=False, qlag=False, nost=(), fsc=' sc1', xm=False, nobar=False, flagA_unit=None, pollA_unit=None, flagC_n=8, pf=True, dcost=1, psc=' sc1', FDF=12, nopl=False, nopub=False, wpf=False, plsc=' sc1'):
    e = a.e
    a.begin(name)
    e(f's_cmp_ge_u32 s2, 256\ns_cbranch_scc1 {name}_end')
    a.stamp_begin()
    e(f's_load_dwordx2 s[4:5], s[0:1], 88\ns_load_dwordx2 s[{R_AUX}:{R_AUX+1}], s[0:1], 0\ns_load_dwordx2 s[{R_OUT}:{R_OUT+1}], s[0:1], 72')
    if merge: e('s_load_dwordx16 s[36:51], s[0:1], 8')
    HS1 = ' sc1' if merge else ''
    e('s_and_b32 s30, s2, 7\ns_lshr_b32 s31, s2, 3\ns_and_b32 s32, s31, 3\ns_lshr_b32 s31, s31, 2\ns_lshl_b32 s30, s30, 3\ns_add_u32 s30, s30, s31')
    e('s_lshr_b32 s33, s30, 5\ns_and_b32 s34, s30, 31')
    e('v_lshrrev_b32 v9, 6, v0\nv_and_b32 v0, 63, v0\ns_nop 0\nv_readfirstlane_b32 s24, v9')
    vq = VQ(e)
    if pf and not (merge and tmode): a.touch_code(name, f'{name}_R0', 60, 10, 120, 24, 2, issue=lambda op: vq.issue(op, 'tc'))
    e(f'v_lshlrev_b32 v{V_L16}, 4, v0')
    slow = []
    def poll(loads, regs, back_tag):
        lbl = a.newlabel(name + '_sp'); back = a.newlabel(name + '_bk')
        def chk():
            if back_tag: back_tag()
            if len(regs) == 1: e(f'v_cmp_ne_u32 vcc, v7, v{regs[0]}')
            else:
                e(f'v_xor_b32 v{regs[0]}, v{regs[0]}, v7')
                for r in regs[1:]: e(f'v_bitop3_b32 v{regs[0]}, v{r}, v7, v{regs[0]} bitop3:0xbe')
                e(f'v_cmp_ne_u32 vcc, 0, v{regs[0]}')
        chk()
        e(f's_cbranch_vccnz {lbl}')
        a.label(back)
        def sp():
            a.label(lbl)
            e(f's_mov_b32 s3, {SPIN_MAX}')
            l2 = a.newlabel(name + '_sl'); a.label(l2)
            e(f's_sleep {slp}')
            for l in loads: e(l)
            e('s_waitcnt vmcnt(0)')
            chk()
            e(f's_cbranch_vccz {back}')
            e(f's_sub_u32 s3, s3, 1\ns_cmp_lg_u32 s3, 0\ns_cbranch_scc1 {l2}\ns_branch {back}')
        slow.append(sp)

    if merge:
        nw0, pX = prep_phase(a, name, poll, order[0], n_early, fx_st, pearly, xmap, tmode)
        vq.q = [f'w0_{i}' for i in range(nw0)] + ['px'] + ['pst']*2; vq.done = 0
    e('s_mul_i32 s25, s33, 4000\ns_lshl_b32 s39, s34, 7\ns_add_u32 s25, s25, s39\ns_lshl_b32 s39, s24, 3\ns_add_u32 s25, s25, s39\ns_lshl_b32 s25, s25, 10')
    e(f's_mul_i32 s35, s24, {8*PITCH}\ns_sub_u32 s35, s35, 65536')
    e(f's_cmp_gt_u32 s32, 0\ns_cselect_b32 s38, 1, 0\ns_cselect_b32 s39, {SLOT}, 0\ns_add_u32 s27, s35, s39')
    e(f's_cmp_gt_u32 s32, 0\ns_cselect_b32 s28, 0, {3*SLOT}\ns_add_u32 s28, s28, s35')
    e('s_lshl_b32 s45, s32, 2\ns_add_u32 s45, s45, s24')
    e(f's_lshl_b32 s46, s45, 15\ns_add_u32 s46, s46, {WA_OFF}')
    if not merge:
        e('s_waitcnt lgkmcnt(0)')
        a.srd(R_XA, 4, XA_SZ, XA_OFF); a.srd(R_WS, 4, WS_SZ)
    MB='v_mfma_f32_32x32x16_bf16'
    V_B0=2; V_B2=3; V_C0=12; V_C1=13; V_WP=6; V_ONE=7; V_FA=8; V_PL=9; V_B3=10; V_SQ=11; V_SU=12
    TMP=16; FR=32; Q=128
    ACCB = lambda unit: [128, 144][unit % 2] if (unit < 2 or (order[0] and unit in (4, 5))) else [96, 112][unit % 2]
    def fr(f): return FR + 4*(f % 16)
    def dma_ops(base, slot, src, src2, tag):
        ops = []
        for r in range(8):
            pre = f's_add_u32 m0, {base}, {65536 + slot*SLOT + r*PITCH - (r&3)*1024}'
            if r == 0: pre += f'\ns_add_u32 {src2}, {src}, 4096'
            if r == 4: pre += f'\ns_add_u32 {src}, {src}, 32768'
            so = src if r < 4 else src2
            ops.append((pre, lambda r=r, so=so: vq.issue(f'buffer_load_dwordx4 v{V_L16}, {srd(R_XA)}, {so} offen offset:{(r&3)*1024}{HS1} lds', tag)))
        return ops
    xops = lambda t: dma_ops('s27', t, 's25', 's29', f'x{t}') if t < 3 else dma_ops('s28', 0, 's25', 's29', 'x3')
    kops = lambda t: dma_ops('s27', t, 's26', 's29', f'k{t}')
    def wop(ps, i):
        r = (ps % 2)*128 + 4*i; ks, h = i // 2, i % 2
        pre = f's_add_u32 s47, s46, {order[ps]*524288 + (ks//2)*4096}' if i % 4 == 0 else None
        return (pre, lambda: vq.issue(f'buffer_load_dwordx4 a[{r}:{r+3}], v{V_L16 if f16 else V_WP}, {srd(R_WS)}, s47 offen offset:{(ks%2)*2048 + (1024 if f16 else 512)*h}{HS1}', f'w{ps}_{i}'))
    def now(ops):
        for pre, f in ops:
            if pre: e(pre); e('s_nop 0') if 'm0' in pre.split('\n')[-1] else None
            f()
    if merge:
        assert order == (2, 0, 1) and f16 and nw0 == 16
        vq.wait('px'); poll([pX], [4], None)
        a.mark('p_f')
    now(xops(0)); now(xops(1))
    e(f"""v_and_b32 v13, 3, v0
    v_and_b32 v14, 4, v0
    v_add_u32 v13, v13, v14
    v_bfe_u32 v14, v0, 4, 1
    v_lshl_add_u32 v13, v14, 3, v13
    v_lshlrev_b32 v13, 4, v13
    v_bfe_u32 v15, v0, 3, 1
    v_lshl_add_u32 v13, v15, 10, v13
    v_lshrrev_b32 v15, 5, v0
    v_lshl_add_u32 v{V_WP}, v15, 8, v13""")
    now([wop(0, i) for i in range(16 if merge else 0, 16)])
    a.srd(R_FL, 4, FLAG_SZ, FLAG_OFF)
    e(f's_mul_i32 s37, s33, 4096000\ns_add_u32 s37, s37, {GF_OFF}')
    e(f's_add_u32 s{R_GL}, s4, s37\ns_addc_u32 s{R_GL+1}, s5, 0\ns_mov_b32 s{R_GL+2}, 4096000\ns_mov_b32 s{R_GL+3}, 0x20000')
    e(f's_mov_b32 s{R_AUX+2}, {XA_SZ}\ns_mov_b32 s{R_AUX+3}, 0x20000\ns_mov_b32 s{R_OUT+2}, {XA_SZ}\ns_mov_b32 s{R_OUT+3}, 0x20000')
    a.srd(R_OP, 4, OP_SZ, OP_OFF)
    if side3: e('s_mul_i32 s40, s30, 3\ns_add_u32 s40, s40, s32\ns_sub_u32 s40, s40, 1\ns_mul_i32 s40, s40, 3\ns_add_u32 s40, s40, s24\ns_cmp_eq_u32 s24, 3\ns_cselect_b32 s40, 0x200, s40')
    else: e('s_lshl_b32 s40, s30, 1\ns_add_u32 s40, s40, s32\ns_sub_u32 s40, s40, 1\ns_lshl_b32 s40, s40, 2\ns_add_u32 s40, s40, s24')
    e('s_and_b32 s41, s40, 31\ns_lshr_b32 s42, s40, 5')
    e(f'v_and_b32 v13, 15, v0\nv_lshlrev_b32 v{V_FA}, 2, v13\nv_lshlrev_b32 v13, 4, v13\nv_lshl_add_u32 v13, v15, 8, v13')
    e(f'v_lshl_add_u32 v{V_SQ}, v14, 10, v13\nv_lshl_add_u32 v{V_SU}, v14, 14, v13')
    if f16: e(f'v_and_b32 v13, 15, v0\nv_mul_u32_u24 v13, {PITCH}, v13\nv_lshrrev_b32 v15, 4, v0\nv_lshl_add_u32 v13, v15, 8, v13')
    else: e(f'v_and_b32 v13, 31, v0\nv_mul_u32_u24 v13, {PITCH}, v13\nv_lshl_add_u32 v13, v15, 8, v13')
    e(f's_mul_i32 s39, s38, {SLOT}\nv_add_u32 v{V_B0}, s39, v13\nv_add_u32 v{V_B2}, {2*SLOT}, v{V_B0}\ns_sub_u32 s39, s28, s35\nv_add_u32 v{V_B3}, s39, v13')
    e(('s_cmp_ge_u32 s40, 0x200' if side3 else 's_cmp_eq_u32 s32, 3') + '\ns_cselect_b32 s37, 0x50000000, 0')
    e(f's_lshl_b32 s43, s42, 15\ns_add_u32 s43, s43, {WV_OFF}\ns_add_u32 s43, s43, s37\ns_lshl_b32 s44, s41, 14\ns_add_u32 s44, s44, {W1_OFF}\ns_add_u32 s44, s44, s37')
    e(f'v_mov_b32 v{V_C0}, {f2u(C0)}\nv_mov_b32 v{V_C1}, {f2u(C1)}')
    if not merge: e(f'v_mov_b32 v{V_ONE}, 1')
    e(f's_lshr_b32 s36, s41, 3\ns_lshl_b32 s36, s36, 4\ns_add_u32 s36, s36, s42\ns_lshl_b32 s36, s36, 13\ns_add_u32 s36, s36, s37\ns_and_b32 s37, s41, 7\ns_lshl_b32 s37, s37, 10\ns_add_u32 s36, s36, s37\ns_add_u32 s36, s36, {WF_OFF + 524288}')
    e('s_mul_i32 s48, s33, 250\ns_lshl_b32 s49, s34, 3\ns_add_u32 s48, s48, s49\ns_lshl_b32 s48, s48, 14')
    e('s_lshl_b32 s49, s45, 10\ns_add_u32 s50, s48, s49\ns_lshl_b32 s49, s45, 11\ns_add_u32 s51, s48, s49')
    e('s_lshl_b32 s49, s24, 15\ns_add_u32 s48, s48, s49')
    e('s_add_u32 s49, s33, 1\ns_mul_i32 s49, s49, 4096000')
    for off, d in ((QF_OFF, R_Q), (UF_OFF, R_U), (GF_OFF, R_G)):
        e(f's_add_u32 s{d}, s4, {off}\ns_addc_u32 s{d+1}, s5, 0\ns_mov_b32 s{d+2}, s49\ns_mov_b32 s{d+3}, 0x20000')
    e('s_lshl_b32 s40, s30, 6\ns_lshl_b32 s41, s45, 2\ns_add_u32 s41, s41, s40')
    e('s_mul_i32 s26, s32, 992\ns_mul_i32 s39, s33, 4000\ns_add_u32 s26, s26, s39\ns_lshl_b32 s39, s38, 5\ns_add_u32 s26, s26, s39\ns_lshl_b32 s39, s24, 3\ns_add_u32 s26, s26, s39\ns_lshl_b32 s26, s26, 10')
    seq = [(u, i) for i in range(32) for u in range(2)] + [(u, i) for u in range(2, 12) for i in range(32)]
    def fread(n):
        u, i = seq[n]; t = u % 4; r = fr(n)
        b, o = [(V_B0, 0), (V_B0, SLOT), (V_B2, 0), (V_B3, 0)][t]
        return f'ds_read_b128 v[{r}:{r+3}], v{b} offset:{o + (16*PITCH if f16 else 512)*(i%2) + 16*(i//2)}'
    def epi_ops(unit, pk=False, TMP=16):
        ps, t = unit // 4, unit % 4
        kind = order[ps]; ops = []
        def v(s, c=1): ops.append(('v', s, c))
        hyb = burst and kind and not pk
        if hyb:
            A0 = ACCB(unit); P2 = lambda r: f'v[{r}:{r+1}]'
            B = [f'v_pk_mul_f32 {P2(TMP+j)}, {P2(A0+j)}, {P2(A0+j)}' for j in range(0, 16, 2)]
            B += [f'v_pk_fma_f32 {P2(TMP+j)}, {P2(TMP+j)}, {P2(V_C0)}, {P2(V_C0)} op_sel:[0,1,0] op_sel_hi:[1,1,0]' for j in range(0, 16, 2)]
            B += [f'v_pk_mul_f32 {P2(TMP+j)}, {P2(TMP+j)}, {P2(A0+j)}' for j in range(0, 16, 2)]
            ops.append(('B', '\n'.join(B), 0))
        for b in range(2):
            x = [ACCB(unit) + 8*b + j for j in range(8)]; o = (160 if unit == (4 if order[0] else 1) else TMP + 8) + 4*b
            if hyb:
                o = TMP + 8*b
                for k in range(11 if b == 0 else 8):
                    kk = k + (0 if b == 0 else 11)
                    if kk < 16: v(f'v_exp_f32 v{TMP+kk}, v{TMP+kk}', 2)
                    if 0 <= kk-1 < 16: v(f'v_add_f32 v{TMP+kk-1}, 1.0, v{TMP+kk-1}')
                    if 0 <= kk-2 < 16: v(f'v_rcp_f32 v{TMP+kk-2}, v{TMP+kk-2}', 2)
                    if 0 <= kk-3 < 16: v(f'v_mul_f32 v{A0+kk-3}, v{A0+kk-3}, v{TMP+kk-3}')
            elif kind and not pk:
                for h in range(2):
                    xs = x[4*h:4*h+4]; tt = [TMP + 4*h + j for j in range(4)]
                    for j in range(4): v(f'v_mul_f32 v{tt[j]}, v{xs[j]}, v{xs[j]}')
                    for j in range(4): v(f'v_fma_f32 v{tt[j]}, v{tt[j]}, v{V_C1}, v{V_C0}')
                    for j in range(4): v(f'v_mul_f32 v{tt[j]}, v{tt[j]}, v{xs[j]}')
                    for j in range(4): v(f'v_exp_f32 v{tt[j]}, v{tt[j]}', 2)
                    for j in range(4): v(f'v_add_f32 v{tt[j]}, 1.0, v{tt[j]}')
                    for j in range(4): v(f'v_rcp_f32 v{tt[j]}, v{tt[j]}', 2)
                    for j in range(4): v(f'v_mul_f32 v{xs[j]}, v{xs[j]}, v{tt[j]}')
            elif kind:
                P2 = lambda r: f'v[{r}:{r+1}]'
                for j in range(0, 8, 2): v(f'v_pk_mul_f32 {P2(TMP+j)}, {P2(x[j])}, {P2(x[j])}')
                for j in range(0, 8, 2): v(f'v_pk_fma_f32 {P2(TMP+j)}, {P2(TMP+j)}, {P2(V_C0)}, {P2(V_C0)} op_sel:[0,1,0] op_sel_hi:[1,1,0]')
                for j in range(0, 8, 2): v(f'v_pk_mul_f32 {P2(TMP+j)}, {P2(TMP+j)}, {P2(x[j])}')
                for j in range(8): v(f'v_exp_f32 v{TMP+j}, v{TMP+j}', 2)
                for j in range(0, 8, 2): v(f'v_pk_add_f32 {P2(TMP+j)}, {P2(TMP+j)}, 1.0 op_sel_hi:[1,0]')
                for j in range(8): v(f'v_rcp_f32 v{TMP+j}, v{TMP+j}', 2)
                for j in range(0, 8, 2): v(f'v_pk_mul_f32 {P2(x[j])}, {P2(x[j])}, {P2(TMP+j)}')
            for k in range(4): v(f'v_cvt_pk_bf16_f32 v{o+k}, v{x[2*k]}, v{x[2*k+1]}')
            R = [R_Q, R_U, R_G][kind]
            pre = f's_add_u32 s49, s{50 if kind else 51}, {t*32768 + (b*(16384 if kind else 1024) if f16 else 0)}'
            ops.append(('m', (pre, lambda o=o, b=b, R=R: vq.issue(f'buffer_store_dwordx4 v[{o}:{o+3}], v{V_L16 if f16 else (V_SU if kind else V_SQ)}, {srd(R)}, {"s37" if kind in nost else "s49"} offen offset:{0 if f16 else 512*b}{fsc if kind else " sc1"}', f'st{kind}')), 3))
        return ops
    pollA_ld = f'buffer_load_dword v{V_PL}, v{V_FA}, {srd(R_FL)}, s40 offen offset:{FA_REL}{FSC}'
    def qop(i):
        pre = 's_add_u32 s48, s48, 4096' if i % 4 == 0 and i else None
        return (pre, lambda: vq.issue(f'buffer_load_dwordx4 v[{Q+4*i}:{Q+4*i+3}], v{V_L16}, {srd(R_Q)}, s48 offen offset:{(i%4)*1024} sc1', f'q{i}'))
    bar = ('s_barrier', lambda: None)
    mem = {u: [] for u in range(1, 12)}
    mem[1] = [x for pr in zip([wop(0, i) for i in range(16, 24)], xops(2)) for x in pr] + [wop(0, i) for i in range(24, 32)] + xops(3) + [wop(1, i) for i in range(4)]
    mem[2] = [wop(1, i) for i in range(4, 16)]
    mem[3] = [wop(1, i) for i in range(16, 32)]
    mem[4] = [wop(2, i) for i in range(12)]
    mem[5] = [(None, lambda: (vq.wait('st0'), vq.issue(f'buffer_store_dword v{V_ONE}, off, {srd(R_FL)}, s41 offset:{FA_REL}{FSC}', 'fl')))] + [wop(2, i) for i in range(12, 22)]
    mem[6] = [wop(2, i) for i in range(22, 32)] + [(None, lambda: vq.issue(pollA_ld, 'pa'))]
    mem[7] = [(None, lambda: None)]*3 + [(None, lambda: (vq.wait('pa'), poll([pollA_ld], [V_PL], None)))] + [qop(i) for i in range(8)]
    mem[8] = [qop(i) for i in range(8, 20)]
    mem[9] = [bar] + kops(0) + [qop(i) for i in range(20, 24)]
    mem[10] = [bar] + kops(1) + [qop(i) for i in range(24, 28)]
    mem[11] = [bar] + kops(2) + [qop(i) for i in range(28, 32)]
    if nost: e('s_mov_b32 s37, 0x70000000')
    EP = {2: [0, 1]}
    for b in range(3, 12): EP[b] = [b-1]
    if qlag and not order[0]: EP.update({2: [0], 3: [1, 2]})
    if order[0]:
        flagA = (None, lambda: (vq.wait('st0'), vq.issue(f'buffer_store_dword v{V_ONE}, off, {srd(R_FL)}, s41 offset:{FA_REL}{FSC}', 'fl')))
        nop = (None, lambda: None)
        EP.update({2: [0], 3: [1], 4: [2], 5: [3, 4]})
        mem[4] = [wop(2, i) for i in range(6)]
        mem[5] = [wop(2, i) for i in range(6, 10)]
        mem[6] = [wop(2, i) for i in range(10, 22)]
        mem[7] = [wop(2, i) for i in range(22, 32)]
        mem[8] = [nop]*7 + [flagA]
        mem[9] = [bar] + kops(0) + [nop, (None, lambda: vq.issue(pollA_ld, 'pa')), nop]
        mem[10] = [bar] + kops(1)[:4] + [(None, lambda: (vq.wait('pa'), poll([pollA_ld], [V_PL], None)))] + kops(1)[4:] + [qop(i) for i in range(12)]
        mem[11] = [qop(i) for i in range(12, 32)]
        if merge:
            e('v_and_b32 v15, 31, v0\nv_lshlrev_b32 v15, 2, v15')
            pM = f'buffer_load_dword v{V_PL}, v15, {srd(R_FL)}, s7 offen{FSC}'
            mem[1] = [(None, lambda: (vq.wait('pst'), vq.issue(f'buffer_store_dword v{V_ONE}, off, {srd(R_FL)}, s6{FSC}', 'fl')))] + mem[1][:32]
            mem[2] = [nop]*pm0 + [(None, lambda: vq.issue(pM, 'pm'))] + [nop]*5 + [(None, lambda: (vq.wait('pm'), poll([pM], [V_PL], None)))] + [wop(1, i) for i in range(10 - pm0)]
            mem[3] = [wop(1, i) for i in range(10 - pm0, 28)]
            mem[4] = [wop(1, i) for i in range(28, 32)] + [nop]*8 + [wop(2, i) for i in range(4)]
            mem[5] = [wop(2, i) for i in range(4, 10)]
            pG = [f'buffer_load_dwordx4 v[{192+4*i}:{195+4*i}], v{V_L16}, {srd(R_FL)}, s6 offen offset:{1024*i}{FSC}' for i in range(4)]
            mem[8] = [(f's_mov_b32 s6, {FP_REL}' if i == 0 else None, lambda i=i: vq.issue(pG[i], 'pg')) for i in range(4)] + [nop]*3 + [flagA, (None, lambda: (vq.wait('pg'), poll(pG, list(range(192, 208)), None)))]
    vq.wait('x1'); e('s_barrier')
    a.mark('x0')
    FW = 2
    for f in range(FDF): e(fread(f))
    def wait_for(n):
        if n >= len(seq): return
        u, i = seq[n]; w = []
        if n % FW == 0: w.append(f'lgkmcnt({max(0, min(n - 1 + FDF, len(seq)) - (n + FW))})')
        if u % 4 == 0:
            x = vq.need(f'w{u//4}_{i|1 if f16 else i}')
            if x: w.append(x)
        if w: e('s_waitcnt ' + ' '.join(w))
    n = 0
    wait_for(0)
    for blk in range(1, 12):
        N = 64 if blk == 1 else 32
        ep = [] if blk == 1 else [x for u_ in EP[blk] for x in epi_ops(u_)]
        if blk == 11:
            ep += [('v', x.strip(), 1) for x in f"""v_and_b32 v14, 7, v0
            v_lshlrev_b32 v14, 1, v14
            v_bfe_u32 v15, v0, 3, 1
            v_add_u32 v14, v14, v15
            v_mul_u32_u24 v14, {PITCH}, v14
            v_lshrrev_b32 v15, 4, v0
            v_lshl_add_u32 v2, v15, 8, v14
            v_bfe_u32 v14, v0, 2, 3
            v_lshlrev_b32 v14, 1, v14
            v_lshrrev_b32 v15, 5, v0
            v_add_u32 v14, v14, v15
            v_mul_u32_u24 v14, {PITCH}, v14
            v_and_b32 v15, 3, v0
            v_lshl_add_u32 v3, v15, 3, v14
            v_add_u32 v4, {2*SLOT}, v2
            v_add_u32 v5, {2*SLOT}, v3
            v_mov_b32 v8, 0
            v_mov_b32 v9, 0""".split('\n')]
        mq = list(mem[blk]); nm = len(mq); pend = []; nxt = None; lastst = -99
        nst = sum(1 for x in ep if x[0] == 'm'); stgap = (N - 6) // max(nst, 1)
        tot = sum(c for k, o, c in ep if k == 'v'); acc = 0.0; start = 2; issued = 0
        for g in range(N):
            u, i = seq[n]; d = ACCB(u); wr = ((u//4) % 2)*128 + 4*i
            c = '0' if i == 0 else f'v[{d}:{d+15}]'
            def small(jh):
                dd = d + 8*(i%2) + 4*jh; w2 = ((u//4) % 2)*128 + 4*((i & ~1) + jh)
                e(f'{MF} v[{dd}:{dd+3}], a[{w2}:{w2+3}], v[{fr(n)}:{fr(n)+3}], ' + ('0' if i < 2 else f'v[{dd}:{dd+3}]'))
            m = nxt; nxt = None
            if f16:
                small(0)
                if m: m[1]()
                elif g >= start:
                    b2 = 0
                    while ep and ep[0][0] == 'v' and b2 + ep[0][2] <= 2:
                        k, o, c2 = ep.pop(0); e(o); acc -= c2; b2 += c2
                small(1)
            else: e(f'{MB} v[{d}:{d+15}], a[{wr}:{wr+3}], v[{fr(n)}:{fr(n)+3}], {c}')
            wait_for(n + 1)
            if g < N - 1:
                if pend and g >= lastst + stgap: nxt = pend.pop(0); lastst = g
                elif mq and issued * (N - 2) <= g * nm: nxt = mq.pop(0); issued += 1
            if nxt and nxt[0]: e(nxt[0])
            if n + FDF < len(seq):
                un, inn = seq[n + FDF]
                if inn == 0 and un in (2, 3):
                    assert vq.q.count(f'x{un}') == 8
                    vq.wait(f'x{un}'); e('s_barrier')
                e(fread(n + FDF))
            if not f16 and nxt:
                if n + FDF >= len(seq): e('s_nop 0')
                nxt[1](); m = nxt; nxt = None
            if g >= start:
                acc += tot / (N - 2 - start) - (2 if m else 0) + (2.0 * (nm + 2) / N)
                while ep and (ep[0][0] in 'mB' or acc >= ep[0][2] - 0.5):
                    k, o, c2 = ep.pop(0)
                    if k == 'B': e(o); break
                    if k == 'v': e(o); acc -= c2
                    else: pend.append(o)
            n += 1
        for k, o, c2 in ep:
            if k == 'v': e(o)
            else: pend.append(o)
        now(pend + mq)
        a.mark(f'u{blk}')
    assert f16 and order[0]
    V_KB=2; V_VB=3; V_KA=4; V_VA=5; V_L=8; V_MX=10; V_T0=12; V_T1=13; V_T2=14; V_T3=15
    S_BUF=[16,32]; NEGM=48; P=56; AFR=64
    e(f's_mov_b32 s45, {THRESH}\ns_mov_b32 s31, 7')
    if side3: e('s_cmp_lt_u32 s36, 0x50000000\ns_cselect_b64 s[6:7], -1, 0')
    vq.wait('k1'); e('s_barrier')
    a.mark('attn0')
    def afr(f): return AFR + 4*(f % 8)
    def qf(step, qt): return Q + 4*(2*step+qt)
    cur = [0]
    def reads(f):
        f0 = f % 64; r = afr(f)
        if f0 < 32:
            sl = (cur[0] + 1 + f // 64) % 4
            step, kt = f0 // 2, f0 % 2
            return [f'ds_read_b128 v[{r}:{r+3}], v{V_KB if sl < 2 else V_KA} offset:{(sl%2)*SLOT + kt*16*PITCH + 16*step}']
        dt = f0 - 32; sl = (cur[0] + f // 64) % 4
        return [f'ds_read_b64_tr_b16 v[{r+2*kt}:{r+2*kt+1}], v{V_VB if sl < 2 else V_VA} offset:{(sl%2)*SLOT + kt*16*PITCH + 32*dt}' for kt in range(2)]
    def nreads(f): return 1 if (f % 64) < 32 else 2
    def mfma(n, Snext, first_c, zero=False):
        f = n // 2; r = afr(f); qt = n % 2
        if n < 64:
            step, kt = f // 2, f % 2
            d = Snext + 8*qt + 4*kt
            c = first_c(qt) if step == 0 else f'v[{d}:{d+3}]'
            return f'{MF} v[{d}:{d+3}], v[{r}:{r+3}], v[{qf(step,qt)}:{qf(step,qt)+3}], {c}'
        dt = f - 32; o = 8*dt + 4*qt
        return f'{MF} a[{o}:{o+3}], v[{r}:{r+3}], v[{P+4*qt}:{P+4*qt+3}], ' + ('0' if zero else f'a[{o}:{o+3}]')
    def maxtree(S):
        ops = []
        for qt in range(2):
            b = S + 8*qt; m = V_MX + qt
            ops.append([f'v_max3_f32 v{m}, v{b}, v{b+1}, v{b+2}', f'v_max3_f32 v{m}, v{m}, v{b+3}, v{b+4}',
                        f'v_max3_f32 v{m}, v{m}, v{b+5}, v{b+6}', f'v_max_f32 v{m}, v{m}, v{b+7}'])
        return [x for pair in zip(*ops) for x in pair]
    def xred(op, regs):
        ts = [V_T0, V_T1]
        for sw in ('32', '16'):
            for r, t in zip(regs, ts): e(f'v_mov_b32 v{t}, v{r}')
            e('s_nop 1')
            for r, t in zip(regs, ts): e(f'v_permlane{sw}_swap_b32 v{t}, v{r}')
            e('s_nop 1')
            for r, t in zip(regs, ts): e(f'{op} v{r}, v{r}, v{t}')
    SD = 96
    def side_ops():
        ops = []
        for st in range(16):
            for k in range(3):
                r = 12*st + 4*k; pre = None
                if st % 4 == 0 and st and k == 0: pre = 's_add_u32 s43, s43, 4096'
                if st % 4 == 0 and k == 1: pre = 's_add_u32 s47, s43, 16384'
                if st % 4 == 0 and st and k == 2: pre = 's_add_u32 s44, s44, 4096'
                so = ['s43', 's47', 's44'][k]
                ld = f'buffer_load_dwordx4 a[{r}:{r+3}], v{V_L16}, {srd(R_WS)}, {so} offen offset:{1024*(st%4)}{HS1}'
                if side3: ld = 's_mov_b64 exec, s[6:7]\n' + ld + '\ns_mov_b64 exec, -1'
                ops.append((pre, ld, f'sd{st}'))
        return ops
    vq0 = (list(vq.q), vq.done)
    def qk0(j0):
        vq.q, vq.done = list(vq0[0]), vq0[1]
        S = S_BUF[j0 % 2]
        cur[0] = j0 - 1
        ep = epi_ops(11, TMP=96)
        mq = kops(2)
        sd = side_ops() if j0 == 1 else []
        mq += [(p, (lambda o=o, t=t: vq.issue(o, t))) for p, o, t in sd[:nside]]
        for f in range(DF): e(reads(f)[0])
        if ep[0][0] == 'B': e(ep.pop(0)[1])
        def w(n):
            ws = [f'lgkmcnt({DF-3})' if n else f'lgkmcnt({DF-2})', vq.need(f'q{2*(n//4)+1}')]
            e('s_waitcnt ' + ' '.join(x for x in ws if x))
        w(0); nxt = None; nm = len(mq); issued = 0
        for n in range(64):
            f = n // 2
            e(mfma(n, S, lambda qt: '0'))
            budget = 3
            if n % 2 == 1:
                if n % 4 == 3 and n < 63: w(n + 1)
                if ep and ep[0][0] == 'm': nxt = ep.pop(0)[1]
                elif mq and issued * 30 <= f * nm: nxt = mq.pop(0); issued += 1
                if nxt and nxt[0]: e(nxt[0])
                e(reads(f + DF if f + DF < 32 else f + DF + 32)[0])
            elif nxt: nxt[1](); nxt = None; budget = 0
            if burst: budget = min(budget, 2)
            while ep and ep[0][0] == 'v' and budget >= ep[0][2]:
                k, o, c2 = ep.pop(0); e(o); budget -= c2
        if nxt: nxt[1]()
        for k, o, c2 in ep:
            if k == 'v': e(o)
            else: now([o])
        now(mq)
        e('s_nop 5\ns_add_u32 s29, s26, 4096')
        for o in maxtree(S): e(o)
        xred('v_max_f32', [V_MX, V_MX+1])
        for qt in range(2):
            for i in range(4): e(f'v_sub_f32 v{NEGM+4*qt+i}, 0, v{V_MX+qt}')
            for i in range(8): e(f'v_sub_f32 v{S+8*qt+i}, v{S+8*qt+i}, v{V_MX+qt}')
        a.mark('loop0')
        e(f's_add_u32 s41, s41, {FB_REL}\ns_waitcnt lgkmcnt(0)')
        return sd[nside:]

    V_G=128; V_DW=192; V_U=96
    vt = VQ(e)
    pollB_ld = [f'buffer_load_dwordx4 v[{96+4*i}:{99+4*i}], v{V_L16}, {srd(R_FL)}, s44 offen offset:{1024*i}{FSC}' for i in range(4)]
    PF = []
    for pl in range(2):
        for tt in range(2):
            r = V_U + 16 + 8*pl + 4*tt
            PF.append((None, f'buffer_load_dwordx4 v[{r}:{r+3}], v{V_L16}, {srd(R_U)}, s{46+tt} offen offset:{1024*(pl+2)} sc1', 'u', -1))
    for p in range(16):
        PF.append(('s_add_u32 s39, s39, 4096' if p % 4 == 0 and p else None, f'buffer_load_dwordx4 v[{V_G+4*p}:{V_G+4*p+3}], v{V_L16}, {srd(R_GL)}, s39 offen offset:{1024*(p%4)} sc1', 'g', p // 2))
    for pl in range(2):
        for tt in range(2):
            r = V_U + 8*pl + 4*tt
            PF.append((None, f'buffer_load_dwordx4 v[{r}:{r+3}], v{V_L16}, {srd(R_U)}, s{46+tt} offen offset:{1024*pl} sc1', 'u', -1))
    for i in range(16):
        PF.append(('s_add_u32 s38, s38, 4096' if i % 4 == 0 and i else None, f'buffer_load_dwordx4 v[{V_DW+4*i}:{V_DW+4*i+3}], v{V_L16}, {srd(R_WS)}, s38 offen offset:{1024*(i%4)}{HS1}', f'dw{i//4}', 8 + i // 2))
    def body(jm, special=False, first=None, var=None):
        par = jm % 2; cur[0] = jm
        Scur, Snext = S_BUF[par], S_BUF[1-par]
        sc = [[] for _ in range(128)]; gap = [[] for _ in range(128)]; used = [0]*128
        peel = first; first = {}
        def put(n, op, cost=1): gap[n].append(op); used[n] += cost
        def fit(lo, cost, hi=127):
            n = lo
            while used[n] + cost > 2 and n < hi: n += 1
            return n
        def rmap(f): return f + 32 if (special and f >= 64) else f
        rdq = {}
        for f in range(64):
            x = rmap(f + DF)
            if x == 64:
                sc[2*f] += ['s_waitcnt vmcnt(8)', 's_nop 0' if nobar else 's_barrier']; used[2*f] += 1
            for i, o in enumerate(reads(x)):
                put(2*f + i, o); rdq.setdefault(2*f + i, []).append(f + DF)
        q = list(range(DF)); wgaps = []
        for n in range(128):
            if (n + 1) % (2*AW) == 0:
                need = (n + 1)//2 + AW - 1
                sc[n].insert(0, f's_waitcnt lgkmcnt({sum(1 for x in q if x > need)})'); wgaps.append(n)
                assert need in q and sum(1 for x in q if x == need) == nreads(rmap(need))
            q += rdq.get(n, [])
        free_odd = [n for n in range(1, 64, 2) if used[n] == 0]
        eg = [n for n in free_odd if n in wgaps]; og = [n for n in free_odd if n not in wgaps]
        dg = []
        if not special:
            dg = [og[(i*len(og))//8] for i in range(8)] if dlate else og[:8]
            if var is not None: dg = free_odd[var::3][:8]
            for r, n in enumerate(dg):
                sc[n-1].append(f's_add_u32 m0, s35, {65536 + ((jm+3)%4)*SLOT + r*PITCH - (r&3)*1024}')
                if nodma: used[n] += 2
                else: put(n, f'buffer_load_dwordx4 v{V_L16}, {srd(R_XA)}, {"s26" if r < 4 else "s29"} offen offset:{(r&3)*1024}{ksc} lds', 2)
            sc[70].append('s_add_u32 s26, s26, 32768')
            if jm == 0:
                sc[72].append('s_cmp_eq_u32 s31, 0'); sc[73].append(f's_cselect_b64 s[{R_XA}:{R_XA+1}], s[{R_AUX}:{R_AUX+1}], s[{R_XA}:{R_XA+1}]'); sc[74].append('s_cselect_b32 s26, s28, s26'); sc[74].append('s_nop 0')
            sc[76].append('s_add_u32 s29, s26, 4096')
        else:
            dg = og[1:]
            dg = dg[:len(og) + len(eg) - 16]
        epos = [n for n in free_odd if n not in dg][:16]
        assert len(epos) == 16
        for k, n in enumerate(epos):
            op = f'v_exp_f32 v{Scur+k}, v{Scur+k}'
            if n in wgaps: first[n] = op; used[n] += 2
            else: put(n, op, 2)
        adds = [f'v_add_f32 v{V_L+(k//8)}, v{V_L+(k//8)}, v{Scur+k}' for k in range(16)]
        for n in wgaps:
            if n not in first and n != 127 and n not in dg:
                first[n] = 's_nop 0'; used[n] += 1
        for k in range(8):
            n = fit(epos[2*k+1]+1, 1); put(n, f'v_cvt_pk_bf16_f32 v{P+k}, v{Scur+2*k}, v{Scur+2*k+1}')
            assert n <= 61, n
        def place(ops, lo):
            n = lo
            for op in ops:
                n = fit(n, 1); put(n, op)
            return n
        place(adds, max(epos)+1)
        n = place(maxtree(Snext) + [f'v_max_f32 v{V_T3}, v{V_MX}, v{V_MX+1}'], 72)
        if special:
            slots = dg + list(range(53, 124, 4))
            for n in slots:
                pr, op, tag, minq = PF.pop(0)
                assert n >= 4*minq + 4
                if pr: sc[n].append(pr)
                gap[n].insert(len(rdq.get(n, [])), (op, tag))
        if peel:
            for i, (pr, op, tag) in enumerate(peel):
                n_ = 2*((i*22)//len(peel))
                if pr: sc[n_].append(pr)
                gap[n_].insert(1, (op, tag))
        gap[125].append(f'v_cmp_lt_f32 vcc, s45, v{V_T3}')
        assert n <= 124
        for n in range(128):
            if peel and n == 64:
                for st in range(16):
                    vq.wait(f'sd{st}')
                    for jj in range(2):
                        e(f'{MF} v[{SD+4*jj}:{SD+4*jj+3}], a[{12*st+4*jj}:{12*st+4*jj+3}], a[{12*st+8}:{12*st+11}], ' + ('0' if st == 0 else f'v[{SD+4*jj}:{SD+4*jj+3}]'))
            e(mfma(n, Snext, lambda qt: f'v[{NEGM+4*qt}:{NEGM+4*qt+3}]', zero=peel is not None))
            for o in sc[n]: e(o)
            if n in first: e('s_nop 0' if (novalu and not special and peel is None) else first[n])
            for o in gap[n]:
                if novalu and not special and peel is None and not isinstance(o, tuple) and o.startswith('v_') and 'cmp' not in o: continue
                if isinstance(o, tuple): (vq if peel else vt).issue(*o)
                elif peel and o.startswith('buffer'): vq.issue(o, 'dma')
                else: e(o)
            if peel and 90 <= n < 94: e(f'v_cvt_pk_bf16_f32 v{SD+8+n-90}, v{SD+2*(n-90)}, v{SD+2*(n-90)+1}')
            if peel and n == 117: e(f'buffer_store_dwordx4 v[{SD+8}:{SD+11}], v{V_L16}, {srd(R_WS)}, s36 offen sc1')
    def rescale(par):
        Snext = S_BUF[1-par]
        e('s_nop 7\ns_nop 7')
        for qt in range(2): e(f'v_max_f32 v{V_MX+qt}, 0, v{V_MX+qt}')
        xred('v_max_f32', [V_MX, V_MX+1])
        for qt in range(2):
            for i in range(4): e(f'v_sub_f32 v{NEGM+4*qt+i}, v{NEGM+4*qt+i}, v{V_MX+qt}')
            for i in range(8): e(f'v_sub_f32 v{Snext+8*qt+i}, v{Snext+8*qt+i}, v{V_MX+qt}')
            e(f'v_sub_f32 v{V_MX+qt}, 0, v{V_MX+qt}\nv_exp_f32 v{V_MX+qt}, v{V_MX+qt}\ns_nop 0')
            e(f'v_mul_f32 v{V_L+qt}, v{V_L+qt}, v{V_MX+qt}')
    e(f's_cmp_eq_u32 s38, 0\ns_cbranch_scc1 {name}_q0')
    rest = qk0(1)
    body(1, first=rest)
    NV = 3 if stag else 1
    def disp(lbl):
        for v in range(1, NV): e(f's_cmp_eq_u32 s24, {v}\ns_cbranch_scc1 {name}_{lbl}v{v}')
        e(f's_branch {name}_{lbl}v0')
    e(f's_cbranch_vccnz {name}_R1')
    a.label(f'{name}_B1'); disp('B1')
    a.label(f'{name}_q0')
    qk0(0)
    body(0, first=[])
    e(f's_cbranch_vccnz {name}_R0')
    a.label(f'{name}_B0'); disp('B0')
    for jm in (2, 3):
        a.label(f'{name}_B{jm}'); disp(f'B{jm}')
    a.label(f'{name}_L0'); disp('L0')
    for v in range(NV):
        a.label(f'{name}_L0v{v}')
        for jm in range(4):
            if jm == 2: e(f's_cmp_eq_u32 s31, 0\ns_cbranch_scc1 {name}_sp2')
            body(jm, var=v if stag else None)
            e(f's_cbranch_vccnz {name}_R{jm}')
            a.label(f'{name}_B{jm}v{v}')
        e(f's_sub_u32 s31, s31, 1\ns_bitcmp1_b32 {32 if l2pf else 38}, s31\ns_cbranch_scc1 {name}_L0v{v}')
        if v < NV - 1: e(f's_branch {name}_stub')
    a.label(f'{name}_stub')
    e(f's_cmp_eq_u32 s31, 6\ns_cbranch_scc1 {name}_fb')
    for k in ((4, 3, 2, 1) if l2pf else (4, 3)): e(f's_cmp_eq_u32 s31, {k}\ns_cbranch_scc1 {name}_st{k}')
    a.mark('r0')
    e('s_lshl_b32 s36, s32, 2\ns_add_u32 s36, s36, s24\ns_and_b32 s36, s36, 7')
    a.touch_code(f'{name}_sp2', f'{name}_end', 50, 113, 112, 36, 1)
    e(f's_branch {name}_L0')
    a.label(f'{name}_st4')
    a.mark('r4')
    e(f's_mov_b32 s44, {FB_REL}')
    for l in pollB_ld: e(l)
    e('s_lshl_b32 s48, s34, 2\ns_add_u32 s48, s48, s32\ns_mul_i32 s49, s33, 125\ns_add_u32 s49, s49, s48')
    e('s_lshl_b32 s39, s48, 1\ns_add_u32 s39, s39, s24\ns_sub_u32 s39, s39, 1\ns_and_b32 s39, s39, 0xffff\ns_lshl_b32 s39, s39, 14')
    e(f's_lshl_b32 s38, s24, 14\ns_add_u32 s38, s38, {DW_OFF}')
    e('s_lshl_b32 s28, s49, 15\ns_lshl_b32 s47, s24, 13\ns_add_u32 s28, s28, s47')
    e('s_lshl_b32 s46, s49, 15\ns_lshl_b32 s47, s24, 12\ns_add_u32 s46, s46, s47\ns_add_u32 s47, s46, 16384')
    e(f'v_lshlrev_b32 v113, 7, v0\ns_branch {name}_L0')
    a.label(f'{name}_st3')
    a.mark('r3')
    poll(pollB_ld, list(range(96, 112)), None)
    if l2pf == 1: e(f'buffer_load_dword v112, v113, {srd(R_AUX)}, s28 offen')
    e(f's_branch {name}_L0')
    a.label(f'{name}_st2')
    a.mark('r2')
    if l2pf: e(f's_mul_i32 s36, s33, 4096000\ns_sub_u32 s36, s28, s36\nbuffer_load_dword v112, v113, {srd(R_GL)}, s36 offen sc1')
    e(f's_branch {name}_L0')
    a.label(f'{name}_st1')
    a.mark('r1')
    if l2pf: e(f'buffer_load_dword v112, v113, {srd(R_U)}, s28 offen sc1')
    e(f's_branch {name}_L0')
    a.label(f'{name}_fb')
    a.mark('r6')
    e(f'buffer_store_dword v{V_ONE}, off, {srd(R_FL)}, s41{FSC}')
    e(f's_branch {name}_L0')
    for rid in (0, 2, 4):
        a.label(f'{name}_R{rid}'); e(f's_mov_b32 s42, {rid}')
        if rid != 4: e(f's_branch {name}_RB0')
    a.label(f'{name}_RB0'); rescale(0); e(f's_branch {name}_RC')
    for rid in (1, 3):
        a.label(f'{name}_R{rid}'); e(f's_mov_b32 s42, {rid}')
        if rid != 3: e(f's_branch {name}_RB1')
    a.label(f'{name}_RB1'); rescale(1)
    a.label(f'{name}_RC')
    for i in range(0, 256, 2):
        qt = (i // 4) % 2
        e(f'v_accvgpr_read_b32 v{V_T1}, a{i}\nv_accvgpr_read_b32 v{V_T2}, a{i+1}\nv_mul_f32 v{V_T1}, v{V_T1}, v{V_MX+qt}\nv_mul_f32 v{V_T2}, v{V_T2}, v{V_MX+qt}')
        e(f'v_accvgpr_write_b32 a{i}, v{V_T1}\nv_accvgpr_write_b32 a{i+1}, v{V_T2}')
    e('s_nop 3')
    for rid in range(4): e(f's_cmp_eq_u32 s42, {rid}\ns_cbranch_scc1 {name}_B{rid}')
    e(f's_branch {name}_B4')
    a.label(f'{name}_sp2')
    a.mark('sp2')
    for _ in range(8): vt.q.append('old')
    body(2, special=True)
    e(f's_cbranch_vccnz {name}_R4')
    a.label(f'{name}_B4')
    a.mark('b4')
    cur[0] = 3; Scur = S_BUF[1]
    for k in range(16): e(f'v_exp_f32 v{Scur+k}, v{Scur+k}')
    for k in range(8): e(f'v_cvt_pk_bf16_f32 v{P+k}, v{Scur+2*k}, v{Scur+2*k+1}')
    e('s_nop 0')
    OC_L = SLOT; LL_L = OC_L + 32768; GT_L = 2*SLOT; UC_L = 4*SLOT; OCD = OC_L
    R_LP = R_Q
    V_GW=2; V_CB=3; V_XO=4; V_UCR=5; SEL=16; V_X=64
    wn = [0]
    pslots = []
    for r in range(4): pslots += [V_DW + 16*r + 4*j for j in range(4)] + [V_U + 8*r + 4*j for j in range(2)]
    free = []; wmap = {}
    def wreg(i): return wmap[i]
    def wl():
        i = wn[0]
        if i >= 256 or not free: return False
        wmap[i] = free.pop(0)
        wn[0] += 1
        sg = (i & 127) // 8
        p = 4*(sg % 4) + sg // 4 if i < 128 else sg
        if i >= 224:
            k = i - 224
            if i % 2 == 0: e(f's_add_u32 s41, s40, {524288 + (12 + (k%8)//2)*8192 + (k//8)*2048}')
            vt.issue(f'buffer_load_dwordx4 {wreg(i)}, v{V_L16 if t16 else V_WP}, {srd(R_WS)}, s41 offen offset:{(1024 if t16 else 512)*(i%2)} sc1', f'w{i}')
            return True
        if i % 4 == 0: e(f's_add_u32 s41, s40, {(i>>7)*524288 + p*8192 + ((i%8)//4)*4096}')
        vt.issue(f'buffer_load_dwordx4 {wreg(i)}, v{V_L16 if t16 else V_WP}, {srd(R_WS)}, s41 offen offset:{2048*((i%4)//2) + (1024 if t16 else 512)*(i%2)}' + (' sc1' if i >= 128 else HS1), f'w{i}')
        return True
    lq = LQ(e)
    pubn = [0]
    def pub_ops(T, lqq=None):
        fidx = pubn[0]; pubn[0] += 1
        u, qt = fidx // 2, fidx % 2; o = T + 8 + 4*(fidx % 2); ops = []
        for j in range(8): ops.append(lambda j=j: e(f'v_accvgpr_read_b32 v{T+j}, a{16*u + 8*(j//4) + 4*qt + j%4}'))
        for j in range(4): ops.append(lambda j=j: e(f'v_cvt_pk_bf16_f32 v{o+j}, v{T+2*j}, v{T+2*j+1}'))
        def st():
            if fidx % 4 == 0 and fidx: e('s_add_u32 s29, s29, 4096')
            if xm: e('s_not_b64 exec, s[30:31]')
            vt.issue(f'buffer_store_dwordx4 v[{o}:{o+3}], v{V_L16}, {srd(R_OP)}, s29 offen offset:{(fidx%4)*1024} sc1', 'ps' if fidx >= 16 else 'psA')
            e('s_mov_b64 exec, s[30:31]')
            lq.issue(f'ds_write_b128 v{V_L16}, v[{o}:{o+3}] offset:{OC_L + 1024*fidx}', 'pw')
            e('s_mov_b64 exec, -1')
            if qt == 1: free.extend(f'a[{16*u+4*j}:{16*u+4*j+3}]' for j in range(4))
        ops += [st]
        return ops
    SC = []
    def S_(t): SC.extend(t.split('\n'))
    S_(f's_add_u32 s{R_LP}, s4, {LP_OFF}|s_addc_u32 s{R_LP+1}, s5, 0\ns_mov_b32 s{R_LP+2}, {LP_SZ}')
    S_('s_lshl_b32 s25, s30, 2\ns_add_u32 s36, s25, s24\ns_add_u32 s25, s25, s32')
    S_('s_cmp_eq_u32 s24, s32|s_cselect_b64 s[30:31], -1, 0|s_cselect_b32 s35, 0x4000, 0')
    S_(f's_mul_i32 s37, s32, {NS}\ns_add_u32 s37, s37, s35\ns_add_u32 s37, s37, s36\ns_lshl_b32 s35, s37, 8\ns_lshl_b32 s29, s37, 15')
    S_(f's_lshl_b32 s40, s24, 17\ns_add_u32 s40, s40, {WF_OFF}')
    S_(f's_lshl_b32 s36, s36, 6\ns_lshl_b32 s37, s32, 2\ns_add_u32 s36, s36, s37\ns_add_u32 s36, s36, {FC_REL}')
    S_(f's_mov_b32 s42, 0x3f803f80\ns_mov_b32 s43, 0xffff0000\ns_mov_b32 s44, {f2u(1/512)}\ns_lshl_b32 s39, s24, 13\ns_lshl_b32 s59, s24, 11')
    for k in range(3):
        S_(f's_add_u32 s37, s32, {k+1}\ns_and_b32 s37, s37, 3\ns_mul_i32 s37, s37, {NS}\ns_add_u32 s37, s37, s25\ns_lshl_b32 s{26+k}, s37, 8\ns_lshl_b32 s{45+k}, s37, 15\ns_add_u32 s{45+k}, s{45+k}, s59')
    S_(f's_lshl_b32 s37, s25, 6\ns_add_u32 s37, s37, {FC_REL}\ns_lshl_b32 s50, s49, 15\ns_add_u32 s51, s50, 16384')
    VC = [f'v_add_f32 v{V_L+(k%2)}, v{V_L+(k%2)}, v{Scur+8*(k%2)+k//2}' for k in range(16)]
    def V_(t): VC.extend(t.split('\n'))
    m, G, t3, t0, t1, t2 = 24, 25, 26, 27, 28, 29
    V_(f'v_and_b32 v{m}, 15, v0\nv_lshrrev_b32 v{G}, 4, v0\nv_lshrrev_b32 v{t3}, 1, v{G}')
    for sw in ('32', '16'):
        V_(f'v_mov_b32 v{V_T0}, v{V_L}\nv_mov_b32 v{V_T1}, v{V_L+1}|s_nop 1|v_permlane{sw}_swap_b32 v{V_T0}, v{V_L}\nv_permlane{sw}_swap_b32 v{V_T1}, v{V_L+1}|s_nop 1|v_add_f32 v{V_L}, v{V_L}, v{V_T0}\nv_add_f32 v{V_L+1}, v{V_L+1}, v{V_T1}')
    V_(f'v_and_b32 v{V_T0}, 16, v0\nv_cmp_eq_u32 vcc, 0, v{V_T0}\nv_lshlrev_b32 v{V_T1}, 4, v{m}\nv_lshl_add_u32 v{V_T1}, v{G}, 2, v{V_T1}')
    V_(f'v_cndmask_b32 v{V_MX}, v{NEGM+4}, v{NEGM}, vcc\nv_cndmask_b32 v{V_MX+1}, v{V_L+1}, v{V_L}, vcc\nv_cmp_gt_u32 vcc, 32, v0|s_nop 1|v_cndmask_b32 v{V_MX}, v{V_MX+1}, v{V_MX}, vcc')
    V_(f'v_lshrrev_b32 v{t0}, 3, v{m}\nv_cmp_eq_u32 vcc, v{t0}, v{t3}\nv_bfe_u32 v{t0}, v{m}, 1, 2|s_nop 0|v_cndmask_b32 v{t0}, 8, v{t0}, vcc')
    V_(f'v_and_b32 v{t1}, 1, v{m}\nv_cmp_eq_u32 vcc, 1, v{t1}')
    for par in range(2):
        bsel = 0x0302 if par else 0x0100
        V_(f'v_mov_b32 v{t1}, {0x0c0c0000 | bsel}\nv_mov_b32 v{t2}, {(bsel << 16) | 0x0c0c}\nv_cndmask_b32 v{30+par}, v{t1}, v{t2}, vcc')
    V_(f'v_mov_b32 v{t1}, 0x0c0c0c0c')
    for r in range(4):
        V_(f'v_cmp_eq_u32 vcc, {r}, v{t0}|s_nop 1|v_cndmask_b32 v{SEL+r}, v{t1}, v30, vcc\nv_cndmask_b32 v{SEL+4+r}, v{t1}, v31, vcc')
    V_(f'v_lshl_add_u32 v{V_GW}, s24, 4, v{m}\nv_mul_u32_u24 v{V_GW}, {PITCH}, v{V_GW}\nv_lshl_add_u32 v{V_GW}, v{G}, 4, v{V_GW}\nv_add_u32 v{V_GW}, {GT_L}, v{V_GW}')
    V_(f'v_and_b32 v{V_CB}, 1, v{G}\nv_lshlrev_b32 v{V_CB}, 4, v{V_CB}\nv_add3_u32 v{V_CB}, v{V_CB}, v{m}, 1\nv_mul_u32_u24 v{V_CB}, {PITCH}, v{V_CB}\nv_lshl_add_u32 v{V_CB}, v{t3}, 4, v{V_CB}\nv_lshl_add_u32 v{V_CB}, s24, 8, v{V_CB}\nv_add_u32 v{V_CB}, {GT_L}, v{V_CB}')
    if t16:
        V_(f'v_lshlrev_b32 v{V_XO}, 10, v{m}\nv_lshl_add_u32 v{V_XO}, v{G}, 4, v{V_XO}\nv_lshl_add_u32 v{V_XO}, s24, 8, v{V_XO}')
        late = [f'v_add_u32 v{V_UCR}, {UC_L}, v{V_L16}', f'v_mul_u32_u24 v6, {PITCH}, v{m}', f'v_lshl_add_u32 v6, v{G}, 4, v6', 'v_lshl_add_u32 v6, s24, 8, v6', f'v_add_u32 v{V_T1}, {LL_L-4096}, v{V_T1}']
    else:
        V_(f'v_and_b32 v{V_XO}, 31, v0\nv_lshlrev_b32 v{V_XO}, 10, v{V_XO}\nv_lshl_add_u32 v{V_XO}, v{t3}, 4, v{V_XO}\nv_lshl_add_u32 v{V_XO}, s24, 8, v{V_XO}')
        late = [f'v_and_b32 v{V_UCR}, 1, v{G}', f'v_lshlrev_b32 v{V_UCR}, 10, v{V_UCR}', f'v_lshl_add_u32 v{V_UCR}, v{t3}, 8, v{V_UCR}', f'v_lshl_add_u32 v{V_UCR}, v{m}, 4, v{V_UCR}']
    assert all(p[2].startswith('dw') for p in PF)
    pq = []
    for _ in range(npub[0]): pq += pub_ops(32)
    for f in range(32, 32 + DF): lq.q += [f'v{f}']*2
    waits0 = lq.need('v33'); e(f's_waitcnt {waits0}')
    for n in range(64, 128):
        f = n // 2
        e(mfma(n, 0, None))
        mm = PF.pop(0) if (PF and n % 4 == 1) else None
        if n % 4 == 3 and n < 127: e('s_waitcnt ' + lq.need(f'v{f+2}'))
        elif mm and mm[0]: e(mm[0])
        for _ in range(1 if n % 4 == 3 else 2):
            if SC: e(SC.pop(0).replace('|', '\n'))
        if f + DF < 64: lq.issue(reads(f + DF)[n % 2], f'v{f+DF}')
        if mm: vt.issue(mm[1], mm[2])
        elif not VC and pq and pq[0].__name__ == 'st': pq.pop(0)()
        else:
            for _ in range(vper):
                if VC: e(VC.pop(0).replace('|', '\n'))
                elif pq and pq[0].__name__ != 'st': pq.pop(0)()
    assert not PF and not SC and not VC, (len(SC), len(VC))
    for o in pq: o()
    vt.issue(f'buffer_store_dword v{V_MX}, v{V_T1}, {srd(R_LP)}, s35 offen sc1', 'psA')
    vt.wait('g'); e('s_barrier')
    a.mark('attn1')
    def flagC(h):
        assert pubn[0] >= 16*(h+1) and vt.q.count('psA') == 17 and (h == 0 or vt.q.count('ps') == 16)
        vt.wait('ps' if h else 'psA')
        vt.issue(f'buffer_store_dword v{V_ONE}, off, {srd(R_FL)}, s36 offset:{16*h}{FSC}', 'fc')
    for o in late: e(o)
    e(f's_mov_b64 exec, s[30:31]\nds_write_b32 v{V_T1}, v{V_MX} offset:4096\ns_mov_b64 exec, -1'); lq.q.append('ll')
    S = [V_X+8, V_X+10, V_X+9, V_X+11]
    for i in range(4): e(f'v_mov_b32 v{S[i]}, 0')
    n1 = npub[1] * 2 // 5; n2 = npub[1] - n1
    for i in range(64):
        e(f'v_dot2_f32_bf16 v{S[i%2]}, v{V_G+i}, s42, v{S[i%2]}')
        e(f'v_dot2_f32_bf16 v{S[2+i%2]}, v{V_G+i}, v{V_G+i}, v{S[2+i%2]}')
        if (i+1)*n1 // 64 > i*n1 // 64:
            for o in pub_ops(80): o()
            wl()
        if i % 8 == 3: wl()
    e('s_nop 2')
    e(f'v_add_f32 v{S[0]}, v{S[0]}, v{S[1]}\nv_add_f32 v{S[2]}, v{S[2]}, v{S[3]}')
    for sw in ('16', '32'):
        e(f'v_mov_b32 v{S[1]}, v{S[0]}\nv_mov_b32 v{S[3]}, v{S[2]}\ns_nop 1')
        e(f'v_permlane{sw}_swap_b32 v{S[1]}, v{S[0]}\nv_permlane{sw}_swap_b32 v{S[3]}, v{S[2]}\ns_nop 0')
        e(f'v_add_f32 v{S[0]}, v{S[0]}, v{S[1]}\nv_add_f32 v{S[2]}, v{S[2]}, v{S[3]}')
    e(f'v_mul_f32 v{S[0]}, s44, v{S[0]}\nv_mul_f32 v{S[2]}, s44, v{S[2]}\nv_fma_f32 v{S[2]}, -v{S[0]}, v{S[0]}, v{S[2]}\nv_max_f32 v{S[2]}, 0, v{S[2]}')
    e(f'v_add_f32 v{S[2]}, {f2u(1e-5)}, v{S[2]}\nv_rsq_f32 v{S[2]}, v{S[2]}\ns_nop 0\nv_mul_f32 v{S[0]}, -v{S[0]}, v{S[2]}')
    for p in range(16):
        tb = 48 + 8*(p % 2)
        for k in range(4):
            e(f'v_lshlrev_b32 v{tb+2*k}, 16, v{V_G+4*p+k}\nv_and_b32 v{tb+2*k+1}, s43, v{V_G+4*p+k}')
        for j in range(0, 8, 2): e(f'v_pk_fma_f32 v[{tb+j}:{tb+j+1}], v[{tb+j}:{tb+j+1}], v[{S[0]}:{S[0]+1}], v[{S[0]}:{S[0]+1}] op_sel:[0,1,0] op_sel_hi:[1,1,0]')
        for k in range(4): e(f'v_cvt_pk_bf16_f32 v{V_G+4*p+k}, v{tb+2*k}, v{tb+2*k+1}')
        lq.issue(f'ds_write_b128 v{V_GW}, v[{V_G+4*p}:{V_G+4*p+3}] offset:{64*p}', 'gw')
        wl()
        if (p+1)*n2 // 16 > p*n2 // 16:
            for o in pub_ops(80): o()
    e(f'v_add_u32 v{V_GW}, s59, v{V_UCR}')
    e('s_waitcnt lgkmcnt(0)\ns_barrier'); lq.drained()
    a.mark('stage')
    ABUF = [8, 12, 24, 28]; CACC = 64; GB = 80; GACC = 128
    V_PA = 3
    pn = [0]; pok = [0]; prnd = [0]; plim = [15]
    def pload():
        k = pn[0]
        if k >= min(pok[0], 6*prnd[0], plim[0]): return False
        pn[0] += 1
        i, s = k // 3, k % 3
        if i % 2 == 0 and i: e(f's_add_u32 s{45+s}, s{45+s}, 8192')
        r = pslots[k]
        vt.issue(f'buffer_load_dwordx4 v[{r}:{r+3}], v{V_L16}, {srd(R_OP)}, s{45+s} offen offset:{1024*(i%2)} sc1', f'p{i}')
        return True
    pst = {}
    def events(t):
        for h, (ft, pt) in enumerate(((fA, pA), (fB, pB))):
            if t == ft: flagC(h); return True
            if t == pt:
                ix = min(6*prnd[0], plim[0]) - 1; r = pslots[ix]; assert pn[0] <= ix
                pst[h] = (f'buffer_load_dwordx4 v[{r}:{r+3}], off, {srd(R_FL)}, s37 offset:{16*h}{FSC}', r, pok[0])
                pok[0] = min(pok[0], ix)
                vt.issue(pst[h][0], f'pc{h}'); return True
            if t == pt + pD:
                vt.wait(f'pc{h}'); poll([pst[h][0]], [pst[h][1]+j for j in range(4)], None); pok[0] = 12*(h+1); return True
        return False
    HS = 1024 if t16 else 512
    def gm(i, Bbase, first, mid=None):
        e8 = i % 8 if i < 224 else 2*((i-224)//8) + i % 2
        d = GACC + 16*(e8 // 2)
        if not t16:
            Bq = Bbase + 4*(e8 % 2)
            e(f'{MB} v[{d}:{d+15}], {wreg(i)}, v[{Bq}:{Bq+3}], ' + ('0' if (first and e8 % 2 == 0) else f'v[{d}:{d+15}]'))
        else:
            for tt in range(2):
                dd = d + 8*tt + 4*(e8 % 2)
                e(f'{MF} v[{dd}:{dd+3}], {wreg(i)}, v[{Bbase+4*tt}:{Bbase+4*tt+3}], ' + ('0' if first else f'v[{dd}:{dd+3}]'))
                if tt == 0 and mid: mid()
    def waits(*ws):
        ws = [w for w in ws if w]
        if ws: e('s_waitcnt ' + ' '.join(ws))
    def stage(rc, rg):
        ring = [32 + 4*j for j in range(8)] + ([GACC + 4*j for j in range(4)] if rg is None else [])
        dfc = len(ring) - 2
        pq = []
        if rc == 0:
            for _ in range(npub[2]): pq += pub_ops(80)
        if rc == 1:
            while pubn[0] < 32: pq += pub_ops(V_DW)
        def crd(n):
            c, ip, tt = 2*rc + n // 32, (n // 2) % 16, n % 2; r = ring[n % len(ring)]
            lq.issue(f'ds_read_b128 v[{r}:{r+3}], v{V_CB} offset:{(ip+16*tt)*PITCH + 32*c}', f'c{rc}_{n}')
        def abuild(k, lo, hi):
            c, ip = 2*rc + k // 16, k % 16
            src = V_DW + 8*c + ip // 2
            for r in range(lo, hi): e(f'v_perm_b32 v{ABUF[k%4]+r}, v{src}, v{src}, v{SEL+4*(ip%2)+r}')
        def brd(j, h):
            r = GB + 8*(j % 2) + 4*h
            lq.issue(f'ds_read_b128 v[{r}:{r+3}], v{V_UCR} offset:{8192*(rg%2) + 2048*j + HS*h}', f'b{rg}_{j}')
        if rg is not None: brd(0, 0); brd(0, 1)
        if rc is not None:
            for n in range(dfc): crd(n)
            vt.wait(f'dw{rc}')
            abuild(0, 0, 4); abuild(1, 0, 4)
            waits(lq.need(f'c{rc}_3'))
        def gwait(k):
            if rg is not None and k < 32: waits(vt.need(f'w{32*rg + k}'), lq.need(f'b{rg}_{k//8}'))
        if rc is None: gwait(0)
        for k in range(32):
            if rc is not None:
                for tt in range(2):
                    n = 2*k + tt
                    d = CACC + 8*(k // 16) + 4*tt; r = ring[n % len(ring)]; A = ABUF[k % 4]
                    cc = '0' if k % 16 == 0 else f'v[{d}:{d+3}]'
                    e(f'{MF} v[{d}:{d+3}], v[{A}:{A+3}], v[{r}:{r+3}], {cc}')
                    if tt == 1:
                        gwait(k)
                        if rg is None and k % 2 == 1 and k < 31: waits(lq.need(f'c{rc}_{n+4}'))
                    if n + dfc < 64: crd(n + dfc)
                    if rg is None:
                        if tt == 0:
                            if not events(k - 32): wl()
                        else:
                            while pq and pq[0].__name__ in ('st',): pq.pop(0)()
                    if k + 2 < 32:
                        if rg is None: abuild(k+2, 2*tt, 2*tt+2)
                        else: abuild(k+2, tt, tt+1)
                    if rg is None:
                        for _ in range(3):
                            if pq and pq[0].__name__ not in ('st',): pq.pop(0)()
            if rg is not None:
                j, e8 = k // 8, k % 8; i = 32*rg + k
                gm(i, GB + 8*(j % 2), rg == 0 and j == 0, (lambda: abuild(k+2, 2, 4)) if (rc is not None and k + 2 < 32) else None)
                if rc is None: gwait(k+1)
                elif k % 2 == 1 and k < 31: waits(lq.need(f'c{rc}_{2*k+5}'))
                if e8 in (1, 2) and j < 3: brd(j+1, e8-1)
                free.append(wmap[i])
                if rc is not None:
                    ev = events(32*rg + k)
                    if pq and pq[0].__name__ == 'st': pq.pop(0)()
                    else: wl()
                    if not ev and not (k % pp == 0 and pload()) and k % 2 == 0: wl()
                    for _ in range(5):
                        if pq and pq[0].__name__ != 'st': pq.pop(0)()
                    if k + 2 < 32 and not t16: abuild(k+2, 2, 4)
                elif k % 2 == 1:
                    if not pload(): wl()
        for o in pq: o()
        if rc is not None:
            vt.wait('u')
            e('s_nop 7')
            for tt in range(2):
                ur = V_U + 8*rc + 4*tt; tb = [8, 24][tt]
                for q in range(4):
                    e(f'v_lshlrev_b32 v{tb+2*q}, 16, v{ur+q}\nv_and_b32 v{tb+2*q+1}, s43, v{ur+q}')
                for j in range(0, 8, 2):
                    x = CACC + 8*(j//4) + 4*tt + j%4
                    e(f'v_pk_mul_f32 v[{tb+j}:{tb+j+1}], v[{tb+j}:{tb+j+1}], v[{x}:{x+1}]')
                for q in range(4): e(f'v_cvt_pk_bf16_f32 v{ur+q}, v{tb+2*q}, v{tb+2*q+1}')
                e(f'ds_write_b128 v{V_GW}, v[{ur}:{ur+3}] offset:{8192*(rc%2) + 1024*tt}')
                wl()
            e('s_waitcnt lgkmcnt(0)\ns_barrier'); lq.drained()
            prnd[0] = rc + 1
    stage(0, None)
    a.mark('c0')
    stage(1, 0)
    assert pubn[0] == 32
    e(f's_cmp_lt_u32 s48, 125\ns_cbranch_scc1 {name}_cont')
    e('s_waitcnt vmcnt(0)')
    e(f'buffer_store_dword v{V_ONE}, off, {srd(R_FL)}, s36{FSC}\nbuffer_store_dword v{V_ONE}, off, {srd(R_FL)}, s36 offset:16{FSC}')
    a.endpgm(kidx)
    a.label(f'{name}_cont')
    a.mark('c1')
    stage(2, 1)
    a.mark('c2')
    assert pok[0] >= 12
    e(f'v_and_b32 v0, 0xf0, v{V_L16}')
    LMr = [pslots[15], pslots[16], pslots[17], 32]
    for k in range(3): vt.issue(f'buffer_load_dwordx4 v[{LMr[k]}:{LMr[k]+3}], v0, {srd(R_LP)}, s{26+k} offen sc1', 'L')
    stage(3, 2)
    a.mark('c3'); print('c3 wn', wn[0], 'pn', pn[0], 'free', len(free)) if dbgp else None
    assert pok[0] == 24
    e(f'v_add_u32 v{V_GW}, s59, v{V_L16}')
    e(f'v_add_u32 v0, {LL_L}, v0')
    lq.issue(f'ds_read_b128 v[32:35], v0', 'ol')
    OWN = [48 + 4*i for i in range(8)]
    for i in range(8): lq.issue(f'ds_read_b128 v[{OWN[i]}:{OWN[i]+3}], v{V_GW} offset:{OCD + 8192*(i//2) + 1024*(i%2)}', 'own')
    V_LS = 8
    def wts():
        o = [('f', lambda: waits(vt.need('L'), lq.need('own')))]
        v = lambda t: o.extend(('v', x) for x in t.split('\n'))
        for qt in range(2):
            L = [LMr[s] + qt for s in range(4)]; l = [LMr[s] + 2 + qt for s in range(4)]; t = 16 + qt
            v(f'v_min3_f32 v{t}, v{L[0]}, v{L[1]}, v{L[2]}\nv_min_f32 v{t}, v{t}, v{L[3]}')
            for x in L: v(f'v_sub_f32 v{x}, v{t}, v{x}')
            for x in L: v(f'v_exp_f32 v{x}, v{x}')
            v(f'v_mul_f32 v{t}, v{L[0]}, v{l[0]}')
            for k in range(1, 4): v(f'v_fmac_f32 v{t}, v{L[k]}, v{l[k]}')
            v(f'v_rcp_f32 v{t}, v{t}\ns_nop 0')
            for s_, x in enumerate(L): v(f'v_mul_f32 v{V_LS+2*s_+qt}, v{x}, v{t}')
        o.append(('f', lambda: plim.__setitem__(0, 24)))
        return o
    def comb(i):
        o = [('f', lambda: vt.wait(f'p{i}'))]
        qt = i % 2; tb = 16; ac = 24
        for s in range(4):
            src = OWN[i] if s == 3 else pslots[3*i + s]
            for k in range(4):
                o.append(('v', f'v_lshlrev_b32 v{tb+2*k}, 16, v{src+k}')); o.append(('v', f'v_and_b32 v{tb+2*k+1}, s43, v{src+k}'))
            if s < 3: o.append(('f', lambda src=src: free.append(f'v[{src}:{src+3}]')))
            for j in range(8):
                o.append(('v', f'v_mul_f32 v{ac+j}, v{tb+j}, v{V_LS+qt}' if s == 0 else f'v_fmac_f32 v{ac+j}, v{tb+j}, v{V_LS+2*s+qt}'))
        r = OWN[i]
        for k in range(4): o.append(('v', f'v_cvt_pk_bf16_f32 v{r+k}, v{ac+2*k}, v{ac+2*k+1}'))
        o.append(('d', f'ds_write_b128 v{V_GW}, v[{r}:{r+3}] offset:{OCD + 8192*(i//2) + 1024*(i%2)}'))
        return o
    V_X = 32
    xo = lambda k: f's{50 + k%2} offen offset:{64*(k//2)}' if t16 else f's50 offen offset:{32*k}'
    xq = [f'ds_read_b128 v[{V_X+4*k}:{V_X+4*k+3}], v6 offset:{16*PITCH*(k%2) + 64*(k//2)}' for k in range(8)]
    for st5 in range(4):
        i0 = 96 + 32*st5
        fl = (wts() if st5 == 0 else []) + (comb(2*st5) + comb(2*st5+1) if st5 < 4 else [])
        nv = sum(1 for x in fl if x[0] == 'v'); per = -(-nv // 28)
        def brd(j, h):
            off = 8192 + 2048*j if st5 == 0 else OCD + 2048*(4*(st5-1) + j)
            r = GB + 8*(j % 2) + 4*h
            lq.issue(f'ds_read_b128 v[{r}:{r+3}], v{V_UCR if st5 == 0 else V_L16} offset:{off + HS*h}', f'B{st5}_{j}')
        brd(0, 0); brd(0, 1)
        waits(vt.need(f'w{i0}'), lq.need(f'B{st5}_0'))
        for k in range(32):
            i = i0 + k; j, e8 = k // 8, k % 8
            gm(i, GB + 8*(j % 2), False)
            if k < 31: waits(vt.need(f'w{i+1}'), lq.need(f'B{st5}_{(k+1)//8}'))
            if e8 in (1, 2) and j < 3: brd(j+1, e8-1)
            if st5 == 3 and e8 in (4, 6): lq.issue(xq.pop(0), 'x')
            while fl and fl[0][0] == 'd': lq.issue(fl.pop(0)[1], 'cw')
            free.append(wmap[i])
            if k % wp5 != wp5 - 1:
                if not (k % 2 == 0 and pload()) and not wl(): pload()
            c = 0
            while fl and fl[0][0] != 'd' and c < per:
                kd, o = fl.pop(0)
                if kd == 'f': o()
                else: e(o); c += 1
        for kd, o in fl:
            if kd == 'f': o()
            elif kd == 'd': lq.issue(o, 'cw')
            else: e(o)
        if st5 < 4: e('s_waitcnt lgkmcnt(0)\ns_barrier'); lq.drained()
        a.mark(f'h{st5}'); print('st5', st5, 'wn', wn[0], 'pn', pn[0], 'free', len(free)) if dbgp else None
    assert not xq and pn[0] == 24
    def fin(k, pk):
        xr = V_X + 4*k; tb = 16 + 8*(k % 2); o = []
        for q in range(4): o += [f'v_lshlrev_b32 v{tb+2*q}, 16, v{xr+q}', f'v_and_b32 v{tb+2*q+1}, s43, v{xr+q}']
        if pk: o += [f'v_pk_add_f32 v[{tb+j}:{tb+j+1}], v[{tb+j}:{tb+j+1}], v[{GACC+8*k+j}:{GACC+8*k+j+1}]' for j in range(0, 8, 2)]
        else: o += [f'v_add_f32 v{tb+j}, v{tb+j}, v{GACC+8*k+j}' for j in range(8)]
        o += [f'v_cvt_pk_bf16_f32 v{xr+q}, v{tb+2*q}, v{tb+2*q+1}' for q in range(4)]
        o.append(f'buffer_store_dwordx4 v[{xr}:{xr+3}], v{V_XO}, {srd(R_OUT)}, {xo(k)}{osc}')
        return o
    for j in range(4):
        for h in range(2): lq.issue(f'ds_read_b128 v[{64+8*j+4*h}:{67+8*j+4*h}], v{V_L16} offset:{OCD + 2048*(12+j) + HS*h}', f'F{j}')
    while wl(): pass
    assert wn[0] == 256
    fl = []
    def drain(nmax):
        c = 0
        while fl and c < nmax and not fl[0].startswith('buffer'): e(fl.pop(0)); c += 1
    for k in range(32):
        i = 224 + k; j = (k % 8) // 2
        waits(vt.need(f'w{i}'), lq.need(f'F{j}'))
        gm(i, 64 + 8*j, False, lambda: drain(3))
        if fl and fl[0].startswith('buffer'): vt.issue(fl.pop(0), 'o')
        drain(3 if t16 else 6)
        if k % 8 == 0 and k: fl += fin(2*(k//8) - 2, False) + fin(2*(k//8) - 1, False)
    a.mark('h4')
    for o in fl: e(o)
    e('s_nop 7')
    for k in (6, 7):
        for o in fin(k, True): e(o)
    if merge:
        e(f's_or_b32 s38, s2, s24\ns_cmp_eq_u32 s38, 0\ns_cselect_b32 s38, 0, 0x10000\ns_add_u32 s38, s38, {EP_REL}')
        e(f'buffer_store_dword v{V_ONE}, off, {srd(R_FL)}, s38')
    a.mark('fin')
    a.endpgm(kidx)
    for sp in slow: sp()
    a.label(f'{name}_end')
    e('s_endpgm')
    a.end(name, 512, 102, 256)
    a.launch(name, 256, 256, 4*SLOT + 16384)
```

```python
import sys
sys.path.insert(0,'dev')
from asmlib import Asm
from k0 import k0_kernel
from fused import fused_kernel
HDR = open('standalone__conformer_family_branchformer__speech.s.ref').read().split('; Override launch')[0].rstrip()
def build(diag, marks=(), k0=dict(snt=' sc0 sc1',xnt=' sc0 sc1 nt',wnt=' sc1'), **kw):
    import fused
    fused.FSC = kw.pop('FSC', ' sc1')
    fused.XSC = kw.pop('XSC', ''); fused.WSC = kw.pop('WSC', ''); fused.SSC = kw.pop('SSC', ' sc1')
    a = Asm(); a.diag = diag; a.pad = kw.pop('pad', 6); a.dbg = kw.pop('dbg', False); a.amp = kw.pop('amp', None); a.marks = list(marks); a.dual = len(marks) <= 4 and diag
    kw.setdefault('merge', True)
    if kw.get('merge'):
        kw.setdefault('order', (2,0,1))
        fused_kernel(a, 'main_kernel', 0, **kw)
    else:
        k0_kernel(a, 'prep_kernel', 0, **k0); fused_kernel(a, 'main_kernel', 1, **kw)
    t = a.text(HDR)
    if kw.get('merge'):
        import re
        t = t.replace('; @launch kernel=main_kernel grid', '; @launch grid')
        t = re.sub(r'\bmain_kernel\b(?!_)', 'standalone__conformer_family_branchformer__speech_kernel', t).replace('main_kernel_', 'L_')
    doc = '''; One persistent launch, 256 workgroups (one per CU), 4 waves of 512 registers each.
'''
    t = t.replace('.text\n', doc + '.text\n', 1)
    return t
M0=['x0','u3','attn0','attn1','stage','c3','h0','h4']
MA=['x0','u1','u3','u5','u7','u9','u11','attn0']
MB=['attn1','stage','c0','c1','c2','c3','h0','h4']
MC=['attn1','c3','h0','h1','h2','h3','h4']
ML=['attn0','loop0','sp2','b4','attn1']
MP=['p_x','p_ln','p_d','p_e','p_f','x0','u1','u3']
if __name__ == '__main__':
    open('full_diag.s','w').write(build(True, M0))
    open('full_diagA.s','w').write(build(True, MA))
    open('full_diagB.s','w').write(build(True, MB))
    open('standalone__conformer_family_branchformer__speech.s','w').write(build(False))
    for spec in sys.argv[1:]:
        nm, marks, kw = spec.split('|')
        if marks: open(f'x_diag_{nm}.s','w').write(build(True, eval(marks), **eval(f'dict({kw})')))
        else: open(f'y_{nm}.s','w').write(build(False, **eval(f'dict({kw})')))
```

```python
import re
class Asm:
    def __init__(self):
        self.lines = []
        self.kernels = []
        self.launches = []
        self.uid = 0
    def e(self, s=''):
        for l in s.split('\n'):
            m = re.search(r'offset:(\d+)', l)
            if m:
                lim = 4095 if l.strip().startswith('buffer') else 65535
                assert int(m.group(1)) <= lim, l
            if l.strip().startswith('buffer_store_dword v7, off'):
                self.lines += ['s_mov_b64 exec, 1', l.strip(), 's_mov_b64 exec, -1']
                continue
            self.lines.append(l.strip())
    def label(self, name):
        self.lines.append(name + ':')
    def newlabel(self, p='L'):
        self.uid += 1
        return f'{p}_{self.uid}'
    def begin(self, name):
        self.lines += ['.text', f'.globl {name}', '.p2align 8', f'.type {name},@function', f'{name}:']
    def end(self, name, vgpr, sgpr=102, accum=None):
        if accum is None: accum = min(256, (vgpr + 3) // 4 * 4)
        self.kernels.append((name, vgpr, sgpr, accum))
    def launch(self, name, grid, block, lds):
        self.launches.append(f'; @launch kernel={name} grid=({grid},1,1) block=({block},1,1) lds={lds}')
    def text(self, header=''):
        out = [header] if header else []
        out += self.launches
        out.append('.amdgcn_target "amdgcn-amd-amdhsa--gfx950"')
        from align import align
        body, self.mis = align(self.lines, self.pad) if self.do_align else (self.lines, -1)
        out += body
        out.append('.section .rodata,"a"')
        for name, v, s, a in self.kernels:
            out += ['.p2align 6', f'.amdhsa_kernel {name}',
                    f'  .amdhsa_next_free_vgpr {v}', f'  .amdhsa_next_free_sgpr {s}', f'  .amdhsa_accum_offset {a}',
                    '  .amdhsa_group_segment_fixed_size 0', '  .amdhsa_kernarg_size 96', '  .amdhsa_user_sgpr_count 2',
                    '  .amdhsa_user_sgpr_kernarg_segment_ptr 1', '  .amdhsa_system_sgpr_workgroup_id_x 1',
                    '.end_amdhsa_kernel']
        return '\n'.join(out) + '\n'
    def srd(self, d, base, nbytes, off=0):
        if off:
            self.e(f's_add_u32 s{d}, s{base}, {off & 0xffffffff}')
            self.e(f's_addc_u32 s{d+1}, s{base+1}, {off >> 32}')
        else:
            self.e(f's_mov_b32 s{d}, s{base}')
            self.e(f's_mov_b32 s{d+1}, s{base+1}')
        self.e(f's_mov_b32 s{d+2}, {nbytes}')
        self.e(f's_mov_b32 s{d+3}, 0x00020000')

    diag = False
    def stamp_begin(self):
        if self.diag:
            self.e('s_memrealtime s[96:97]\ns_memtime s[98:99]\ns_mov_b32 s95, s2\nv_lshrrev_b32 v1, 6, v0\ns_nop 1\nv_readfirstlane_b32 s94, v1\ns_waitcnt lgkmcnt(0)')
            if self.amp in ('skew+', 'skew-'):
                e = self.e
                e('s_load_dwordx2 s[8:9], s[0:1], 80\ns_waitcnt lgkmcnt(0)\ns_mov_b32 s10, 256\ns_mov_b32 s11, 0x20000')
                e('s_and_b32 s12, s96, 0xffffff\ns_sub_u32 s13, 0x1000000, s12\nv_mov_b32 v2, s12\nv_mov_b32 v3, s13\ns_mov_b64 exec, 1')
                e('buffer_atomic_umax v2, off, s[8:11], 0\nbuffer_atomic_umax v3, off, s[8:11], 0 offset:128\ns_mov_b64 exec, -1')
    def stamp_mid(self, i):
        if self.diag:
            if self.dual: self.e(f's_memtime s[{76+4*i}:{77+4*i}]\ns_memrealtime s[{78+4*i}:{79+4*i}]')
            else: self.e(f's_memtime s[{76+2*i}:{77+2*i}]')
    def touch_code(self, lo, hi, sreg, vtmp, vdst, wave_sreg, n, lane='v0', issue=None):
        e = self.e
        here = self.newlabel('pc')
        e(f's_getpc_b64 s[{sreg}:{sreg+1}]')
        self.label(here)
        e(f's_add_u32 s{sreg}, s{sreg}, {lo}-{here}\ns_addc_u32 s{sreg+1}, s{sreg+1}, ({lo}-{here})>>32')
        e(f's_mul_i32 s{sreg+2}, s{wave_sreg}, {n*8192}')
        e(f'v_lshlrev_b32 v{vtmp}, 7, {lane}\nv_add_u32 v{vtmp}, s{sreg+2}, v{vtmp}')
        for k in range(n):
            e(f'v_min_u32 v{vtmp+1}, {hi}-{lo}-4, v{vtmp}')
            op = f'global_load_dword v{vdst}, v{vtmp+1}, s[{sreg}:{sreg+1}]'
            if issue: issue(op)
            else: e(op)
            if k + 1 < n: e(f'v_add_u32 v{vtmp}, 8192, v{vtmp}')
    marks = []
    dual = False
    dbg = False
    amp = None
    do_align = True
    pad = False
    def mark(self, nm):
        if nm in self.marks: self.stamp_mid(self.marks.index(nm))
    def endpgm(self, kidx):
        if self.diag:
            from layout import STAMP_OFF
            e = self.e
            e('s_waitcnt vmcnt(0) lgkmcnt(0)\ns_memrealtime s[92:93]\ns_memtime s[100:101]\ns_load_dwordx2 s[6:7], s[0:1], 88\ns_waitcnt lgkmcnt(0)')
            if self.amp in ('skew+', 'skew-'):
                lb = self.newlabel('amp')
                e('s_load_dwordx2 s[8:9], s[0:1], 80\ns_waitcnt lgkmcnt(0)\ns_mov_b32 s10, 256\ns_mov_b32 s11, 0x20000')
                e('buffer_load_dword v2, off, s[8:11], 0 sc0 sc1\nbuffer_load_dword v3, off, s[8:11], 0 offset:128 sc0 sc1\ns_waitcnt vmcnt(0)\nv_add_u32 v2, v2, v3\ns_nop 1\nv_readfirstlane_b32 s10, v2')
                e('s_sub_u32 s10, s10, 0x1000000\ns_mul_i32 s10, s10, 4\ns_min_u32 s10, s10, 20000')
                self.label(lb)
                e(f's_memrealtime s[12:13]\ns_waitcnt lgkmcnt(0)\ns_sub_u32 s12, s12, s92\ns_cmp_lt_u32 s12, s10\ns_cbranch_scc1 {lb}')
            elif self.amp is not None:
                a_, b_ = [{'s': 96, 'e': 92}.get(x, None) if isinstance(x, str) else 78 + 4*x for x in self.amp]
                lb = self.newlabel('amp')
                e(f's_sub_u32 s10, s{b_}, s{a_}\ns_min_u32 s10, s10, 20000')
                self.label(lb)
                e(f's_memrealtime s[12:13]\ns_waitcnt lgkmcnt(0)\ns_sub_u32 s12, s12, s92\ns_cmp_lt_u32 s12, s10\ns_cbranch_scc1 {lb}')
            self.srd(8, 6, 1<<20, STAMP_OFF + kidx*(1<<20))
            e('s_mov_b64 exec, -1')
            e('v_mov_b32 v8, s96\nv_mov_b32 v9, s92\ns_sub_u32 s100, s100, s98\nv_mov_b32 v10, s100\nv_mov_b32 v11, 0')
            for i in range(8):
                e(f's_sub_u32 s{76+2*i}, s{76+2*i}, s{96 if (self.dual and i%2) else 98}\nv_mov_b32 v{12+i}, s{76+2*i}')
            if self.dbg:
                lb = self.newlabel('dbg')
                e(f's_cmp_lg_u32 s95, 8\ns_cbranch_scc1 {lb}\ns_cmp_lg_u32 s94, 0\ns_cbranch_scc1 {lb}')
                e(f's_load_dwordx2 s[12:13], s[0:1], 80\ns_waitcnt lgkmcnt(0)\ns_mov_b32 s14, 256\ns_mov_b32 s15, 0x20000')
                if kidx:
                    self.srd(16, 6, 1<<20, STAMP_OFF)
                    e('s_mov_b32 s20, 4096\nbuffer_load_dwordx4 v[20:23], off, s[16:19], s20\ns_waitcnt vmcnt(0)\nbuffer_store_dwordx4 v[20:23], off, s[12:15], 0')
                    e('buffer_store_dwordx4 v[8:11], off, s[12:15], 0 offset:16\nbuffer_store_dwordx4 v[12:15], off, s[12:15], 0 offset:32\nbuffer_store_dwordx4 v[16:19], off, s[12:15], 0 offset:48')
                self.label(lb)
            e('v_mov_b32 v4, 0\ns_lshl_b32 s95, s95, 3\ns_add_u32 s95, s95, s94\ns_lshl_b32 s95, s95, 6')
            e('buffer_store_dwordx4 v[8:11], v4, s[8:11], s95 offen\nbuffer_store_dwordx4 v[12:15], v4, s[8:11], s95 offen offset:16\nbuffer_store_dwordx4 v[16:19], v4, s[8:11], s95 offen offset:32')
        self.e('s_endpgm')
```

```python
import sys
sys.path.insert(0,'dev')
from asmlib import Asm
from layout import *
import struct
def f2u(x): return struct.unpack('<I', struct.pack('<f', x))[0]
MF='v_mfma_f32_16x16x32_bf16'
PITCH = 1040; SLOT = 32*PITCH
C0 = -2*0.7978845608028654*1.4426950408889634
C1 = C0*0.044715
THRESH = 0x41f00000
SPIN_MAX = 1 << 20

class VQ:
    def __init__(s, e, lim=63): s.e = e; s.q = []; s.done = 0; s.lim = lim
    def issue(s, op, tag):
        if len(s.q) - s.done >= s.lim:
            s.e(f's_waitcnt vmcnt({s.lim-1})'); s.done = len(s.q) - (s.lim-1)
        s.e(op); s.q.append(tag)
    def need(s, tag):
        i = max(k for k, t in enumerate(s.q) if t == tag)
        if i < s.done: return None
        s.done = i + 1
        return f'vmcnt({len(s.q) - 1 - i})'
    def wait(s, tag, extra=''):
        w = s.need(tag)
        if w or extra: s.e(('s_waitcnt ' + (w or '') + ' ' + extra).strip())
    def drain(s):
        s.e('s_waitcnt vmcnt(0)'); s.done = len(s.q)

class LQ:
    def __init__(s, e): s.e = e; s.q = []; s.done = 0
    def issue(s, op, tag):
        if len(s.q) - s.done >= 15:
            s.e('s_waitcnt lgkmcnt(12)'); s.done = len(s.q) - 12
        s.e(op); s.q.append(tag)
    def need(s, tag):
        i = max(k for k, t in enumerate(s.q) if t == tag)
        if i < s.done: return None
        s.done = i + 1
        return f'lgkmcnt({len(s.q) - 1 - i})'
    def drained(s): s.done = len(s.q)

R_XA=8; R_WS=12; R_AUX=16; R_OUT=20; R_Q=52; R_U=56; R_G=60; R_GL=64; R_OP=68; R_FL=72
def srd(r): return f's[{r}:{r+3}]'
V_L16=1
FSC=' sc0 sc1'
XSC=''
WSC=' sc1'
SSC=' sc0 sc1'


QSCALE = 512**-0.5 * 1.4426950408889634
def prep_phase(a, name, poll, kind0, n_early, fx_st, pearly, xmap, tmode, tlb, xlate):
    e = a.e; BREG = 64*PITCH; V_TAG = 7
    if tmode == 3:
        e('s_lshl_b32 s27, s32, 2\ns_add_u32 s27, s27, s24')
        a.touch_code(name, f'{name}_R0', 60, 10, 120, 27, 1)
    e(f'v_and_b32 v2, 15, v0\nv_lshrrev_b32 v3, 4, v0')
    e('s_lshl_b32 s64, s34, 2\ns_add_u32 s64, s64, s32\ns_cmp_lt_u32 s64, 125\ns_cselect_b32 s65, 0, 0x70000000\ns_mul_i32 s66, s33, 125\ns_add_u32 s64, s64, s66\ns_lshl_b32 s64, s64, 2\ns_add_u32 s64, s64, s24\ns_lshl_b32 s64, s64, 13\ns_add_u32 s64, s64, s65\ns_add_u32 s65, s64, 4096')
    e(f's_mov_b32 s{R_AUX+2}, {XA_SZ}\ns_mov_b32 s{R_AUX+3}, 0x20000')
    e('s_waitcnt lgkmcnt(0)')
    a.mark('karg')
    if tlb:
        e(f'v_mov_b32 v122, s{R_AUX}\nv_mov_b32 v123, s{R_AUX+1}')
        for i in range(8): e(f'v_writelane_b32 v122, s{36+2*i}, {i+1}\nv_writelane_b32 v123, s{37+2*i}, {i+1}')
        for i, off in enumerate((FLAG_OFF + 0x10000, WA_OFF + 0x1f0000, XA_OFF + 0x7f0000, W1_OFF + 0x1f0000)):
            e(f's_add_u32 s6, s4, {off}\ns_addc_u32 s7, s5, 0\nv_writelane_b32 v122, s6, {9+i}\nv_writelane_b32 v123, s7, {9+i}')
        e('global_load_dword v121, v[122:123], off')
    xl = [f'buffer_load_dwordx4 v[{16+4*r}:{19+4*r}], v1, {srd(R_AUX)}, s{64+r//4} offen offset:{1024*(r%4)}{XSC}' for r in range(8)]
    if not xlate:
        for o in xl: e(o)
    e(f's_add_u32 s6, s4, {FLAG_OFF + EP_REL}\ns_addc_u32 s7, s5, 0\ns_load_dword s71, s[6:7], 0')
    e("""v_lshrrev_b32 v4, 3, v0
    v_and_b32 v5, 7, v0
    v_and_b32 v6, 2, v4
    v_lshlrev_b32 v6, 1, v6
    v_xor_b32 v5, v5, v6
    v_lshlrev_b32 v5, 4, v5""")
    e('s_and_b32 s66, s24, 1\ns_lshr_b32 s67, s24, 1')
    if xmap:
        e('s_lshr_b32 s25, s2, 5\ns_and_b32 s26, s2, 1\ns_lshl_b32 s26, s26, 2\ns_add_u32 s26, s26, s32\ns_bfe_u32 s68, s2, 0x20001\ns_lshl_b32 s68, s68, 6')
    else:
        e('s_and_b32 s25, s2, 3\ns_bfe_u32 s26, s2, 0x10003\ns_lshl_b32 s26, s26, 2\ns_add_u32 s25, s25, s26')
        e('s_bfe_u32 s26, s2, 0x10002\ns_bfe_u32 s27, s2, 0x20004\ns_lshl_b32 s27, s27, 1\ns_add_u32 s26, s26, s27\ns_and_b32 s68, s2, 0xc0')
    e('s_lshl_b32 s27, s26, 3\ns_add_u32 s68, s68, s27\ns_add_u32 s68, s68, s25\ns_mov_b32 s31, s68')
    e(f's_mul_i32 s29, s24, {8*PITCH}')
    nt_ = 0
    if tmode == 1:
        e('s_lshl_b32 s27, s32, 2\ns_add_u32 s27, s27, s24')
        a.touch_code(name, f'{name}_R0', 60, 10, 120, 27, 1); nt_ = 0 if xlate else 1
    def rows_dma(R, b, hi, vis, ldsadd):
        ops = []
        for vi in range(2):
            for i in range(8):
                t = f's_add_u32 m0, s29, {ldsadd + vi*32*PITCH + i*PITCH - (i%4)*1024}\n'
                t += f's_add_u32 s28, s{b}, {hi}' if i == 0 else (f's_add_u32 s{b}, s{b}, {vis}' if (i == 4 and vi == 0) else 's_nop 0')
                ops.append(t + f'\nbuffer_load_dwordx4 v1, {srd(R)}, s{b if i < 4 else 28} offen offset:{(i%4)*1024}{WSC} lds')
        return ops
    X = lambda r, j: 48 + 8*r + j
    S = [112 + r for r in range(8)]
    P2 = lambda x: f'v[{x}:{x+1}]'
    sp = lambda r: (f's[{40+(r&~1)}:{41+(r&~1)}]', r & 1)
    p0 = f'buffer_load_dword v14, v15, {srd(R_FL)}, 0 offen{FSC}'
    pX = f'buffer_load_dword v4, v5, {srd(R_FL)}, 0 offen{FSC}'
    flagX = f'buffer_store_dword v{V_TAG}, off, {srd(R_FL)}, s51{FSC}'
    def ln(ops, first_store=None, hook=None, n_early=n_early):
        a.mark('path')
        if xlate:
            for o in xl: e(o)
        for o in ops[:n_early]: e(o)
        rest = ops[n_early:]
        a.mark('iss')
        a.srd(R_XA, 4, XA_SZ, XA_OFF); a.srd(R_WS, 4, WS_SZ); a.srd(R_FL, 4, FLAG_SZ, FLAG_OFF)
        e(f's_lshl_b32 s48, s32, 2\ns_add_u32 s48, s48, s24\ns_lshr_b32 s47, s48, 1\ns_lshl_b32 s48, s48, 15\ns_add_u32 s48, s48, {WA_OFF + kind0*524288}')
        e(f's_lshl_b32 s50, s47, 7\ns_add_u32 s50, s50, {FP_REL}\ns_lshl_b32 s47, s47, 7\ns_add_u32 s47, s47, {FU_REL}\ns_lshl_b32 s39, s30, 6\ns_add_u32 s39, s39, {FX_REL}')
        e('v_mov_b32 v15, s47\nv_add_u32 v14, 1024, v15\nv_cmp_gt_u32 vcc, 32, v0\nv_lshlrev_b32 v4, 2, v2\nv_add_u32 v5, s39, v4\nv_cndmask_b32 v15, v15, v14, vcc\nv_add_u32 v15, v4, v15')
        e(f's_lshl_b32 s51, s32, 4\ns_add_u32 s51, s51, s39\ns_lshl_b32 s39, s24, 2\ns_add_u32 s51, s51, s39')
        e(f's_lshl_b32 s68, s68, 4\ns_add_u32 s68, s68, s39\ns_add_u32 s68, s68, {FP_REL}')
        e(f's_mov_b32 s36, 0xffff0000\ns_mov_b32 s37, {f2u(1/512)}\ns_mov_b32 s38, 0x3f803f80\nv_mov_b32 v10, {f2u(1e-5)}')
        e(f's_waitcnt lgkmcnt(0)\ns_mul_i32 s71, s71, 0x9E3779B1\ns_add_u32 s71, s71, 0x7F4A7C15\nv_mov_b32 v{V_TAG}, s71')
        a.mark('tag')
        if hook: hook()
        else: e(f's_waitcnt vmcnt({min(n_early, len(ops)) + nt_})')
        a.mark('p_x')
        L = []
        v = lambda t: L.extend(t.split('\n'))
        def red4():
            v('s_nop 1')
            for r in (0, 2, 4, 6): v(f'v_permlane32_swap_b32 v{S[r]}, v{S[r+1]}')
            for r in (0, 2, 4, 6): v(f'v_add_f32 v{S[r]}, v{S[r]}, v{S[r+1]}')
            v('s_nop 0')
            for r in (0, 4): v(f'v_permlane16_swap_b32 v{S[r]}, v{S[r+2]}')
            for r in (0, 4): v(f'v_add_f32 v{S[r]}, v{S[r]}, v{S[r+2]}')
            for sh in (8, 4, 2, 1):
                v('s_nop 0')
                for r in (0, 4): v(f'v_add_f32_dpp v{S[r]}, v{S[r]}, v{S[r]} row_ror:{sh} row_mask:0xf bank_mask:0xf')
        def bcast():
            v('s_nop 0')
            for r in range(8): v(f'v_readlane_b32 s{40+r}, v{S[4*(r//4)]}, {16*[0,2,1,3][r%4]}')
        for k in range(4):
            for r in range(8): v(f'v_dot2_f32_bf16 v{S[r]}, v{16+4*r+k}, s38, ' + ('0' if k == 0 else f'v{S[r]}'))
        for r in range(4):
            for k in range(4): v(f'v_lshlrev_b32 v{X(r,2*k)}, 16, v{16+4*r+k}\nv_and_b32 v{X(r,2*k+1)}, s36, v{16+4*r+k}')
        red4()
        for r in (0, 4): v(f'v_mul_f32 v{S[r]}, s37, v{S[r]}')
        bcast()
        for r in range(4, 8):
            for k in range(4): v(f'v_lshlrev_b32 v{X(r,2*k)}, 16, v{16+4*r+k}\nv_and_b32 v{X(r,2*k+1)}, s36, v{16+4*r+k}')
        for r in range(8):
            sr, o = sp(r)
            for j in range(0, 8, 2): v(f'v_pk_add_f32 {P2(X(r,j))}, {P2(X(r,j))}, {sr} op_sel:[0,{o}] op_sel_hi:[1,{o}] neg_lo:[0,1] neg_hi:[0,1]')
        for j in range(0, 8, 2):
            for r in range(8):
                t = 16 + 2*r
                v(f'v_pk_mul_f32 {P2(t)}, {P2(X(r,j))}, {P2(X(r,j))}' if j == 0 else f'v_pk_fma_f32 {P2(t)}, {P2(X(r,j))}, {P2(X(r,j))}, {P2(t)}')
        for r in range(8): v(f'v_add_f32 v{S[r]}, v{16+2*r}, v{17+2*r}')
        red4()
        for r in (0, 4): v(f'v_fma_f32 v{S[r]}, v{S[r]}, s37, v10')
        for r in (0, 4): v(f'v_rsq_f32 v{S[r]}, v{S[r]}')
        bcast()
        v('s_nop 0')
        for r in range(8):
            sr, o = sp(r)
            for j in range(0, 8, 2): v(f'v_pk_mul_f32 {P2(X(r,j))}, {P2(X(r,j))}, {sr} op_sel:[0,{o}] op_sel_hi:[1,{o}]')
            for k in range(4): v(f'v_cvt_pk_bf16_f32 v{16+4*r+k}, v{X(r,2*k)}, v{X(r,2*k+1)}')
            v(f'buffer_store_dwordx4 v[{16+4*r}:{19+4*r}], v1, {srd(R_XA)}, s{64+r//4} offen offset:{1024*(r%4)}{SSC}')
        nin = len(rest) if pearly else 0
        for n, o in enumerate(L):
            if o.startswith('buffer_store') and first_store and first_store[0]: e(first_store.pop())
            e(o)
            if (n+1)*nin // 240 > n*nin // 240 and n < 240: e(rest.pop(0))
        a.mark('p_ln')
        nl = len(rest)
        for o in rest: e(o)
        return nl
    def w0(i):
        if i % 4 == 0: e(f's_add_u32 s49, s48, {(i//4)*4096}')
        e(f'buffer_load_dwordx4 a[{4*i}:{4*i+3}], v1, {srd(R_WS)}, s49 offen offset:{(i%4)*1024} sc1')
    def gemm(bread, nb, nl):
        e(f'v_mul_u32_u24 v6, {PITCH}, v2\nv_lshl_add_u32 v6, v3, 8, v6\ns_mul_i32 s27, s66, {32*PITCH}\nv_add_u32 v9, s27, v6')
        bread(None, None, None)
        if nl:
            e(p0)
            e(f's_waitcnt vmcnt({nl+1})\n' + flagX + '\ns_waitcnt vmcnt(1)\ns_barrier')
        else: e('s_waitcnt vmcnt(8)\ns_barrier\n' + p0)
        a.mark('p_d')
        def rd(st):
            r = 64 + 16*(st % 3)
            for jj in range(2): e(f'ds_read_b128 v[{r+4*jj}:{r+4*jj+3}], v9 offset:{jj*16*PITCH + 16*st}')
            for vi in range(2): bread(st, vi, r+8+4*vi)
        for st in range(2): rd(st)
        if nl:
            poll([p0], [14], None)
            a.mark('pu')
        wi = 0
        for st in range(16):
            e(f's_waitcnt lgkmcnt({(2+2*nb) if st < 15 else 0})')
            r = 64 + 16*(st % 3)
            for vi in range(2):
                for jj in range(2):
                    d = 48 + 8*vi + 4*jj
                    e(f'{MF} v[{d}:{d+3}], v[{r+4*jj}:{r+4*jj+3}], v[{r+8+4*vi}:{r+11+4*vi}], ' + ('0' if st == 0 else f'v[{d}:{d+3}]'))
                    if vi == 0 and jj == 0 and st + 2 < 16: rd(st+2)
                    if nl:
                        if vi == 1 and (jj == 0 or st < 4) and wi < 16: w0(wi); wi += 1
                        if vi == 1 and jj == 0 and st == 12: e(pX)
                    elif vi == 1 and st > fx_st and wi < 16: w0(wi); wi += 1
            if not nl and st == fx_st:
                e('s_waitcnt vmcnt(0)\n' + flagX); poll([p0], [14], None); a.mark('pu')
        if not nl:
            while wi < 16: w0(wi); wi += 1
            e(pX)
        e('s_barrier')
        return wi
    e(f's_cmp_ge_u32 s31, 64\ns_cbranch_scc1 {name}_notM')
    a.srd(52, 36, 524288); a.srd(56, 38, 524288)
    e('s_lshl_b32 s27, s66, 8\ns_lshl_b32 s28, s67, 2\ns_add_u32 s27, s27, s28\ns_lshl_b32 s27, s27, 10')
    e('s_lshl_b32 s69, s25, 14\ns_add_u32 s69, s69, s27\ns_lshl_b32 s70, s26, 14\ns_add_u32 s70, s70, s27')
    nl = ln(rows_dma(52, 69, 131072, 8192, 0) + rows_dma(56, 70, 131072, 8192, BREG))
    def mb(st, vi, r):
        if st is None: e(f's_mul_i32 s27, s67, {32*PITCH}\ns_add_u32 s27, s27, {BREG}\nv_add_u32 v8, s27, v6')
        else: e(f'ds_read_b128 v[{r}:{r+3}], v8 offset:{vi*16*PITCH + 16*st}')
    nw = gemm(mb, 1, nl)
    e(f's_lshl_b32 s28, s26, 1\ns_add_u32 s28, s28, s67\ns_lshl_b32 s28, s28, 15\ns_lshl_b32 s27, s25, 1\ns_add_u32 s27, s27, s66\ns_lshl_b32 s27, s27, 11\ns_add_u32 s28, s28, s27\ns_add_u32 s28, s28, {WA_OFF}\ns_add_u32 s29, s28, 1024')
    e(f's_mov_b32 s27, {f2u(QSCALE)}')
    for i in range(16): e(f'v_mul_f32 v{48+i}, s27, v{48+i}')
    e(f's_branch {name}_pst')
    a.label(f'{name}_notM')
    e(f's_cmp_ge_u32 s31, 192\ns_cbranch_scc1 {name}_notW')
    e('s_lshr_b32 s35, s31, 7')
    a.srd(56, 50, 1024*1024)
    e('s_cmp_eq_u32 s35, 0\ns_cselect_b32 s52, s42, s48\ns_cselect_b32 s53, s43, s49\ns_mov_b32 s54, 524288\ns_mov_b32 s55, 0x20000')
    e('s_lshl_b32 s69, s67, 2\ns_lshl_b32 s70, s66, 4\ns_add_u32 s69, s69, s70\ns_lshl_b32 s70, s24, 3')
    e('s_cmp_eq_u32 s35, 0\ns_cselect_b32 s69, s69, s70\ns_cselect_b32 s70, 8, 4\ns_lshl_b32 s27, s26, 6\ns_add_u32 s69, s69, s27\ns_lshl_b32 s69, s69, 10\ns_lshl_b32 s70, s70, 10')
    e('v_lshl_add_u32 v8, v4, 10, v5')
    e('s_lshl_b32 s60, s35, 19\ns_lshl_b32 s27, s25, 7\ns_add_u32 s60, s60, s27\ns_lshl_b32 s27, s24, 17\ns_add_u32 s60, s60, s27\ns_lshl_b32 s27, s24, 14')
    ln(rows_dma(52, 69, 's70', 32768, 0) + [f's_add_u32 m0, s27, {BREG + i*1024}\n' + ('s_nop 0' if i == 0 else 's_add_u32 s60, s60, 8192') + f'\nbuffer_load_dwordx4 v8, {srd(56)}, s60 offen{WSC} lds' for i in range(16)])
    def wb(st, vi, r):
        if st is None:
            e("""v_bfe_u32 v11, v0, 2, 2
            v_lshl_add_u32 v8, v3, 7, v11
            v_lshlrev_b32 v8, 7, v8
            v_and_b32 v12, 3, v0
            v_and_b32 v11, 2, v11
            v_lshlrev_b32 v11, 1, v11
            v_or_b32 v12, v12, v11""")
            e(f's_lshl_b32 s27, s67, 2\nv_xor_b32 v12, s27, v12\nv_lshl_add_u32 v8, v12, 4, v8\nv_add_u32 v8, {BREG}, v8')
            return
        for x in range(2): e(f'ds_read_b64_tr_b16 v[{r+2*x}:{r+2*x+1}], v8 offset:{(8*st+4*x)*128 + 8*vi}')
    gemm(wb, 2, nl)
    e('s_lshl_b32 s69, s25, 2\ns_lshl_b32 s27, s67, 1\ns_add_u32 s69, s69, s27\ns_lshl_b32 s70, s26, 1\ns_add_u32 s70, s70, s66')
    e(f's_lshl_b32 s28, s69, 14\ns_lshl_b32 s29, s70, 10\ns_add_u32 s28, s28, s29\ns_add_u32 s28, s28, {W1_OFF}')
    e(f's_lshr_b32 s29, s69, 3\ns_lshl_b32 s29, s29, 4\ns_add_u32 s29, s29, s70\ns_lshl_b32 s29, s29, 13\ns_and_b32 s27, s69, 7\ns_lshl_b32 s27, s27, 10\ns_add_u32 s29, s29, s27\ns_add_u32 s29, s29, {WF_OFF}')
    e('s_cmp_eq_u32 s35, 0\ns_cselect_b32 s28, s28, s29\ns_cselect_b32 s29, 16, 1\ns_lshl_b32 s29, s29, 10\ns_add_u32 s29, s29, s28')
    a.label(f'{name}_pst')
    for vi in range(2):
        for k in range(4): e(f'v_cvt_pk_bf16_f32 v{176+4*vi+k}, v{48+8*vi+2*k}, v{49+8*vi+2*k}')
    for vi in range(2): e(f'buffer_store_dwordx4 v[{176+4*vi}:{179+4*vi}], v1, {srd(R_WS)}, s{28+vi} offen sc1')
    e(f's_branch {name}_pd')
    a.label(f'{name}_notW')
    e('s_sub_u32 s25, s31, 192\ns_and_b32 s26, s25, 3\ns_lshl_b32 s69, s25, 3\ns_lshr_b32 s25, s25, 2')
    a.srd(52, 44, 1024*1024); a.srd(56, 46, 31*1024); a.srd(60, 40, 524288)
    e('v_lshl_add_u32 v8, v4, 11, v5')
    e('s_lshl_b32 s28, s24, 18\ns_lshl_b32 s27, s26, 16\ns_add_u32 s28, s28, s27\ns_lshl_b32 s27, s25, 7\ns_add_u32 s28, s28, s27\ns_lshl_b32 s27, s24, 12')
    ops = [f's_add_u32 m0, s27, {i*1024}\n' + ('s_nop 0' if i == 0 else 's_add_u32 s28, s28, 16384') + f'\nbuffer_load_dwordx4 v8, {srd(52)}, s28 offen{WSC} lds' for i in range(4)]
    e('s_lshl_b32 s35, s24, 1\ns_add_u32 s69, s69, s35\ns_lshr_b32 s35, s69, 4\ns_lshl_b32 s35, s35, 14\ns_and_b32 s29, s69, 15\ns_lshl_b32 s29, s29, 6\ns_add_u32 s35, s35, s29')
    e('v_lshlrev_b32 v9, 10, v2\nv_lshl_add_u32 v9, v3, 4, v9')
    ops += [f'buffer_load_dwordx4 v[{128+4*k}:{131+4*k}], v9, {srd(60)}, s35 offen offset:{64*k}' for k in range(2)]
    e('s_sub_u32 s70, s31, 248\ns_lshl_b32 s70, s70, 2\ns_add_u32 s70, s70, s24\ns_cmp_ge_u32 s31, 248\ns_cselect_b32 s70, s70, 0x8000\ns_lshl_b32 s29, s70, 5')
    e('v_and_b32 v11, 1, v3\nv_lshlrev_b32 v11, 14, v11\nv_lshl_add_u32 v11, v2, 1, v11')
    ops += [('s_add_u32 s29, s29, 4096\n' if ip % 4 == 0 and ip else '') + f'buffer_load_ushort v{136+ip}, v11, {srd(56)}, s29 offen offset:{1024*(ip%4)}' for ip in range(16)]
    def uphook():
        e("""v_bfe_u32 v6, v0, 2, 2
        v_lshl_add_u32 v8, v3, 5, v6
        v_lshlrev_b32 v8, 7, v8
        v_and_b32 v9, 3, v0
        v_and_b32 v6, 2, v6
        v_lshlrev_b32 v6, 5, v6""")
        e('s_cmp_lt_u32 s25, 8\ns_cselect_b32 s27, 3, 4\ns_cselect_b32 s28, 32, 8')
        e('v_lshlrev_b32 v9, s27, v9\nv_add_u32 v8, v8, v9\ns_lshl_b32 s27, s24, 10\nv_add_u32 v8, s27, v8')
        e('v_add_u32 v9, v8, v6\nv_add_u32 v11, s28, v9\nv_xor_b32 v6, 64, v6\nv_add_u32 v12, v8, v6\nv_add_u32 v13, s28, v12')
        e(f's_lshl_b32 s28, s25, 16\ns_add_u32 s28, s28, {WA_OFF + 524288}\ns_lshl_b32 s29, s26, 2\ns_add_u32 s29, s29, s24\ns_lshl_b32 s35, s29, 2\ns_lshl_b32 s29, s29, 11\ns_add_u32 s28, s28, s29\ns_add_u32 s29, s28, 32768')
        e(f's_lshl_b32 s27, s25, 7\ns_add_u32 s35, s35, s27\ns_add_u32 s35, s35, {FU_REL}')
        e('s_waitcnt vmcnt(18)\ns_barrier')
        for f in range(4):
            for x in range(2): e(f'ds_read_b64_tr_b16 v[{160+4*f+2*x}:{161+4*f+2*x}], v{[9,11,12,13][f]} offset:{512*x}')
        e('s_waitcnt lgkmcnt(0)')
        for f in range(4): e(f'buffer_store_dwordx4 v[{160+4*f}:{163+4*f}], v1, {srd(R_WS)}, s{28+f//2} offen offset:{1024*(f%2)} sc1')
    ln(ops, [f's_waitcnt vmcnt(0)\nbuffer_store_dword v{V_TAG}, off, {srd(R_FL)}, s35{FSC}'], uphook, 99)
    a.mark('p_d')
    for q in range(8): e(f'v_lshl_or_b32 v{64+q}, v{137+2*q}, 16, v{136+2*q}')
    e(f's_lshl_b32 s69, s69, 10\ns_add_u32 s69, s69, {WV_OFF}')
    for k in range(2): e(f'buffer_store_dwordx4 v[{128+4*k}:{131+4*k}], v1, {srd(R_WS)}, s69 offen offset:{1024*k} sc1')
    a.srd(56, 4, DW_SZ, DW_OFF)
    e('s_lshl_b32 s70, s70, 11')
    for k in range(2): e(f'buffer_store_dwordx4 v[{64+4*k}:{67+4*k}], v1, {srd(56)}, s70 offen offset:{1024*k} sc1')
    e(f's_barrier\ns_waitcnt vmcnt(0)\n' + flagX + f'\nbuffer_store_dword v{V_TAG}, off, {srd(R_FL)}, s68{FSC}')
    e(p0); e('s_waitcnt vmcnt(0)'); poll([p0], [14], None)
    for i in range(nw): w0(i)
    e(pX)
    e('s_mov_b32 s68, 0x100000')
    for _ in range(2): e(f'buffer_store_dword v{V_TAG}, off, {srd(R_FL)}, s68{FSC}')
    a.label(f'{name}_pd')
    e('s_mov_b32 s6, s68\ns_mov_b32 s7, s50')
    a.mark('p_e')
    return nw, pX

def fused_kernel(a, name, kidx=1, merge=False, tlb=False, xlate=False, stag=False, novalu=False, burst=True, pm0=2, tmode=3, l2pf=0, side3=False, nside=20, ksc=' sc1', n_early=24, slp=4, fx_st=7, pearly=True, xmap=False, order=(0,2,1), DF=7, W=2, AW=2, dlate=False, nodma=False, f16=True, t16=True, xpf=True, pre=0, vper=3, npub=(4,12,7), fA=-4, pA=32, fB=50, pB=74, pD=8, pp=2, wp5=99, osc=' sc1', xearly=True, dbgp=False, qlag=False, nost=(), fsc=' sc1', xm=False, nobar=False, flagA_unit=None, pollA_unit=None, flagC_n=8, pf=True, dcost=1, psc=' sc1', FDF=12, nopl=False, nopub=False, wpf=False, plsc=' sc1'):
    e = a.e
    a.begin(name)
    e(f's_cmp_ge_u32 s2, 256\ns_cbranch_scc1 {name}_end')
    a.stamp_begin()
    e(f's_load_dwordx2 s[4:5], s[0:1], 88\ns_load_dwordx2 s[{R_AUX}:{R_AUX+1}], s[0:1], 0\ns_load_dwordx2 s[{R_OUT}:{R_OUT+1}], s[0:1], 72')
    if merge: e('s_load_dwordx16 s[36:51], s[0:1], 8')
    HS1 = ' sc1' if merge else ''
    e('s_and_b32 s30, s2, 7\ns_lshr_b32 s31, s2, 3\ns_and_b32 s32, s31, 3\ns_lshr_b32 s31, s31, 2\ns_lshl_b32 s30, s30, 3\ns_add_u32 s30, s30, s31')
    e('s_lshr_b32 s33, s30, 5\ns_and_b32 s34, s30, 31')
    e('v_lshrrev_b32 v9, 6, v0\nv_and_b32 v0, 63, v0\ns_nop 0\nv_readfirstlane_b32 s24, v9')
    vq = VQ(e)
    if pf and not (merge and tmode): a.touch_code(name, f'{name}_R0', 60, 10, 120, 24, 2, issue=lambda op: vq.issue(op, 'tc'))
    e(f'v_lshlrev_b32 v{V_L16}, 4, v0')
    slow = []
    def poll(loads, regs, back_tag):
        lbl = a.newlabel(name + '_sp'); back = a.newlabel(name + '_bk')
        def chk():
            if back_tag: back_tag()
            if len(regs) == 1: e(f'v_cmp_ne_u32 vcc, v7, v{regs[0]}')
            else:
                e(f'v_xor_b32 v{regs[0]}, v{regs[0]}, v7')
                for r in regs[1:]: e(f'v_bitop3_b32 v{regs[0]}, v{r}, v7, v{regs[0]} bitop3:0xbe')
                e(f'v_cmp_ne_u32 vcc, 0, v{regs[0]}')
        chk()
        e(f's_cbranch_vccnz {lbl}')
        a.label(back)
        def sp():
            a.label(lbl)
            e(f's_mov_b32 s3, {SPIN_MAX}')
            l2 = a.newlabel(name + '_sl'); a.label(l2)
            e(f's_sleep {slp}')
            for l in loads: e(l)
            e('s_waitcnt vmcnt(0)')
            chk()
            e(f's_cbranch_vccz {back}')
            e(f's_sub_u32 s3, s3, 1\ns_cmp_lg_u32 s3, 0\ns_cbranch_scc1 {l2}\ns_branch {back}')
        slow.append(sp)

    if merge:
        nw0, pX = prep_phase(a, name, poll, order[0], n_early, fx_st, pearly, xmap, tmode, tlb, xlate)
        vq.q = [f'w0_{i}' for i in range(nw0)] + ['px'] + ['pst']*2; vq.done = 0
    e('s_mul_i32 s25, s33, 4000\ns_lshl_b32 s39, s34, 7\ns_add_u32 s25, s25, s39\ns_lshl_b32 s39, s24, 3\ns_add_u32 s25, s25, s39\ns_lshl_b32 s25, s25, 10')
    e(f's_mul_i32 s35, s24, {8*PITCH}\ns_sub_u32 s35, s35, 65536')
    e(f's_cmp_gt_u32 s32, 0\ns_cselect_b32 s38, 1, 0\ns_cselect_b32 s39, {SLOT}, 0\ns_add_u32 s27, s35, s39')
    e(f's_cmp_gt_u32 s32, 0\ns_cselect_b32 s28, 0, {3*SLOT}\ns_add_u32 s28, s28, s35')
    e('s_lshl_b32 s45, s32, 2\ns_add_u32 s45, s45, s24')
    e(f's_lshl_b32 s46, s45, 15\ns_add_u32 s46, s46, {WA_OFF}')
    if not merge:
        e('s_waitcnt lgkmcnt(0)')
        a.srd(R_XA, 4, XA_SZ, XA_OFF); a.srd(R_WS, 4, WS_SZ)
    MB='v_mfma_f32_32x32x16_bf16'
    V_B0=2; V_B2=3; V_C0=12; V_C1=13; V_WP=6; V_ONE=7; V_FA=8; V_PL=9; V_B3=10; V_SQ=11; V_SU=12
    TMP=16; FR=32; Q=128
    ACCB = lambda unit: [128, 144][unit % 2] if (unit < 2 or (order[0] and unit in (4, 5))) else [96, 112][unit % 2]
    def fr(f): return FR + 4*(f % 16)
    def dma_ops(base, slot, src, src2, tag):
        ops = []
        for r in range(8):
            pre = f's_add_u32 m0, {base}, {65536 + slot*SLOT + r*PITCH - (r&3)*1024}'
            if r == 0: pre += f'\ns_add_u32 {src2}, {src}, 4096'
            if r == 4: pre += f'\ns_add_u32 {src}, {src}, 32768'
            so = src if r < 4 else src2
            ops.append((pre, lambda r=r, so=so: vq.issue(f'buffer_load_dwordx4 v{V_L16}, {srd(R_XA)}, {so} offen offset:{(r&3)*1024}{HS1} lds', tag)))
        return ops
    xops = lambda t: dma_ops('s27', t, 's25', 's29', f'x{t}') if t < 3 else dma_ops('s28', 0, 's25', 's29', 'x3')
    kops = lambda t: dma_ops('s27', t, 's26', 's29', f'k{t}')
    def wop(ps, i):
        r = (ps % 2)*128 + 4*i; ks, h = i // 2, i % 2
        pre = f's_add_u32 s47, s46, {order[ps]*524288 + (ks//2)*4096}' if i % 4 == 0 else None
        return (pre, lambda: vq.issue(f'buffer_load_dwordx4 a[{r}:{r+3}], v{V_L16 if f16 else V_WP}, {srd(R_WS)}, s47 offen offset:{(ks%2)*2048 + (1024 if f16 else 512)*h}{HS1}', f'w{ps}_{i}'))
    def now(ops):
        for pre, f in ops:
            if pre: e(pre); e('s_nop 0') if 'm0' in pre.split('\n')[-1] else None
            f()
    if merge:
        assert order == (2, 0, 1) and f16 and nw0 == 16
        vq.wait('px'); poll([pX], [4], None)
        a.mark('p_f')
    now(xops(0)); now(xops(1))
    e(f"""v_and_b32 v13, 3, v0
    v_and_b32 v14, 4, v0
    v_add_u32 v13, v13, v14
    v_bfe_u32 v14, v0, 4, 1
    v_lshl_add_u32 v13, v14, 3, v13
    v_lshlrev_b32 v13, 4, v13
    v_bfe_u32 v15, v0, 3, 1
    v_lshl_add_u32 v13, v15, 10, v13
    v_lshrrev_b32 v15, 5, v0
    v_lshl_add_u32 v{V_WP}, v15, 8, v13""")
    now([wop(0, i) for i in range(16 if merge else 0, 16)])
    a.srd(R_FL, 4, FLAG_SZ, FLAG_OFF)
    e(f's_mul_i32 s37, s33, 4096000\ns_add_u32 s37, s37, {GF_OFF}')
    e(f's_add_u32 s{R_GL}, s4, s37\ns_addc_u32 s{R_GL+1}, s5, 0\ns_mov_b32 s{R_GL+2}, 4096000\ns_mov_b32 s{R_GL+3}, 0x20000')
    e(f's_mov_b32 s{R_AUX+2}, {XA_SZ}\ns_mov_b32 s{R_AUX+3}, 0x20000\ns_mov_b32 s{R_OUT+2}, {XA_SZ}\ns_mov_b32 s{R_OUT+3}, 0x20000')
    a.srd(R_OP, 4, OP_SZ, OP_OFF)
    if side3: e('s_mul_i32 s40, s30, 3\ns_add_u32 s40, s40, s32\ns_sub_u32 s40, s40, 1\ns_mul_i32 s40, s40, 3\ns_add_u32 s40, s40, s24\ns_cmp_eq_u32 s24, 3\ns_cselect_b32 s40, 0x200, s40')
    else: e('s_lshl_b32 s40, s30, 1\ns_add_u32 s40, s40, s32\ns_sub_u32 s40, s40, 1\ns_lshl_b32 s40, s40, 2\ns_add_u32 s40, s40, s24')
    e('s_and_b32 s41, s40, 31\ns_lshr_b32 s42, s40, 5')
    e(f'v_and_b32 v13, 15, v0\nv_lshlrev_b32 v{V_FA}, 2, v13\nv_lshlrev_b32 v13, 4, v13\nv_lshl_add_u32 v13, v15, 8, v13')
    e(f'v_lshl_add_u32 v{V_SQ}, v14, 10, v13\nv_lshl_add_u32 v{V_SU}, v14, 14, v13')
    if f16: e(f'v_and_b32 v13, 15, v0\nv_mul_u32_u24 v13, {PITCH}, v13\nv_lshrrev_b32 v15, 4, v0\nv_lshl_add_u32 v13, v15, 8, v13')
    else: e(f'v_and_b32 v13, 31, v0\nv_mul_u32_u24 v13, {PITCH}, v13\nv_lshl_add_u32 v13, v15, 8, v13')
    e(f's_mul_i32 s39, s38, {SLOT}\nv_add_u32 v{V_B0}, s39, v13\nv_add_u32 v{V_B2}, {2*SLOT}, v{V_B0}\ns_sub_u32 s39, s28, s35\nv_add_u32 v{V_B3}, s39, v13')
    e(('s_cmp_ge_u32 s40, 0x200' if side3 else 's_cmp_eq_u32 s32, 3') + '\ns_cselect_b32 s37, 0x50000000, 0')
    e(f's_lshl_b32 s43, s42, 15\ns_add_u32 s43, s43, {WV_OFF}\ns_add_u32 s43, s43, s37\ns_lshl_b32 s44, s41, 14\ns_add_u32 s44, s44, {W1_OFF}\ns_add_u32 s44, s44, s37')
    e(f'v_mov_b32 v{V_C0}, {f2u(C0)}\nv_mov_b32 v{V_C1}, {f2u(C1)}')
    if not merge: e(f'v_mov_b32 v{V_ONE}, 1')
    e(f's_lshr_b32 s36, s41, 3\ns_lshl_b32 s36, s36, 4\ns_add_u32 s36, s36, s42\ns_lshl_b32 s36, s36, 13\ns_add_u32 s36, s36, s37\ns_and_b32 s37, s41, 7\ns_lshl_b32 s37, s37, 10\ns_add_u32 s36, s36, s37\ns_add_u32 s36, s36, {WF_OFF + 524288}')
    e('s_mul_i32 s48, s33, 250\ns_lshl_b32 s49, s34, 3\ns_add_u32 s48, s48, s49\ns_lshl_b32 s48, s48, 14')
    e('s_lshl_b32 s49, s45, 10\ns_add_u32 s50, s48, s49\ns_lshl_b32 s49, s45, 11\ns_add_u32 s51, s48, s49')
    e('s_lshl_b32 s49, s24, 15\ns_add_u32 s48, s48, s49')
    e('s_add_u32 s49, s33, 1\ns_mul_i32 s49, s49, 4096000')
    for off, d in ((QF_OFF, R_Q), (UF_OFF, R_U), (GF_OFF, R_G)):
        e(f's_add_u32 s{d}, s4, {off}\ns_addc_u32 s{d+1}, s5, 0\ns_mov_b32 s{d+2}, s49\ns_mov_b32 s{d+3}, 0x20000')
    e('s_lshl_b32 s40, s30, 6\ns_lshl_b32 s41, s45, 2\ns_add_u32 s41, s41, s40')
    e('s_mul_i32 s26, s32, 992\ns_mul_i32 s39, s33, 4000\ns_add_u32 s26, s26, s39\ns_lshl_b32 s39, s38, 5\ns_add_u32 s26, s26, s39\ns_lshl_b32 s39, s24, 3\ns_add_u32 s26, s26, s39\ns_lshl_b32 s26, s26, 10')
    seq = [(u, i) for i in range(32) for u in range(2)] + [(u, i) for u in range(2, 12) for i in range(32)]
    def fread(n):
        u, i = seq[n]; t = u % 4; r = fr(n)
        b, o = [(V_B0, 0), (V_B0, SLOT), (V_B2, 0), (V_B3, 0)][t]
        return f'ds_read_b128 v[{r}:{r+3}], v{b} offset:{o + (16*PITCH if f16 else 512)*(i%2) + 16*(i//2)}'
    def epi_ops(unit, pk=False, TMP=16):
        ps, t = unit // 4, unit % 4
        kind = order[ps]; ops = []
        def v(s, c=1): ops.append(('v', s, c))
        hyb = burst and kind and not pk
        if hyb:
            A0 = ACCB(unit); P2 = lambda r: f'v[{r}:{r+1}]'
            B = [f'v_pk_mul_f32 {P2(TMP+j)}, {P2(A0+j)}, {P2(A0+j)}' for j in range(0, 16, 2)]
            B += [f'v_pk_fma_f32 {P2(TMP+j)}, {P2(TMP+j)}, {P2(V_C0)}, {P2(V_C0)} op_sel:[0,1,0] op_sel_hi:[1,1,0]' for j in range(0, 16, 2)]
            B += [f'v_pk_mul_f32 {P2(TMP+j)}, {P2(TMP+j)}, {P2(A0+j)}' for j in range(0, 16, 2)]
            ops.append(('B', '\n'.join(B), 0))
        for b in range(2):
            x = [ACCB(unit) + 8*b + j for j in range(8)]; o = (160 if unit == (4 if order[0] else 1) else TMP + 8) + 4*b
            if hyb:
                o = TMP + 8*b
                for k in range(11 if b == 0 else 8):
                    kk = k + (0 if b == 0 else 11)
                    if kk < 16: v(f'v_exp_f32 v{TMP+kk}, v{TMP+kk}', 2)
                    if 0 <= kk-1 < 16: v(f'v_add_f32 v{TMP+kk-1}, 1.0, v{TMP+kk-1}')
                    if 0 <= kk-2 < 16: v(f'v_rcp_f32 v{TMP+kk-2}, v{TMP+kk-2}', 2)
                    if 0 <= kk-3 < 16: v(f'v_mul_f32 v{A0+kk-3}, v{A0+kk-3}, v{TMP+kk-3}')
            elif kind and not pk:
                for h in range(2):
                    xs = x[4*h:4*h+4]; tt = [TMP + 4*h + j for j in range(4)]
                    for j in range(4): v(f'v_mul_f32 v{tt[j]}, v{xs[j]}, v{xs[j]}')
                    for j in range(4): v(f'v_fma_f32 v{tt[j]}, v{tt[j]}, v{V_C1}, v{V_C0}')
                    for j in range(4): v(f'v_mul_f32 v{tt[j]}, v{tt[j]}, v{xs[j]}')
                    for j in range(4): v(f'v_exp_f32 v{tt[j]}, v{tt[j]}', 2)
                    for j in range(4): v(f'v_add_f32 v{tt[j]}, 1.0, v{tt[j]}')
                    for j in range(4): v(f'v_rcp_f32 v{tt[j]}, v{tt[j]}', 2)
                    for j in range(4): v(f'v_mul_f32 v{xs[j]}, v{xs[j]}, v{tt[j]}')
            elif kind:
                P2 = lambda r: f'v[{r}:{r+1}]'
                for j in range(0, 8, 2): v(f'v_pk_mul_f32 {P2(TMP+j)}, {P2(x[j])}, {P2(x[j])}')
                for j in range(0, 8, 2): v(f'v_pk_fma_f32 {P2(TMP+j)}, {P2(TMP+j)}, {P2(V_C0)}, {P2(V_C0)} op_sel:[0,1,0] op_sel_hi:[1,1,0]')
                for j in range(0, 8, 2): v(f'v_pk_mul_f32 {P2(TMP+j)}, {P2(TMP+j)}, {P2(x[j])}')
                for j in range(8): v(f'v_exp_f32 v{TMP+j}, v{TMP+j}', 2)
                for j in range(0, 8, 2): v(f'v_pk_add_f32 {P2(TMP+j)}, {P2(TMP+j)}, 1.0 op_sel_hi:[1,0]')
                for j in range(8): v(f'v_rcp_f32 v{TMP+j}, v{TMP+j}', 2)
                for j in range(0, 8, 2): v(f'v_pk_mul_f32 {P2(x[j])}, {P2(x[j])}, {P2(TMP+j)}')
            for k in range(4): v(f'v_cvt_pk_bf16_f32 v{o+k}, v{x[2*k]}, v{x[2*k+1]}')
            R = [R_Q, R_U, R_G][kind]
            pre = f's_add_u32 s49, s{50 if kind else 51}, {t*32768 + (b*(16384 if kind else 1024) if f16 else 0)}'
            ops.append(('m', (pre, lambda o=o, b=b, R=R: vq.issue(f'buffer_store_dwordx4 v[{o}:{o+3}], v{V_L16 if f16 else (V_SU if kind else V_SQ)}, {srd(R)}, {"s37" if kind in nost else "s49"} offen offset:{0 if f16 else 512*b}{fsc if kind else " sc1"}', f'st{kind}')), 3))
        return ops
    pollA_ld = f'buffer_load_dword v{V_PL}, v{V_FA}, {srd(R_FL)}, s40 offen offset:{FA_REL}{FSC}'
    def qop(i):
        pre = 's_add_u32 s48, s48, 4096' if i % 4 == 0 and i else None
        return (pre, lambda: vq.issue(f'buffer_load_dwordx4 v[{Q+4*i}:{Q+4*i+3}], v{V_L16}, {srd(R_Q)}, s48 offen offset:{(i%4)*1024} sc1', f'q{i}'))
    bar = ('s_barrier', lambda: None)
    mem = {u: [] for u in range(1, 12)}
    mem[1] = [x for pr in zip([wop(0, i) for i in range(16, 24)], xops(2)) for x in pr] + [wop(0, i) for i in range(24, 32)] + xops(3) + [wop(1, i) for i in range(4)]
    mem[2] = [wop(1, i) for i in range(4, 16)]
    mem[3] = [wop(1, i) for i in range(16, 32)]
    mem[4] = [wop(2, i) for i in range(12)]
    mem[5] = [(None, lambda: (vq.wait('st0'), vq.issue(f'buffer_store_dword v{V_ONE}, off, {srd(R_FL)}, s41 offset:{FA_REL}{FSC}', 'fl')))] + [wop(2, i) for i in range(12, 22)]
    mem[6] = [wop(2, i) for i in range(22, 32)] + [(None, lambda: vq.issue(pollA_ld, 'pa'))]
    mem[7] = [(None, lambda: None)]*3 + [(None, lambda: (vq.wait('pa'), poll([pollA_ld], [V_PL], None)))] + [qop(i) for i in range(8)]
    mem[8] = [qop(i) for i in range(8, 20)]
    mem[9] = [bar] + kops(0) + [qop(i) for i in range(20, 24)]
    mem[10] = [bar] + kops(1) + [qop(i) for i in range(24, 28)]
    mem[11] = [bar] + kops(2) + [qop(i) for i in range(28, 32)]
    if nost: e('s_mov_b32 s37, 0x70000000')
    EP = {2: [0, 1]}
    for b in range(3, 12): EP[b] = [b-1]
    if qlag and not order[0]: EP.update({2: [0], 3: [1, 2]})
    if order[0]:
        flagA = (None, lambda: (vq.wait('st0'), vq.issue(f'buffer_store_dword v{V_ONE}, off, {srd(R_FL)}, s41 offset:{FA_REL}{FSC}', 'fl')))
        nop = (None, lambda: None)
        EP.update({2: [0], 3: [1], 4: [2], 5: [3, 4]})
        mem[4] = [wop(2, i) for i in range(6)]
        mem[5] = [wop(2, i) for i in range(6, 10)]
        mem[6] = [wop(2, i) for i in range(10, 22)]
        mem[7] = [wop(2, i) for i in range(22, 32)]
        mem[8] = [nop]*7 + [flagA]
        mem[9] = [bar] + kops(0) + [nop, (None, lambda: vq.issue(pollA_ld, 'pa')), nop]
        mem[10] = [bar] + kops(1)[:4] + [(None, lambda: (vq.wait('pa'), poll([pollA_ld], [V_PL], None)))] + kops(1)[4:] + [qop(i) for i in range(12)]
        mem[11] = [qop(i) for i in range(12, 32)]
        if merge:
            e('v_and_b32 v15, 31, v0\nv_lshlrev_b32 v15, 2, v15')
            pM = f'buffer_load_dword v{V_PL}, v15, {srd(R_FL)}, s7 offen{FSC}'
            mem[1] = [(None, lambda: (vq.wait('pst'), vq.issue(f'buffer_store_dword v{V_ONE}, off, {srd(R_FL)}, s6{FSC}', 'fl')))] + mem[1][:32]
            mem[2] = [nop]*pm0 + [(None, lambda: vq.issue(pM, 'pm'))] + [nop]*5 + [(None, lambda: (vq.wait('pm'), poll([pM], [V_PL], None)))] + [wop(1, i) for i in range(10 - pm0)]
            mem[3] = [wop(1, i) for i in range(10 - pm0, 28)]
            mem[4] = [wop(1, i) for i in range(28, 32)] + [nop]*8 + [wop(2, i) for i in range(4)]
            mem[5] = [wop(2, i) for i in range(4, 10)]
            pG = [f'buffer_load_dwordx4 v[{192+4*i}:{195+4*i}], v{V_L16}, {srd(R_FL)}, s6 offen offset:{1024*i}{FSC}' for i in range(4)]
            mem[8] = [(f's_mov_b32 s6, {FP_REL}' if i == 0 else None, lambda i=i: vq.issue(pG[i], 'pg')) for i in range(4)] + [nop]*3 + [flagA, (None, lambda: (vq.wait('pg'), poll(pG, list(range(192, 208)), None)))]
    vq.wait('x1'); e('s_barrier')
    a.mark('x0')
    FW = 2
    for f in range(FDF): e(fread(f))
    def wait_for(n):
        if n >= len(seq): return
        u, i = seq[n]; w = []
        if n % FW == 0: w.append(f'lgkmcnt({max(0, min(n - 1 + FDF, len(seq)) - (n + FW))})')
        if u % 4 == 0:
            x = vq.need(f'w{u//4}_{i|1 if f16 else i}')
            if x: w.append(x)
        if w: e('s_waitcnt ' + ' '.join(w))
    n = 0
    wait_for(0)
    for blk in range(1, 12):
        N = 64 if blk == 1 else 32
        ep = [] if blk == 1 else [x for u_ in EP[blk] for x in epi_ops(u_)]
        if blk == 11:
            ep += [('v', x.strip(), 1) for x in f"""v_and_b32 v14, 7, v0
            v_lshlrev_b32 v14, 1, v14
            v_bfe_u32 v15, v0, 3, 1
            v_add_u32 v14, v14, v15
            v_mul_u32_u24 v14, {PITCH}, v14
            v_lshrrev_b32 v15, 4, v0
            v_lshl_add_u32 v2, v15, 8, v14
            v_bfe_u32 v14, v0, 2, 3
            v_lshlrev_b32 v14, 1, v14
            v_lshrrev_b32 v15, 5, v0
            v_add_u32 v14, v14, v15
            v_mul_u32_u24 v14, {PITCH}, v14
            v_and_b32 v15, 3, v0
            v_lshl_add_u32 v3, v15, 3, v14
            v_add_u32 v4, {2*SLOT}, v2
            v_add_u32 v5, {2*SLOT}, v3
            v_mov_b32 v8, 0
            v_mov_b32 v9, 0""".split('\n')]
        mq = list(mem[blk]); nm = len(mq); pend = []; nxt = None; lastst = -99
        nst = sum(1 for x in ep if x[0] == 'm'); stgap = (N - 6) // max(nst, 1)
        tot = sum(c for k, o, c in ep if k == 'v'); acc = 0.0; start = 2; issued = 0
        for g in range(N):
            u, i = seq[n]; d = ACCB(u); wr = ((u//4) % 2)*128 + 4*i
            c = '0' if i == 0 else f'v[{d}:{d+15}]'
            def small(jh):
                dd = d + 8*(i%2) + 4*jh; w2 = ((u//4) % 2)*128 + 4*((i & ~1) + jh)
                e(f'{MF} v[{dd}:{dd+3}], a[{w2}:{w2+3}], v[{fr(n)}:{fr(n)+3}], ' + ('0' if i < 2 else f'v[{dd}:{dd+3}]'))
            m = nxt; nxt = None
            if f16:
                small(0)
                if m: m[1]()
                elif g >= start:
                    b2 = 0
                    while ep and ep[0][0] == 'v' and b2 + ep[0][2] <= 2:
                        k, o, c2 = ep.pop(0); e(o); acc -= c2; b2 += c2
                small(1)
            else: e(f'{MB} v[{d}:{d+15}], a[{wr}:{wr+3}], v[{fr(n)}:{fr(n)+3}], {c}')
            wait_for(n + 1)
            if g < N - 1:
                if pend and g >= lastst + stgap: nxt = pend.pop(0); lastst = g
                elif mq and issued * (N - 2) <= g * nm: nxt = mq.pop(0); issued += 1
            if nxt and nxt[0]: e(nxt[0])
            if n + FDF < len(seq):
                un, inn = seq[n + FDF]
                if inn == 0 and un in (2, 3):
                    assert vq.q.count(f'x{un}') == 8
                    vq.wait(f'x{un}'); e('s_barrier')
                e(fread(n + FDF))
            if not f16 and nxt:
                if n + FDF >= len(seq): e('s_nop 0')
                nxt[1](); m = nxt; nxt = None
            if g >= start:
                acc += tot / (N - 2 - start) - (2 if m else 0) + (2.0 * (nm + 2) / N)
                while ep and (ep[0][0] in 'mB' or acc >= ep[0][2] - 0.5):
                    k, o, c2 = ep.pop(0)
                    if k == 'B': e(o); break
                    if k == 'v': e(o); acc -= c2
                    else: pend.append(o)
            n += 1
        for k, o, c2 in ep:
            if k == 'v': e(o)
            else: pend.append(o)
        now(pend + mq)
        a.mark(f'u{blk}')
    assert f16 and order[0]
    V_KB=2; V_VB=3; V_KA=4; V_VA=5; V_L=8; V_MX=10; V_T0=12; V_T1=13; V_T2=14; V_T3=15
    S_BUF=[16,32]; NEGM=48; P=56; AFR=64
    e(f's_mov_b32 s45, {THRESH}\ns_mov_b32 s31, 7')
    if side3: e('s_cmp_lt_u32 s36, 0x50000000\ns_cselect_b64 s[6:7], -1, 0')
    vq.wait('k1'); e('s_barrier')
    a.mark('attn0')
    def afr(f): return AFR + 4*(f % 8)
    def qf(step, qt): return Q + 4*(2*step+qt)
    cur = [0]
    def reads(f):
        f0 = f % 64; r = afr(f)
        if f0 < 32:
            sl = (cur[0] + 1 + f // 64) % 4
            step, kt = f0 // 2, f0 % 2
            return [f'ds_read_b128 v[{r}:{r+3}], v{V_KB if sl < 2 else V_KA} offset:{(sl%2)*SLOT + kt*16*PITCH + 16*step}']
        dt = f0 - 32; sl = (cur[0] + f // 64) % 4
        return [f'ds_read_b64_tr_b16 v[{r+2*kt}:{r+2*kt+1}], v{V_VB if sl < 2 else V_VA} offset:{(sl%2)*SLOT + kt*16*PITCH + 32*dt}' for kt in range(2)]
    def nreads(f): return 1 if (f % 64) < 32 else 2
    def mfma(n, Snext, first_c, zero=False):
        f = n // 2; r = afr(f); qt = n % 2
        if n < 64:
            step, kt = f // 2, f % 2
            d = Snext + 8*qt + 4*kt
            c = first_c(qt) if step == 0 else f'v[{d}:{d+3}]'
            return f'{MF} v[{d}:{d+3}], v[{r}:{r+3}], v[{qf(step,qt)}:{qf(step,qt)+3}], {c}'
        dt = f - 32; o = 8*dt + 4*qt
        return f'{MF} a[{o}:{o+3}], v[{r}:{r+3}], v[{P+4*qt}:{P+4*qt+3}], ' + ('0' if zero else f'a[{o}:{o+3}]')
    def maxtree(S):
        ops = []
        for qt in range(2):
            b = S + 8*qt; m = V_MX + qt
            ops.append([f'v_max3_f32 v{m}, v{b}, v{b+1}, v{b+2}', f'v_max3_f32 v{m}, v{m}, v{b+3}, v{b+4}',
                        f'v_max3_f32 v{m}, v{m}, v{b+5}, v{b+6}', f'v_max_f32 v{m}, v{m}, v{b+7}'])
        return [x for pair in zip(*ops) for x in pair]
    def xred(op, regs):
        ts = [V_T0, V_T1]
        for sw in ('32', '16'):
            for r, t in zip(regs, ts): e(f'v_mov_b32 v{t}, v{r}')
            e('s_nop 1')
            for r, t in zip(regs, ts): e(f'v_permlane{sw}_swap_b32 v{t}, v{r}')
            e('s_nop 1')
            for r, t in zip(regs, ts): e(f'{op} v{r}, v{r}, v{t}')
    SD = 96
    def side_ops():
        ops = []
        for st in range(16):
            for k in range(3):
                r = 12*st + 4*k; pre = None
                if st % 4 == 0 and st and k == 0: pre = 's_add_u32 s43, s43, 4096'
                if st % 4 == 0 and k == 1: pre = 's_add_u32 s47, s43, 16384'
                if st % 4 == 0 and st and k == 2: pre = 's_add_u32 s44, s44, 4096'
                so = ['s43', 's47', 's44'][k]
                ld = f'buffer_load_dwordx4 a[{r}:{r+3}], v{V_L16}, {srd(R_WS)}, {so} offen offset:{1024*(st%4)}{HS1}'
                if side3: ld = 's_mov_b64 exec, s[6:7]\n' + ld + '\ns_mov_b64 exec, -1'
                ops.append((pre, ld, f'sd{st}'))
        return ops
    vq0 = (list(vq.q), vq.done)
    def qk0(j0):
        vq.q, vq.done = list(vq0[0]), vq0[1]
        S = S_BUF[j0 % 2]
        cur[0] = j0 - 1
        ep = epi_ops(11, TMP=96)
        mq = kops(2)
        sd = side_ops() if j0 == 1 else []
        mq += [(p, (lambda o=o, t=t: vq.issue(o, t))) for p, o, t in sd[:nside]]
        for f in range(DF): e(reads(f)[0])
        if ep[0][0] == 'B': e(ep.pop(0)[1])
        def w(n):
            ws = [f'lgkmcnt({DF-3})' if n else f'lgkmcnt({DF-2})', vq.need(f'q{2*(n//4)+1}')]
            e('s_waitcnt ' + ' '.join(x for x in ws if x))
        w(0); nxt = None; nm = len(mq); issued = 0
        for n in range(64):
            f = n // 2
            e(mfma(n, S, lambda qt: '0'))
            budget = 3
            if n % 2 == 1:
                if n % 4 == 3 and n < 63: w(n + 1)
                if ep and ep[0][0] == 'm': nxt = ep.pop(0)[1]
                elif mq and issued * 30 <= f * nm: nxt = mq.pop(0); issued += 1
                if nxt and nxt[0]: e(nxt[0])
                e(reads(f + DF if f + DF < 32 else f + DF + 32)[0])
            elif nxt: nxt[1](); nxt = None; budget = 0
            if burst: budget = min(budget, 2)
            while ep and ep[0][0] == 'v' and budget >= ep[0][2]:
                k, o, c2 = ep.pop(0); e(o); budget -= c2
        if nxt: nxt[1]()
        for k, o, c2 in ep:
            if k == 'v': e(o)
            else: now([o])
        now(mq)
        e('s_nop 5\ns_add_u32 s29, s26, 4096')
        for o in maxtree(S): e(o)
        xred('v_max_f32', [V_MX, V_MX+1])
        for qt in range(2):
            for i in range(4): e(f'v_sub_f32 v{NEGM+4*qt+i}, 0, v{V_MX+qt}')
            for i in range(8): e(f'v_sub_f32 v{S+8*qt+i}, v{S+8*qt+i}, v{V_MX+qt}')
        a.mark('loop0')
        e(f's_add_u32 s41, s41, {FB_REL}\ns_waitcnt lgkmcnt(0)')
        return sd[nside:]

    V_G=128; V_DW=192; V_U=96
    vt = VQ(e)
    pollB_ld = [f'buffer_load_dwordx4 v[{96+4*i}:{99+4*i}], v{V_L16}, {srd(R_FL)}, s44 offen offset:{1024*i}{FSC}' for i in range(4)]
    PF = []
    for pl in range(2):
        for tt in range(2):
            r = V_U + 16 + 8*pl + 4*tt
            PF.append((None, f'buffer_load_dwordx4 v[{r}:{r+3}], v{V_L16}, {srd(R_U)}, s{46+tt} offen offset:{1024*(pl+2)} sc1', 'u', -1))
    for p in range(16):
        PF.append(('s_add_u32 s39, s39, 4096' if p % 4 == 0 and p else None, f'buffer_load_dwordx4 v[{V_G+4*p}:{V_G+4*p+3}], v{V_L16}, {srd(R_GL)}, s39 offen offset:{1024*(p%4)} sc1', 'g', p // 2))
    for pl in range(2):
        for tt in range(2):
            r = V_U + 8*pl + 4*tt
            PF.append((None, f'buffer_load_dwordx4 v[{r}:{r+3}], v{V_L16}, {srd(R_U)}, s{46+tt} offen offset:{1024*pl} sc1', 'u', -1))
    for i in range(16):
        PF.append(('s_add_u32 s38, s38, 4096' if i % 4 == 0 and i else None, f'buffer_load_dwordx4 v[{V_DW+4*i}:{V_DW+4*i+3}], v{V_L16}, {srd(R_WS)}, s38 offen offset:{1024*(i%4)}{HS1}', f'dw{i//4}', 8 + i // 2))
    def body(jm, special=False, first=None, var=None):
        par = jm % 2; cur[0] = jm
        Scur, Snext = S_BUF[par], S_BUF[1-par]
        sc = [[] for _ in range(128)]; gap = [[] for _ in range(128)]; used = [0]*128
        peel = first; first = {}
        def put(n, op, cost=1): gap[n].append(op); used[n] += cost
        def fit(lo, cost, hi=127):
            n = lo
            while used[n] + cost > 2 and n < hi: n += 1
            return n
        def rmap(f): return f + 32 if (special and f >= 64) else f
        rdq = {}
        for f in range(64):
            x = rmap(f + DF)
            if x == 64:
                sc[2*f] += ['s_waitcnt vmcnt(8)', 's_nop 0' if nobar else 's_barrier']; used[2*f] += 1
            for i, o in enumerate(reads(x)):
                put(2*f + i, o); rdq.setdefault(2*f + i, []).append(f + DF)
        q = list(range(DF)); wgaps = []
        for n in range(128):
            if (n + 1) % (2*AW) == 0:
                need = (n + 1)//2 + AW - 1
                sc[n].insert(0, f's_waitcnt lgkmcnt({sum(1 for x in q if x > need)})'); wgaps.append(n)
                assert need in q and sum(1 for x in q if x == need) == nreads(rmap(need))
            q += rdq.get(n, [])
        free_odd = [n for n in range(1, 64, 2) if used[n] == 0]
        eg = [n for n in free_odd if n in wgaps]; og = [n for n in free_odd if n not in wgaps]
        dg = []
        if not special:
            dg = [og[(i*len(og))//8] for i in range(8)] if dlate else og[:8]
            if var is not None: dg = free_odd[var::3][:8]
            for r, n in enumerate(dg):
                sc[n-1].append(f's_add_u32 m0, s35, {65536 + ((jm+3)%4)*SLOT + r*PITCH - (r&3)*1024}')
                if nodma: used[n] += 2
                else: put(n, f'buffer_load_dwordx4 v{V_L16}, {srd(R_XA)}, {"s26" if r < 4 else "s29"} offen offset:{(r&3)*1024}{ksc} lds', 2)
            sc[70].append('s_add_u32 s26, s26, 32768')
            if jm == 0:
                sc[72].append('s_cmp_eq_u32 s31, 0'); sc[73].append(f's_cselect_b64 s[{R_XA}:{R_XA+1}], s[{R_AUX}:{R_AUX+1}], s[{R_XA}:{R_XA+1}]'); sc[74].append('s_cselect_b32 s26, s28, s26'); sc[74].append('s_nop 0')
            sc[76].append('s_add_u32 s29, s26, 4096')
        else:
            dg = og[1:]
            dg = dg[:len(og) + len(eg) - 16]
        epos = [n for n in free_odd if n not in dg][:16]
        assert len(epos) == 16
        for k, n in enumerate(epos):
            op = f'v_exp_f32 v{Scur+k}, v{Scur+k}'
            if n in wgaps: first[n] = op; used[n] += 2
            else: put(n, op, 2)
        adds = [f'v_add_f32 v{V_L+(k//8)}, v{V_L+(k//8)}, v{Scur+k}' for k in range(16)]
        for n in wgaps:
            if n not in first and n != 127 and n not in dg:
                first[n] = 's_nop 0'; used[n] += 1
        for k in range(8):
            n = fit(epos[2*k+1]+1, 1); put(n, f'v_cvt_pk_bf16_f32 v{P+k}, v{Scur+2*k}, v{Scur+2*k+1}')
            assert n <= 61, n
        def place(ops, lo):
            n = lo
            for op in ops:
                n = fit(n, 1); put(n, op)
            return n
        place(adds, max(epos)+1)
        n = place(maxtree(Snext) + [f'v_max_f32 v{V_T3}, v{V_MX}, v{V_MX+1}'], 72)
        if special:
            slots = dg + list(range(53, 124, 4))
            for n in slots:
                pr, op, tag, minq = PF.pop(0)
                assert n >= 4*minq + 4
                if pr: sc[n].append(pr)
                gap[n].insert(len(rdq.get(n, [])), (op, tag))
        if peel:
            for i, (pr, op, tag) in enumerate(peel):
                n_ = 2*((i*22)//len(peel))
                if pr: sc[n_].append(pr)
                gap[n_].insert(1, (op, tag))
        gap[125].append(f'v_cmp_lt_f32 vcc, s45, v{V_T3}')
        assert n <= 124
        for n in range(128):
            if peel and n == 64:
                for st in range(16):
                    vq.wait(f'sd{st}')
                    for jj in range(2):
                        e(f'{MF} v[{SD+4*jj}:{SD+4*jj+3}], a[{12*st+4*jj}:{12*st+4*jj+3}], a[{12*st+8}:{12*st+11}], ' + ('0' if st == 0 else f'v[{SD+4*jj}:{SD+4*jj+3}]'))
            e(mfma(n, Snext, lambda qt: f'v[{NEGM+4*qt}:{NEGM+4*qt+3}]', zero=peel is not None))
            for o in sc[n]: e(o)
            if n in first: e('s_nop 0' if (novalu and not special and peel is None) else first[n])
            for o in gap[n]:
                if novalu and not special and peel is None and not isinstance(o, tuple) and o.startswith('v_') and 'cmp' not in o: continue
                if isinstance(o, tuple): (vq if peel else vt).issue(*o)
                elif peel and o.startswith('buffer'): vq.issue(o, 'dma')
                else: e(o)
            if peel and 90 <= n < 94: e(f'v_cvt_pk_bf16_f32 v{SD+8+n-90}, v{SD+2*(n-90)}, v{SD+2*(n-90)+1}')
            if peel and n == 117: e(f'buffer_store_dwordx4 v[{SD+8}:{SD+11}], v{V_L16}, {srd(R_WS)}, s36 offen sc1')
    def rescale(par):
        Snext = S_BUF[1-par]
        e('s_nop 7\ns_nop 7')
        for qt in range(2): e(f'v_max_f32 v{V_MX+qt}, 0, v{V_MX+qt}')
        xred('v_max_f32', [V_MX, V_MX+1])
        for qt in range(2):
            for i in range(4): e(f'v_sub_f32 v{NEGM+4*qt+i}, v{NEGM+4*qt+i}, v{V_MX+qt}')
            for i in range(8): e(f'v_sub_f32 v{Snext+8*qt+i}, v{Snext+8*qt+i}, v{V_MX+qt}')
            e(f'v_sub_f32 v{V_MX+qt}, 0, v{V_MX+qt}\nv_exp_f32 v{V_MX+qt}, v{V_MX+qt}\ns_nop 0')
            e(f'v_mul_f32 v{V_L+qt}, v{V_L+qt}, v{V_MX+qt}')
    e(f's_cmp_eq_u32 s38, 0\ns_cbranch_scc1 {name}_q0')
    rest = qk0(1)
    body(1, first=rest)
    NV = 3 if stag else 1
    def disp(lbl):
        for v in range(1, NV): e(f's_cmp_eq_u32 s24, {v}\ns_cbranch_scc1 {name}_{lbl}v{v}')
        e(f's_branch {name}_{lbl}v0')
    e(f's_cbranch_vccnz {name}_R1')
    a.label(f'{name}_B1'); disp('B1')
    a.label(f'{name}_q0')
    qk0(0)
    body(0, first=[])
    e(f's_cbranch_vccnz {name}_R0')
    a.label(f'{name}_B0'); disp('B0')
    for jm in (2, 3):
        a.label(f'{name}_B{jm}'); disp(f'B{jm}')
    a.label(f'{name}_L0'); disp('L0')
    for v in range(NV):
        a.label(f'{name}_L0v{v}')
        for jm in range(4):
            if jm == 2: e(f's_cmp_eq_u32 s31, 0\ns_cbranch_scc1 {name}_sp2')
            body(jm, var=v if stag else None)
            e(f's_cbranch_vccnz {name}_R{jm}')
            a.label(f'{name}_B{jm}v{v}')
        e(f's_sub_u32 s31, s31, 1\ns_bitcmp1_b32 {32 if l2pf else 38}, s31\ns_cbranch_scc1 {name}_L0v{v}')
        if v < NV - 1: e(f's_branch {name}_stub')
    a.label(f'{name}_stub')
    e(f's_cmp_eq_u32 s31, 6\ns_cbranch_scc1 {name}_fb')
    for k in ((4, 3, 2, 1) if l2pf else (4, 3)): e(f's_cmp_eq_u32 s31, {k}\ns_cbranch_scc1 {name}_st{k}')
    a.mark('r0')
    e('s_lshl_b32 s36, s32, 2\ns_add_u32 s36, s36, s24\ns_and_b32 s36, s36, 7')
    a.touch_code(f'{name}_sp2', f'{name}_end', 50, 113, 112, 36, 1)
    e(f's_branch {name}_L0')
    a.label(f'{name}_st4')
    a.mark('r4')
    e(f's_mov_b32 s44, {FB_REL}')
    for l in pollB_ld: e(l)
    e('s_lshl_b32 s48, s34, 2\ns_add_u32 s48, s48, s32\ns_mul_i32 s49, s33, 125\ns_add_u32 s49, s49, s48')
    e('s_lshl_b32 s39, s48, 1\ns_add_u32 s39, s39, s24\ns_sub_u32 s39, s39, 1\ns_and_b32 s39, s39, 0xffff\ns_lshl_b32 s39, s39, 14')
    e(f's_lshl_b32 s38, s24, 14\ns_add_u32 s38, s38, {DW_OFF}')
    e('s_lshl_b32 s28, s49, 15\ns_lshl_b32 s47, s24, 13\ns_add_u32 s28, s28, s47')
    e('s_lshl_b32 s46, s49, 15\ns_lshl_b32 s47, s24, 12\ns_add_u32 s46, s46, s47\ns_add_u32 s47, s46, 16384')
    e(f'v_lshlrev_b32 v113, 7, v0\ns_branch {name}_L0')
    a.label(f'{name}_st3')
    a.mark('r3')
    poll(pollB_ld, list(range(96, 112)), None)
    if l2pf == 1: e(f'buffer_load_dword v112, v113, {srd(R_AUX)}, s28 offen')
    e(f's_branch {name}_L0')
    a.label(f'{name}_st2')
    a.mark('r2')
    if l2pf: e(f's_mul_i32 s36, s33, 4096000\ns_sub_u32 s36, s28, s36\nbuffer_load_dword v112, v113, {srd(R_GL)}, s36 offen sc1')
    e(f's_branch {name}_L0')
    a.label(f'{name}_st1')
    a.mark('r1')
    if l2pf: e(f'buffer_load_dword v112, v113, {srd(R_U)}, s28 offen sc1')
    e(f's_branch {name}_L0')
    a.label(f'{name}_fb')
    a.mark('r6')
    e(f'buffer_store_dword v{V_ONE}, off, {srd(R_FL)}, s41{FSC}')
    e(f's_branch {name}_L0')
    for rid in (0, 2, 4):
        a.label(f'{name}_R{rid}'); e(f's_mov_b32 s42, {rid}')
        if rid != 4: e(f's_branch {name}_RB0')
    a.label(f'{name}_RB0'); rescale(0); e(f's_branch {name}_RC')
    for rid in (1, 3):
        a.label(f'{name}_R{rid}'); e(f's_mov_b32 s42, {rid}')
        if rid != 3: e(f's_branch {name}_RB1')
    a.label(f'{name}_RB1'); rescale(1)
    a.label(f'{name}_RC')
    for i in range(0, 256, 2):
        qt = (i // 4) % 2
        e(f'v_accvgpr_read_b32 v{V_T1}, a{i}\nv_accvgpr_read_b32 v{V_T2}, a{i+1}\nv_mul_f32 v{V_T1}, v{V_T1}, v{V_MX+qt}\nv_mul_f32 v{V_T2}, v{V_T2}, v{V_MX+qt}')
        e(f'v_accvgpr_write_b32 a{i}, v{V_T1}\nv_accvgpr_write_b32 a{i+1}, v{V_T2}')
    e('s_nop 3')
    for rid in range(4): e(f's_cmp_eq_u32 s42, {rid}\ns_cbranch_scc1 {name}_B{rid}')
    e(f's_branch {name}_B4')
    a.label(f'{name}_sp2')
    a.mark('sp2')
    for _ in range(8): vt.q.append('old')
    body(2, special=True)
    e(f's_cbranch_vccnz {name}_R4')
    a.label(f'{name}_B4')
    a.mark('b4')
    cur[0] = 3; Scur = S_BUF[1]
    for k in range(16): e(f'v_exp_f32 v{Scur+k}, v{Scur+k}')
    for k in range(8): e(f'v_cvt_pk_bf16_f32 v{P+k}, v{Scur+2*k}, v{Scur+2*k+1}')
    e('s_nop 0')
    OC_L = SLOT; LL_L = OC_L + 32768; GT_L = 2*SLOT; UC_L = 4*SLOT; OCD = OC_L
    R_LP = R_Q
    V_GW=2; V_CB=3; V_XO=4; V_UCR=5; SEL=16; V_X=64
    wn = [0]
    pslots = []
    for r in range(4): pslots += [V_DW + 16*r + 4*j for j in range(4)] + [V_U + 8*r + 4*j for j in range(2)]
    free = []; wmap = {}
    def wreg(i): return wmap[i]
    def wl():
        i = wn[0]
        if i >= 256 or not free: return False
        wmap[i] = free.pop(0)
        wn[0] += 1
        sg = (i & 127) // 8
        p = 4*(sg % 4) + sg // 4 if i < 128 else sg
        if i >= 224:
            k = i - 224
            if i % 2 == 0: e(f's_add_u32 s41, s40, {524288 + (12 + (k%8)//2)*8192 + (k//8)*2048}')
            vt.issue(f'buffer_load_dwordx4 {wreg(i)}, v{V_L16 if t16 else V_WP}, {srd(R_WS)}, s41 offen offset:{(1024 if t16 else 512)*(i%2)} sc1', f'w{i}')
            return True
        if i % 4 == 0: e(f's_add_u32 s41, s40, {(i>>7)*524288 + p*8192 + ((i%8)//4)*4096}')
        vt.issue(f'buffer_load_dwordx4 {wreg(i)}, v{V_L16 if t16 else V_WP}, {srd(R_WS)}, s41 offen offset:{2048*((i%4)//2) + (1024 if t16 else 512)*(i%2)}' + (' sc1' if i >= 128 else HS1), f'w{i}')
        return True
    lq = LQ(e)
    pubn = [0]
    def pub_ops(T, lqq=None):
        fidx = pubn[0]; pubn[0] += 1
        u, qt = fidx // 2, fidx % 2; o = T + 8 + 4*(fidx % 2); ops = []
        for j in range(8): ops.append(lambda j=j: e(f'v_accvgpr_read_b32 v{T+j}, a{16*u + 8*(j//4) + 4*qt + j%4}'))
        for j in range(4): ops.append(lambda j=j: e(f'v_cvt_pk_bf16_f32 v{o+j}, v{T+2*j}, v{T+2*j+1}'))
        def st():
            if fidx % 4 == 0 and fidx: e('s_add_u32 s29, s29, 4096')
            if xm: e('s_not_b64 exec, s[30:31]')
            vt.issue(f'buffer_store_dwordx4 v[{o}:{o+3}], v{V_L16}, {srd(R_OP)}, s29 offen offset:{(fidx%4)*1024} sc1', 'ps' if fidx >= 16 else 'psA')
            e('s_mov_b64 exec, s[30:31]')
            lq.issue(f'ds_write_b128 v{V_L16}, v[{o}:{o+3}] offset:{OC_L + 1024*fidx}', 'pw')
            e('s_mov_b64 exec, -1')
            if qt == 1: free.extend(f'a[{16*u+4*j}:{16*u+4*j+3}]' for j in range(4))
        ops += [st]
        return ops
    SC = []
    def S_(t): SC.extend(t.split('\n'))
    S_(f's_add_u32 s{R_LP}, s4, {LP_OFF}|s_addc_u32 s{R_LP+1}, s5, 0\ns_mov_b32 s{R_LP+2}, {LP_SZ}')
    S_('s_lshl_b32 s25, s30, 2\ns_add_u32 s36, s25, s24\ns_add_u32 s25, s25, s32')
    S_('s_cmp_eq_u32 s24, s32|s_cselect_b64 s[30:31], -1, 0|s_cselect_b32 s35, 0x4000, 0')
    S_(f's_mul_i32 s37, s32, {NS}\ns_add_u32 s37, s37, s35\ns_add_u32 s37, s37, s36\ns_lshl_b32 s35, s37, 8\ns_lshl_b32 s29, s37, 15')
    S_(f's_lshl_b32 s40, s24, 17\ns_add_u32 s40, s40, {WF_OFF}')
    S_(f's_lshl_b32 s36, s36, 6\ns_lshl_b32 s37, s32, 2\ns_add_u32 s36, s36, s37\ns_add_u32 s36, s36, {FC_REL}')
    S_(f's_mov_b32 s42, 0x3f803f80\ns_mov_b32 s43, 0xffff0000\ns_mov_b32 s44, {f2u(1/512)}\ns_lshl_b32 s39, s24, 13\ns_lshl_b32 s59, s24, 11')
    for k in range(3):
        S_(f's_add_u32 s37, s32, {k+1}\ns_and_b32 s37, s37, 3\ns_mul_i32 s37, s37, {NS}\ns_add_u32 s37, s37, s25\ns_lshl_b32 s{26+k}, s37, 8\ns_lshl_b32 s{45+k}, s37, 15\ns_add_u32 s{45+k}, s{45+k}, s59')
    S_(f's_lshl_b32 s37, s25, 6\ns_add_u32 s37, s37, {FC_REL}\ns_lshl_b32 s50, s49, 15\ns_add_u32 s51, s50, 16384')
    VC = [f'v_add_f32 v{V_L+(k%2)}, v{V_L+(k%2)}, v{Scur+8*(k%2)+k//2}' for k in range(16)]
    def V_(t): VC.extend(t.split('\n'))
    m, G, t3, t0, t1, t2 = 24, 25, 26, 27, 28, 29
    V_(f'v_and_b32 v{m}, 15, v0\nv_lshrrev_b32 v{G}, 4, v0\nv_lshrrev_b32 v{t3}, 1, v{G}')
    for sw in ('32', '16'):
        V_(f'v_mov_b32 v{V_T0}, v{V_L}\nv_mov_b32 v{V_T1}, v{V_L+1}|s_nop 1|v_permlane{sw}_swap_b32 v{V_T0}, v{V_L}\nv_permlane{sw}_swap_b32 v{V_T1}, v{V_L+1}|s_nop 1|v_add_f32 v{V_L}, v{V_L}, v{V_T0}\nv_add_f32 v{V_L+1}, v{V_L+1}, v{V_T1}')
    V_(f'v_and_b32 v{V_T0}, 16, v0\nv_cmp_eq_u32 vcc, 0, v{V_T0}\nv_lshlrev_b32 v{V_T1}, 4, v{m}\nv_lshl_add_u32 v{V_T1}, v{G}, 2, v{V_T1}')
    V_(f'v_cndmask_b32 v{V_MX}, v{NEGM+4}, v{NEGM}, vcc\nv_cndmask_b32 v{V_MX+1}, v{V_L+1}, v{V_L}, vcc\nv_cmp_gt_u32 vcc, 32, v0|s_nop 1|v_cndmask_b32 v{V_MX}, v{V_MX+1}, v{V_MX}, vcc')
    V_(f'v_lshrrev_b32 v{t0}, 3, v{m}\nv_cmp_eq_u32 vcc, v{t0}, v{t3}\nv_bfe_u32 v{t0}, v{m}, 1, 2|s_nop 0|v_cndmask_b32 v{t0}, 8, v{t0}, vcc')
    V_(f'v_and_b32 v{t1}, 1, v{m}\nv_cmp_eq_u32 vcc, 1, v{t1}')
    for par in range(2):
        bsel = 0x0302 if par else 0x0100
        V_(f'v_mov_b32 v{t1}, {0x0c0c0000 | bsel}\nv_mov_b32 v{t2}, {(bsel << 16) | 0x0c0c}\nv_cndmask_b32 v{30+par}, v{t1}, v{t2}, vcc')
    V_(f'v_mov_b32 v{t1}, 0x0c0c0c0c')
    for r in range(4):
        V_(f'v_cmp_eq_u32 vcc, {r}, v{t0}|s_nop 1|v_cndmask_b32 v{SEL+r}, v{t1}, v30, vcc\nv_cndmask_b32 v{SEL+4+r}, v{t1}, v31, vcc')
    V_(f'v_lshl_add_u32 v{V_GW}, s24, 4, v{m}\nv_mul_u32_u24 v{V_GW}, {PITCH}, v{V_GW}\nv_lshl_add_u32 v{V_GW}, v{G}, 4, v{V_GW}\nv_add_u32 v{V_GW}, {GT_L}, v{V_GW}')
    V_(f'v_and_b32 v{V_CB}, 1, v{G}\nv_lshlrev_b32 v{V_CB}, 4, v{V_CB}\nv_add3_u32 v{V_CB}, v{V_CB}, v{m}, 1\nv_mul_u32_u24 v{V_CB}, {PITCH}, v{V_CB}\nv_lshl_add_u32 v{V_CB}, v{t3}, 4, v{V_CB}\nv_lshl_add_u32 v{V_CB}, s24, 8, v{V_CB}\nv_add_u32 v{V_CB}, {GT_L}, v{V_CB}')
    if t16:
        V_(f'v_lshlrev_b32 v{V_XO}, 10, v{m}\nv_lshl_add_u32 v{V_XO}, v{G}, 4, v{V_XO}\nv_lshl_add_u32 v{V_XO}, s24, 8, v{V_XO}')
        late = [f'v_add_u32 v{V_UCR}, {UC_L}, v{V_L16}', f'v_mul_u32_u24 v6, {PITCH}, v{m}', f'v_lshl_add_u32 v6, v{G}, 4, v6', 'v_lshl_add_u32 v6, s24, 8, v6', f'v_add_u32 v{V_T1}, {LL_L-4096}, v{V_T1}']
    else:
        V_(f'v_and_b32 v{V_XO}, 31, v0\nv_lshlrev_b32 v{V_XO}, 10, v{V_XO}\nv_lshl_add_u32 v{V_XO}, v{t3}, 4, v{V_XO}\nv_lshl_add_u32 v{V_XO}, s24, 8, v{V_XO}')
        late = [f'v_and_b32 v{V_UCR}, 1, v{G}', f'v_lshlrev_b32 v{V_UCR}, 10, v{V_UCR}', f'v_lshl_add_u32 v{V_UCR}, v{t3}, 8, v{V_UCR}', f'v_lshl_add_u32 v{V_UCR}, v{m}, 4, v{V_UCR}']
    assert all(p[2].startswith('dw') for p in PF)
    pq = []
    for _ in range(npub[0]): pq += pub_ops(32)
    for f in range(32, 32 + DF): lq.q += [f'v{f}']*2
    waits0 = lq.need('v33'); e(f's_waitcnt {waits0}')
    for n in range(64, 128):
        f = n // 2
        e(mfma(n, 0, None))
        mm = PF.pop(0) if (PF and n % 4 == 1) else None
        if n % 4 == 3 and n < 127: e('s_waitcnt ' + lq.need(f'v{f+2}'))
        elif mm and mm[0]: e(mm[0])
        for _ in range(1 if n % 4 == 3 else 2):
            if SC: e(SC.pop(0).replace('|', '\n'))
        if f + DF < 64: lq.issue(reads(f + DF)[n % 2], f'v{f+DF}')
        if mm: vt.issue(mm[1], mm[2])
        elif not VC and pq and pq[0].__name__ == 'st': pq.pop(0)()
        else:
            for _ in range(vper):
                if VC: e(VC.pop(0).replace('|', '\n'))
                elif pq and pq[0].__name__ != 'st': pq.pop(0)()
    assert not PF and not SC and not VC, (len(SC), len(VC))
    for o in pq: o()
    vt.issue(f'buffer_store_dword v{V_MX}, v{V_T1}, {srd(R_LP)}, s35 offen sc1', 'psA')
    vt.wait('g'); e('s_barrier')
    a.mark('attn1')
    def flagC(h):
        assert pubn[0] >= 16*(h+1) and vt.q.count('psA') == 17 and (h == 0 or vt.q.count('ps') == 16)
        vt.wait('ps' if h else 'psA')
        vt.issue(f'buffer_store_dword v{V_ONE}, off, {srd(R_FL)}, s36 offset:{16*h}{FSC}', 'fc')
    for o in late: e(o)
    e(f's_mov_b64 exec, s[30:31]\nds_write_b32 v{V_T1}, v{V_MX} offset:4096\ns_mov_b64 exec, -1'); lq.q.append('ll')
    S = [V_X+8, V_X+10, V_X+9, V_X+11]
    for i in range(4): e(f'v_mov_b32 v{S[i]}, 0')
    n1 = npub[1] * 2 // 5; n2 = npub[1] - n1
    for i in range(64):
        e(f'v_dot2_f32_bf16 v{S[i%2]}, v{V_G+i}, s42, v{S[i%2]}')
        e(f'v_dot2_f32_bf16 v{S[2+i%2]}, v{V_G+i}, v{V_G+i}, v{S[2+i%2]}')
        if (i+1)*n1 // 64 > i*n1 // 64:
            for o in pub_ops(80): o()
            wl()
        if i % 8 == 3: wl()
    e('s_nop 2')
    e(f'v_add_f32 v{S[0]}, v{S[0]}, v{S[1]}\nv_add_f32 v{S[2]}, v{S[2]}, v{S[3]}')
    for sw in ('16', '32'):
        e(f'v_mov_b32 v{S[1]}, v{S[0]}\nv_mov_b32 v{S[3]}, v{S[2]}\ns_nop 1')
        e(f'v_permlane{sw}_swap_b32 v{S[1]}, v{S[0]}\nv_permlane{sw}_swap_b32 v{S[3]}, v{S[2]}\ns_nop 0')
        e(f'v_add_f32 v{S[0]}, v{S[0]}, v{S[1]}\nv_add_f32 v{S[2]}, v{S[2]}, v{S[3]}')
    e(f'v_mul_f32 v{S[0]}, s44, v{S[0]}\nv_mul_f32 v{S[2]}, s44, v{S[2]}\nv_fma_f32 v{S[2]}, -v{S[0]}, v{S[0]}, v{S[2]}\nv_max_f32 v{S[2]}, 0, v{S[2]}')
    e(f'v_add_f32 v{S[2]}, {f2u(1e-5)}, v{S[2]}\nv_rsq_f32 v{S[2]}, v{S[2]}\ns_nop 0\nv_mul_f32 v{S[0]}, -v{S[0]}, v{S[2]}')
    for p in range(16):
        tb = 48 + 8*(p % 2)
        for k in range(4):
            e(f'v_lshlrev_b32 v{tb+2*k}, 16, v{V_G+4*p+k}\nv_and_b32 v{tb+2*k+1}, s43, v{V_G+4*p+k}')
        for j in range(0, 8, 2): e(f'v_pk_fma_f32 v[{tb+j}:{tb+j+1}], v[{tb+j}:{tb+j+1}], v[{S[0]}:{S[0]+1}], v[{S[0]}:{S[0]+1}] op_sel:[0,1,0] op_sel_hi:[1,1,0]')
        for k in range(4): e(f'v_cvt_pk_bf16_f32 v{V_G+4*p+k}, v{tb+2*k}, v{tb+2*k+1}')
        lq.issue(f'ds_write_b128 v{V_GW}, v[{V_G+4*p}:{V_G+4*p+3}] offset:{64*p}', 'gw')
        wl()
        if (p+1)*n2 // 16 > p*n2 // 16:
            for o in pub_ops(80): o()
    e(f'v_add_u32 v{V_GW}, s59, v{V_UCR}')
    e('s_waitcnt lgkmcnt(0)\ns_barrier'); lq.drained()
    a.mark('stage')
    ABUF = [8, 12, 24, 28]; CACC = 64; GB = 80; GACC = 128
    V_PA = 3
    pn = [0]; pok = [0]; prnd = [0]; plim = [15]
    def pload():
        k = pn[0]
        if k >= min(pok[0], 6*prnd[0], plim[0]): return False
        pn[0] += 1
        i, s = k // 3, k % 3
        if i % 2 == 0 and i: e(f's_add_u32 s{45+s}, s{45+s}, 8192')
        r = pslots[k]
        vt.issue(f'buffer_load_dwordx4 v[{r}:{r+3}], v{V_L16}, {srd(R_OP)}, s{45+s} offen offset:{1024*(i%2)} sc1', f'p{i}')
        return True
    pst = {}
    def events(t):
        for h, (ft, pt) in enumerate(((fA, pA), (fB, pB))):
            if t == ft: flagC(h); return True
            if t == pt:
                ix = min(6*prnd[0], plim[0]) - 1; r = pslots[ix]; assert pn[0] <= ix
                pst[h] = (f'buffer_load_dwordx4 v[{r}:{r+3}], off, {srd(R_FL)}, s37 offset:{16*h}{FSC}', r, pok[0])
                pok[0] = min(pok[0], ix)
                vt.issue(pst[h][0], f'pc{h}'); return True
            if t == pt + pD:
                vt.wait(f'pc{h}'); poll([pst[h][0]], [pst[h][1]+j for j in range(4)], None); pok[0] = 12*(h+1); return True
        return False
    HS = 1024 if t16 else 512
    def gm(i, Bbase, first, mid=None):
        e8 = i % 8 if i < 224 else 2*((i-224)//8) + i % 2
        d = GACC + 16*(e8 // 2)
        if not t16:
            Bq = Bbase + 4*(e8 % 2)
            e(f'{MB} v[{d}:{d+15}], {wreg(i)}, v[{Bq}:{Bq+3}], ' + ('0' if (first and e8 % 2 == 0) else f'v[{d}:{d+15}]'))
        else:
            for tt in range(2):
                dd = d + 8*tt + 4*(e8 % 2)
                e(f'{MF} v[{dd}:{dd+3}], {wreg(i)}, v[{Bbase+4*tt}:{Bbase+4*tt+3}], ' + ('0' if first else f'v[{dd}:{dd+3}]'))
                if tt == 0 and mid: mid()
    def waits(*ws):
        ws = [w for w in ws if w]
        if ws: e('s_waitcnt ' + ' '.join(ws))
    def stage(rc, rg):
        ring = [32 + 4*j for j in range(8)] + ([GACC + 4*j for j in range(4)] if rg is None else [])
        dfc = len(ring) - 2
        pq = []
        if rc == 0:
            for _ in range(npub[2]): pq += pub_ops(80)
        if rc == 1:
            while pubn[0] < 32: pq += pub_ops(V_DW)
        def crd(n):
            c, ip, tt = 2*rc + n // 32, (n // 2) % 16, n % 2; r = ring[n % len(ring)]
            lq.issue(f'ds_read_b128 v[{r}:{r+3}], v{V_CB} offset:{(ip+16*tt)*PITCH + 32*c}', f'c{rc}_{n}')
        def abuild(k, lo, hi):
            c, ip = 2*rc + k // 16, k % 16
            src = V_DW + 8*c + ip // 2
            for r in range(lo, hi): e(f'v_perm_b32 v{ABUF[k%4]+r}, v{src}, v{src}, v{SEL+4*(ip%2)+r}')
        def brd(j, h):
            r = GB + 8*(j % 2) + 4*h
            lq.issue(f'ds_read_b128 v[{r}:{r+3}], v{V_UCR} offset:{8192*(rg%2) + 2048*j + HS*h}', f'b{rg}_{j}')
        if rg is not None: brd(0, 0); brd(0, 1)
        if rc is not None:
            for n in range(dfc): crd(n)
            vt.wait(f'dw{rc}')
            abuild(0, 0, 4); abuild(1, 0, 4)
            waits(lq.need(f'c{rc}_3'))
        def gwait(k):
            if rg is not None and k < 32: waits(vt.need(f'w{32*rg + k}'), lq.need(f'b{rg}_{k//8}'))
        if rc is None: gwait(0)
        for k in range(32):
            if rc is not None:
                for tt in range(2):
                    n = 2*k + tt
                    d = CACC + 8*(k // 16) + 4*tt; r = ring[n % len(ring)]; A = ABUF[k % 4]
                    cc = '0' if k % 16 == 0 else f'v[{d}:{d+3}]'
                    e(f'{MF} v[{d}:{d+3}], v[{A}:{A+3}], v[{r}:{r+3}], {cc}')
                    if tt == 1:
                        gwait(k)
                        if rg is None and k % 2 == 1 and k < 31: waits(lq.need(f'c{rc}_{n+4}'))
                    if n + dfc < 64: crd(n + dfc)
                    if rg is None:
                        if tt == 0:
                            if not events(k - 32): wl()
                        else:
                            while pq and pq[0].__name__ in ('st',): pq.pop(0)()
                    if k + 2 < 32:
                        if rg is None: abuild(k+2, 2*tt, 2*tt+2)
                        else: abuild(k+2, tt, tt+1)
                    if rg is None:
                        for _ in range(3):
                            if pq and pq[0].__name__ not in ('st',): pq.pop(0)()
            if rg is not None:
                j, e8 = k // 8, k % 8; i = 32*rg + k
                gm(i, GB + 8*(j % 2), rg == 0 and j == 0, (lambda: abuild(k+2, 2, 4)) if (rc is not None and k + 2 < 32) else None)
                if rc is None: gwait(k+1)
                elif k % 2 == 1 and k < 31: waits(lq.need(f'c{rc}_{2*k+5}'))
                if e8 in (1, 2) and j < 3: brd(j+1, e8-1)
                free.append(wmap[i])
                if rc is not None:
                    ev = events(32*rg + k)
                    if pq and pq[0].__name__ == 'st': pq.pop(0)()
                    else: wl()
                    if not ev and not (k % pp == 0 and pload()) and k % 2 == 0: wl()
                    for _ in range(5):
                        if pq and pq[0].__name__ != 'st': pq.pop(0)()
                    if k + 2 < 32 and not t16: abuild(k+2, 2, 4)
                elif k % 2 == 1:
                    if not pload(): wl()
        for o in pq: o()
        if rc is not None:
            vt.wait('u')
            e('s_nop 7')
            for tt in range(2):
                ur = V_U + 8*rc + 4*tt; tb = [8, 24][tt]
                for q in range(4):
                    e(f'v_lshlrev_b32 v{tb+2*q}, 16, v{ur+q}\nv_and_b32 v{tb+2*q+1}, s43, v{ur+q}')
                for j in range(0, 8, 2):
                    x = CACC + 8*(j//4) + 4*tt + j%4
                    e(f'v_pk_mul_f32 v[{tb+j}:{tb+j+1}], v[{tb+j}:{tb+j+1}], v[{x}:{x+1}]')
                for q in range(4): e(f'v_cvt_pk_bf16_f32 v{ur+q}, v{tb+2*q}, v{tb+2*q+1}')
                e(f'ds_write_b128 v{V_GW}, v[{ur}:{ur+3}] offset:{8192*(rc%2) + 1024*tt}')
                wl()
            e('s_waitcnt lgkmcnt(0)\ns_barrier'); lq.drained()
            prnd[0] = rc + 1
    stage(0, None)
    a.mark('c0')
    stage(1, 0)
    assert pubn[0] == 32
    e(f's_cmp_lt_u32 s48, 125\ns_cbranch_scc1 {name}_cont')
    e('s_waitcnt vmcnt(0)')
    e(f'buffer_store_dword v{V_ONE}, off, {srd(R_FL)}, s36{FSC}\nbuffer_store_dword v{V_ONE}, off, {srd(R_FL)}, s36 offset:16{FSC}')
    a.endpgm(kidx)
    a.label(f'{name}_cont')
    a.mark('c1')
    stage(2, 1)
    a.mark('c2')
    assert pok[0] >= 12
    e(f'v_and_b32 v0, 0xf0, v{V_L16}')
    LMr = [pslots[15], pslots[16], pslots[17], 32]
    for k in range(3): vt.issue(f'buffer_load_dwordx4 v[{LMr[k]}:{LMr[k]+3}], v0, {srd(R_LP)}, s{26+k} offen sc1', 'L')
    stage(3, 2)
    a.mark('c3'); print('c3 wn', wn[0], 'pn', pn[0], 'free', len(free)) if dbgp else None
    assert pok[0] == 24
    e(f'v_add_u32 v{V_GW}, s59, v{V_L16}')
    e(f'v_add_u32 v0, {LL_L}, v0')
    lq.issue(f'ds_read_b128 v[32:35], v0', 'ol')
    OWN = [48 + 4*i for i in range(8)]
    for i in range(8): lq.issue(f'ds_read_b128 v[{OWN[i]}:{OWN[i]+3}], v{V_GW} offset:{OCD + 8192*(i//2) + 1024*(i%2)}', 'own')
    V_LS = 8
    def wts():
        o = [('f', lambda: waits(vt.need('L'), lq.need('own')))]
        v = lambda t: o.extend(('v', x) for x in t.split('\n'))
        for qt in range(2):
            L = [LMr[s] + qt for s in range(4)]; l = [LMr[s] + 2 + qt for s in range(4)]; t = 16 + qt
            v(f'v_min3_f32 v{t}, v{L[0]}, v{L[1]}, v{L[2]}\nv_min_f32 v{t}, v{t}, v{L[3]}')
            for x in L: v(f'v_sub_f32 v{x}, v{t}, v{x}')
            for x in L: v(f'v_exp_f32 v{x}, v{x}')
            v(f'v_mul_f32 v{t}, v{L[0]}, v{l[0]}')
            for k in range(1, 4): v(f'v_fmac_f32 v{t}, v{L[k]}, v{l[k]}')
            v(f'v_rcp_f32 v{t}, v{t}\ns_nop 0')
            for s_, x in enumerate(L): v(f'v_mul_f32 v{V_LS+2*s_+qt}, v{x}, v{t}')
        o.append(('f', lambda: plim.__setitem__(0, 24)))
        return o
    def comb(i):
        o = [('f', lambda: vt.wait(f'p{i}'))]
        qt = i % 2; tb = 16; ac = 24
        for s in range(4):
            src = OWN[i] if s == 3 else pslots[3*i + s]
            for k in range(4):
                o.append(('v', f'v_lshlrev_b32 v{tb+2*k}, 16, v{src+k}')); o.append(('v', f'v_and_b32 v{tb+2*k+1}, s43, v{src+k}'))
            if s < 3: o.append(('f', lambda src=src: free.append(f'v[{src}:{src+3}]')))
            for j in range(8):
                o.append(('v', f'v_mul_f32 v{ac+j}, v{tb+j}, v{V_LS+qt}' if s == 0 else f'v_fmac_f32 v{ac+j}, v{tb+j}, v{V_LS+2*s+qt}'))
        r = OWN[i]
        for k in range(4): o.append(('v', f'v_cvt_pk_bf16_f32 v{r+k}, v{ac+2*k}, v{ac+2*k+1}'))
        o.append(('d', f'ds_write_b128 v{V_GW}, v[{r}:{r+3}] offset:{OCD + 8192*(i//2) + 1024*(i%2)}'))
        return o
    V_X = 32
    xo = lambda k: f's{50 + k%2} offen offset:{64*(k//2)}' if t16 else f's50 offen offset:{32*k}'
    xq = [f'ds_read_b128 v[{V_X+4*k}:{V_X+4*k+3}], v6 offset:{16*PITCH*(k%2) + 64*(k//2)}' for k in range(8)]
    for st5 in range(4):
        i0 = 96 + 32*st5
        fl = (wts() if st5 == 0 else []) + (comb(2*st5) + comb(2*st5+1) if st5 < 4 else [])
        nv = sum(1 for x in fl if x[0] == 'v'); per = -(-nv // 28)
        def brd(j, h):
            off = 8192 + 2048*j if st5 == 0 else OCD + 2048*(4*(st5-1) + j)
            r = GB + 8*(j % 2) + 4*h
            lq.issue(f'ds_read_b128 v[{r}:{r+3}], v{V_UCR if st5 == 0 else V_L16} offset:{off + HS*h}', f'B{st5}_{j}')
        brd(0, 0); brd(0, 1)
        waits(vt.need(f'w{i0}'), lq.need(f'B{st5}_0'))
        for k in range(32):
            i = i0 + k; j, e8 = k // 8, k % 8
            gm(i, GB + 8*(j % 2), False)
            if k < 31: waits(vt.need(f'w{i+1}'), lq.need(f'B{st5}_{(k+1)//8}'))
            if e8 in (1, 2) and j < 3: brd(j+1, e8-1)
            if st5 == 3 and e8 in (4, 6): lq.issue(xq.pop(0), 'x')
            while fl and fl[0][0] == 'd': lq.issue(fl.pop(0)[1], 'cw')
            free.append(wmap[i])
            if k % wp5 != wp5 - 1:
                if not (k % 2 == 0 and pload()) and not wl(): pload()
            c = 0
            while fl and fl[0][0] != 'd' and c < per:
                kd, o = fl.pop(0)
                if kd == 'f': o()
                else: e(o); c += 1
        for kd, o in fl:
            if kd == 'f': o()
            elif kd == 'd': lq.issue(o, 'cw')
            else: e(o)
        if st5 < 4: e('s_waitcnt lgkmcnt(0)\ns_barrier'); lq.drained()
        a.mark(f'h{st5}'); print('st5', st5, 'wn', wn[0], 'pn', pn[0], 'free', len(free)) if dbgp else None
    assert not xq and pn[0] == 24
    def fin(k, pk):
        xr = V_X + 4*k; tb = 16 + 8*(k % 2); o = []
        for q in range(4): o += [f'v_lshlrev_b32 v{tb+2*q}, 16, v{xr+q}', f'v_and_b32 v{tb+2*q+1}, s43, v{xr+q}']
        if pk: o += [f'v_pk_add_f32 v[{tb+j}:{tb+j+1}], v[{tb+j}:{tb+j+1}], v[{GACC+8*k+j}:{GACC+8*k+j+1}]' for j in range(0, 8, 2)]
        else: o += [f'v_add_f32 v{tb+j}, v{tb+j}, v{GACC+8*k+j}' for j in range(8)]
        o += [f'v_cvt_pk_bf16_f32 v{xr+q}, v{tb+2*q}, v{tb+2*q+1}' for q in range(4)]
        o.append(f'buffer_store_dwordx4 v[{xr}:{xr+3}], v{V_XO}, {srd(R_OUT)}, {xo(k)}{osc}')
        return o
    for j in range(4):
        for h in range(2): lq.issue(f'ds_read_b128 v[{64+8*j+4*h}:{67+8*j+4*h}], v{V_L16} offset:{OCD + 2048*(12+j) + HS*h}', f'F{j}')
    while wl(): pass
    assert wn[0] == 256
    fl = []
    def drain(nmax):
        c = 0
        while fl and c < nmax and not fl[0].startswith('buffer'): e(fl.pop(0)); c += 1
    for k in range(32):
        i = 224 + k; j = (k % 8) // 2
        waits(vt.need(f'w{i}'), lq.need(f'F{j}'))
        gm(i, 64 + 8*j, False, lambda: drain(3))
        if fl and fl[0].startswith('buffer'): vt.issue(fl.pop(0), 'o')
        drain(3 if t16 else 6)
        if k % 8 == 0 and k: fl += fin(2*(k//8) - 2, False) + fin(2*(k//8) - 1, False)
    a.mark('h4')
    for o in fl: e(o)
    e('s_nop 7')
    for k in (6, 7):
        for o in fin(k, True): e(o)
    if merge:
        e(f's_or_b32 s38, s2, s24\ns_cmp_eq_u32 s38, 0\ns_cselect_b32 s38, 0, 0x10000\ns_add_u32 s38, s38, {EP_REL}')
        e(f'buffer_store_dword v{V_ONE}, off, {srd(R_FL)}, s38')
    a.mark('fin')
    a.endpgm(kidx)
    for sp in slow: sp()
    a.label(f'{name}_end')
    e('s_endpgm')
    a.end(name, 512, 102, 256)
    a.launch(name, 256, 256, 4*SLOT + 16384)
```
